```python
import torch

def _softmax(x, axis=-1):
    return torch.softmax(x, dim=axis)
def _gelu(x):
    return torch.nn.functional.gelu(x, approximate="tanh")
def _silu(x):
    return torch.nn.functional.silu(x)
def _sigmoid(x):
    return torch.sigmoid(x)
def _layernorm(x, axis=-1, eps=1e-5):
    m = x.mean(dim=axis, keepdim=True)
    v = x.var(dim=axis, keepdim=True, unbiased=False)
    return (x - m) / torch.sqrt(v + eps)
def _scatter_add(tgt, idx, src, axis=0):
    return tgt.clone().index_add_(axis, idx, src)
def _segment_sum(src, seg, n):
    out = torch.zeros((n,) + src.shape[1:], dtype=src.dtype)
    return out.index_add_(0, seg, src)
def _pad(x, pw):
    flat = tuple(v for pair in reversed(pw) for v in pair)
    return torch.nn.functional.pad(x, flat)

kernel_name = 'sequential_preLN__spectral_gfnet__glu_gated_bilinear__prompt'

def setup_inputs():

    _w = (lambda a: (lambda t: t.to(torch.bfloat16) if t.is_floating_point() else t)(torch.as_tensor(a)))
    def _A_setup():
        B, S, D = 1, 2048, 448
        Df = D // 2 + 1
        return {
            "x": _w((lambda *s: torch.randn(*s, dtype=torch.bfloat16) * 0.05)(B, S, D)),
            "w_r": _w((lambda *s: torch.randn(*s, dtype=torch.bfloat16) * 0.4)(S, Df) * 0.02),
            "w_i": _w((lambda *s: torch.randn(*s, dtype=torch.bfloat16) * 0.4)(S, Df) * 0.02),
        }
    _A_in = _A_setup()

    def _B_setup():
        B, S, D, F = 1, 2048, 448, 1792
        return {
            "x": _w((lambda *s: torch.randn(*s, dtype=torch.bfloat16) * 0.05)(B, S, D)),
            "w_gate": _w((lambda *s: torch.randn(*s, dtype=torch.bfloat16) * 0.2)(D, F) * (D ** -0.5)),
            "w_up": _w((lambda *s: torch.randn(*s, dtype=torch.bfloat16) * 0.2)(D, F) * (D ** -0.5)),
            "w_down": _w((lambda *s: torch.randn(*s, dtype=torch.bfloat16) * 0.2)(F, D) * (F ** -0.5)),
        }
    _B_in = _B_setup()

    return {
        "A_x": _A_in["x"],
        "A_w_r": _A_in["w_r"],
        "A_w_i": _A_in["w_i"],
        "B_x": _B_in["x"],
        "B_w_gate": _B_in["w_gate"],
        "B_w_up": _B_in["w_up"],
        "B_w_down": _B_in["w_down"],
    }

def reference(A_x, A_w_r, A_w_i, B_x, B_w_gate, B_w_up, B_w_down):
    def _A_ref(x, w_r, w_i):
        B, S, D = x.shape
        X = (lambda x, axes=(-2,-1): torch.fft.rfft2(x.float(), dim=axes))(x, axes=(-2, -1))
        W = w_r + 1j * w_i
        X = X * W
        y = (lambda x, s, axes=(-2,-1): torch.fft.irfft2(x, s=s, dim=axes).to(torch.bfloat16))(X, (S, D), axes=(-2, -1))
        return y

    def _B_ref(x, w_gate, w_up, w_down):
        g = torch.einsum("bsd,df->bsf", x, w_gate)
        u = torch.einsum("bsd,df->bsf", x, w_up)
        h = g * u
        return torch.einsum("bsf,fd->bsd", h, w_down)

    x = A_x
    h = x + _A_ref(_layernorm(x, axis=-1), A_w_r, A_w_i)
    h2 = h + _B_ref(_layernorm(h, axis=-1), B_w_gate, B_w_up, B_w_down)
    return h2
```

```python
import re

TRANS = ('v_exp_', 'v_log_', 'v_rcp_', 'v_rsq_', 'v_sqrt_', 'v_sin_', 'v_cos_')
REG_RE = re.compile(r'(?<![\w.])(-?)(?:abs\()?([vas])(?:\[(\d+):(\d+)\]|(\d+))(?![\w])')

def regs_of(tok):
    out = set()
    t = tok.strip()
    for m in REG_RE.finditer(t):
        k = m.group(2)
        if m.group(3) is not None:
            for n in range(int(m.group(3)), int(m.group(4)) + 1): out.add((k, n))
        else:
            out.add((k, int(m.group(5))))
    for sp in ('vcc', 'exec', 'm0'):
        if re.search(r'(?<![\w])' + sp + r'(?:_lo|_hi)?(?![\w])', t): out.add(('x', sp))
    return out

def split_ops(s):
    ops, depth, cur = [], 0, ''
    for ch in s:
        if ch == '[': depth += 1
        if ch == ']': depth -= 1
        if ch == ',' and depth == 0:
            ops.append(cur.strip()); cur = ''
        else: cur += ch
    if cur.strip(): ops.append(cur.strip())
    return ops

class Ins:
    def __init__(self, text, comment=''):
        self.text = text; self.comment = comment
        self.label = None; self.target = None
        self.reads = set(); self.writes = set()
        self.kind = 'other'; self.passes = 0; self.ws = 1
        self.A = self.B = self.C = set()
        self.tag = None
        t = text.strip()
        if t.endswith(':'):
            self.label = t[:-1]; self.kind = 'label'; self.ws = 0; self.op = ''; return
        if t.startswith('.') or t == '':
            self.kind = 'dir'; self.ws = 0; self.op = ''; return
        p = t.split(None, 1)
        op = self.op = p[0]
        rest = p[1] if len(p) > 1 else ''
        ops = split_ops(rest)
        mods = ''
        if ops:
            q = ops[-1].split(None, 1)
            if len(q) > 1 and not ops[-1].startswith('vmcnt') and not ops[-1].startswith('lgkmcnt'):
                ops[-1] = q[0]; mods = q[1]
        self.ops = ops; self.mods = mods
        R = lambda i: regs_of(ops[i]) if i < len(ops) else set()
        allr = lambda a: set().union(*[regs_of(o) for o in ops[a:]]) if len(ops) > a else set()
        if op.startswith('v_mfma'):
            self.kind = 'mfma'; self.passes = 8 if '32x32' in op else 4
            self.writes = R(0); self.A, self.B, self.C = R(1), R(2), R(3)
            self.reads = self.A | self.B | self.C
        elif op.startswith('v_'):
            self.kind = 'valu'
            self.trans = op.startswith(TRANS)
            self.dpp = '_dpp' in op or 'row_' in mods or 'quad_perm' in mods
            if op.startswith('v_permlane'):
                self.writes = allr(0); self.reads = allr(0)
            elif op.startswith('v_cmp'):
                self.writes = R(0); self.reads = allr(1)
                if op.startswith('v_cmpx'): self.writes |= {('x', 'exec')}
            elif op.startswith(('v_add_co', 'v_sub_co', 'v_addc_co', 'v_subb_co')):
                self.writes = R(0) | R(1); self.reads = allr(2)
            else:
                self.writes = R(0); self.reads = allr(1)
                if op.startswith(('v_fmac', 'v_pk_fmac', 'v_dot2c', 'v_writelane')) or self.dpp: self.reads |= R(0)
            if op in ('v_nop',): self.writes = set()
        elif op.startswith(('buffer_', 'global_')):
            self.kind = 'vmem'
            self.lds = bool(re.search(r'(?<!\w)lds(?!\w)', mods)) or '_lds_' in op
            self.store = 'store' in op or 'atomic' in op
            self.wide = self.store and ('x3' in op or 'x4' in op)
            if self.lds:
                self.reads = allr(0) | {('x', 'm0')}
            elif self.store:
                self.reads = allr(0)
                self.data = (R(0) if op.startswith('buffer_') else R(1))
            else:
                self.writes = R(0); self.reads = allr(1)
                if 'd16' in op: self.reads |= R(0)
        elif op.startswith('ds_'):
            self.kind = 'ds'
            if 'read' in op or 'permute' in op or 'swizzle' in op:
                self.writes = R(0); self.reads = allr(1)
            else:
                self.reads = allr(0)
        elif op.startswith('s_'):
            self.kind = 'salu'
            if op == 's_nop': self.ws = int(ops[0], 0) + 1; self.kind = 'nop'
            elif op == 's_waitcnt': self.kind = 'wait'
            elif op in ('s_barrier', 's_endpgm', 's_setprio', 's_sleep'): pass
            elif op.startswith(('s_branch', 's_cbranch')):
                self.kind = 'branch'; self.target = ops[0]
                if 'vcc' in op: self.reads = {('x', 'vcc')}
                if 'exec' in op: self.reads = {('x', 'exec')}
            elif op.startswith(('s_cmp', 's_bitcmp')): self.reads = allr(0)
            elif op.startswith(('s_load', 's_memrealtime', 's_memtime')):
                self.kind = 'smem'; self.writes = R(0); self.reads = allr(1)
            else:
                self.writes = R(0); self.reads = allr(1)
                if 'saveexec' in op: self.writes |= {('x', 'exec')}; self.reads |= {('x', 'exec')}
                if op.startswith(('s_addk', 's_mulk', 's_cmov')): self.reads |= R(0)
        else:
            raise ValueError('unknown instruction ' + text)

def need_ws(p, c):
    n = 0
    vw = {r for r in p.writes if r[0] in 'va'}
    sw = {r for r in p.writes if r[0] in 'sx'}
    if p.kind == 'valu':
        if c.kind == 'mfma':
            if vw & c.reads: n = max(n, 2)
            if ('x', 'exec') in sw: n = max(n, 4)
        if c.kind == 'valu':
            if vw & c.reads:
                if c.dpp or c.op.startswith('v_permlane'): n = max(n, 2)
                if c.op.startswith(('v_readlane', 'v_readfirstlane')): n = max(n, 1)
                if p.trans: n = max(n, 1)
            if sw & c.reads:
                n = max(n, 4 if c.op.startswith(('v_readlane', 'v_writelane')) else 2)
            if ('x', 'exec') in sw and (c.dpp or c.op.startswith(('v_permlane', 'v_readlane', 'v_readfirstlane'))): n = max(n, 5)
        if c.kind == 'vmem' and sw & c.reads: n = max(n, 5)
        if c.kind in ('salu', 'branch', 'smem') and sw & c.reads: n = max(n, 1)
    if p.kind == 'mfma':
        big = 12 if p.passes == 8 else 8
        if c.kind == 'mfma':
            if vw & (c.A | c.B): n = max(n, big)
            if vw & c.C and not (c.C == vw and c.passes == p.passes): n = max(n, big - 2)
        elif c.kind == 'valu':
            if vw & (c.reads | c.writes): n = max(n, big)
            if p.C & c.writes: n = max(n, 7 if p.passes == 8 else 3)
        elif c.kind in ('vmem', 'ds'):
            if vw & (c.reads | c.writes): n = max(n, big)
    if p.kind == 'salu' and ('x', 'm0') in p.writes and c.kind == 'vmem' and c.lds: n = max(n, 1)
    if p.kind == 'vmem' and p.store and p.wide and p.data & c.writes:
        n = max(n, 2 if c.kind == 'valu' else 1)
    return n

class Asm:
    def __init__(self):
        self.ins = []
        self.nvm = 0; self.nlg = 0
        self.uid = 0
    def __call__(self, text, comment=''):
        last = None
        for line in text.split('\n'):
            line = line.split(';')[0].strip()
            if not line: continue
            i = Ins(line, comment); self.ins.append(i); last = i
            if i.kind == 'vmem': self.nvm += 1; i.seq = self.nvm
            if i.kind == 'ds': self.nlg += 1; i.seq = self.nlg
        return last
    def note(self, text):
        i = Ins(''); i.comment = text; self.ins.append(i)
    def label(self, base):
        self.uid += 1; return '%s_%d' % (base, self.uid)
    def wait(self, vm=None, lg=None):
        parts = []
        if vm is not None:
            s = vm.seq if isinstance(vm, Ins) else vm
            parts.append('vmcnt(%d)' % min(63, self.nvm - s))
        if lg is not None:
            s = lg.seq if isinstance(lg, Ins) else lg
            parts.append('lgkmcnt(%d)' % min(15, self.nlg - s))
        return self('s_waitcnt ' + ' '.join(parts))
    def wait_vm0(self): return self('s_waitcnt vmcnt(0)')
    def wait_lg0(self): return self('s_waitcnt lgkmcnt(0)')

    def fix_hazards(self):
        total = 0
        while True:
            ins = self.ins
            labels = {x.label: k for k, x in enumerate(ins) if x.kind == 'label'}
            preds = [[] for _ in ins]
            for k, x in enumerate(ins):
                if k + 1 < len(ins) and not (x.op == 's_branch' or x.op == 's_endpgm'): preds[k + 1].append(k)
                if x.kind == 'branch': preds[labels[x.target]].append(k)
            extra = [0] * len(ins)
            for k, c in enumerate(ins):
                if c.kind in ('label', 'dir', 'nop', 'wait'): continue
                short = 0
                stack = [(p, 0) for p in preds[k]]; seen = {}
                while stack:
                    j, d = stack.pop()
                    if d >= 12 or seen.get(j, 99) <= d: continue
                    seen[j] = d
                    n = need_ws(ins[j], c)
                    if n > d: short = max(short, n - d)
                    for p in preds[j]: stack.append((p, d + ins[j].ws + extra[j]))
                extra[k] = short
            if not any(extra): return total
            out = []
            for k, c in enumerate(ins):
                if extra[k]: out.append(Ins('s_nop %d' % (extra[k] - 1), 'hazard')); total += extra[k]
                out.append(c)
            self.ins = out

    def check_waits(self):
        vm, lg, sm, errs = [], [], set(), []
        for k, x in enumerate(self.ins):
            if x.kind == 'wait':
                m = re.search(r'vmcnt\((\d+)\)', x.text)
                if m: n = int(m.group(1)); vm = vm[len(vm) - n:] if n and len(vm) > n else ([] if not n else vm)
                m = re.search(r'lgkmcnt\((\d+)\)', x.text)
                if m:
                    n = int(m.group(1)); lg = lg[len(lg) - n:] if n and len(lg) > n else ([] if not n else lg)
                    if n == 0: sm = set()
                continue
            touched = x.reads | x.writes
            for q, nm in ((vm, 'vm'), (lg, 'lg')):
                for o in q:
                    hit = o.writes & touched
                    if hit and not (x.kind == o.kind and not (o.writes & x.reads) and x.kind == 'ds'):
                        if 'unused' in o.comment: continue
                        errs.append('%s pending %s -> %s' % (nm, o.text, x.text))
            if sm & touched: errs.append('smem pending -> ' + x.text)
            if x.kind == 'vmem': vm.append(x)
            if x.kind == 'ds': lg.append(x)
            if x.kind == 'smem': sm |= x.writes
            if len(vm) > 63: errs.append('vmcnt overflow at ' + x.text)
        return errs

    def text(self):
        out = []
        for x in self.ins:
            if x.kind == 'label': out.append(x.text)
            elif x.kind == 'dir' and not x.text: out.append('    ; ' + x.comment)
            else: out.append('    ' + x.text + (('    ; ' + x.comment) if x.comment else ''))
        return '\n'.join(out)

class Regs:
    def __init__(self, kind, lo, hi):
        self.kind = kind; self.free = set(range(lo, hi)); self.hi = 0
    def alloc(self, n=1, align=None):
        align = align or (1 if n == 1 else 2 if self.kind != 's' else (4 if n >= 4 else 2))
        for b in sorted(self.free):
            if b % align == 0 and all(b + k in self.free for k in range(n)):
                for k in range(n): self.free.remove(b + k)
                self.hi = max(self.hi, b + n)
                return R(self.kind, b, n)
        raise RuntimeError('out of %s registers (%d)' % (self.kind, n))
    def release(self, *rs):
        for r in rs:
            for k in range(r.n):
                assert r.b + k not in self.free, 'double free %s' % r
                self.free.add(r.b + k)

class R:
    def __init__(self, kind, b, n): self.kind, self.b, self.n = kind, b, n
    def __str__(self): return '%s%d' % (self.kind, self.b) if self.n == 1 else '%s[%d:%d]' % (self.kind, self.b, self.b + self.n - 1)
    __repr__ = __str__
    def __getitem__(self, k):
        if isinstance(k, slice):
            a = k.start or 0; e = self.n if k.stop is None else k.stop
            assert 0 <= a < e <= self.n, (self, k)
            return R(self.kind, self.b + a, e - a)
        assert 0 <= k < self.n, (self, k)
        return R(self.kind, self.b + k, 1)
    def sub(self, a, n): return self[a:a + n]
```

```python
import math, struct, sys
from asmdsl import *

KNAME = 'sequential_preLN__spectral_gfnet__glu_gated_bilinear__prompt_kernel'
S, D, F = 2048, 448, 1792

Y1_OFF, Y2_OFF, Z2_OFF, HR_OFF, HH_OFF, FL_OFF, ST_OFF = 0, 2 << 20, 4 << 20, 6 << 20, 8 << 20, 16 << 20, 17 << 20
WS_BYTES = 256 << 20
YS = 8192
HFL = 0
RFL = 32768
OOB = 0x7f000000

BIG = 0
FFT = 114688
L_V, L_Y1G, L_T = FFT, FFT + 8192, FFT + 16384
L_Y2G, L_U, L_ZB, L_HB = FFT, FFT + 8192, FFT + 26112, FFT + 33280
UROW = 272
LDS_BYTES = 163840
SPIN = 1 << 16


def f2u(x):
    return struct.unpack('<I', struct.pack('<f', x))[0]


def hexf(x):
    return '0x%08x' % f2u(x)


class Gen:
    def __init__(self, cfg):
        self.cfg = cfg
        self.a = Asm()
        self.v = Regs('v', 1, 256)
        self.s = Regs('s', 3, 102)
        self.stamps = []

    def stamp(self, name):
        if not self.cfg.get('stamps'):
            return
        r = self.s.alloc(2)
        self.stamps.append((name, r))
        self.a('s_memrealtime %s' % r)

    def pk(self, op, d, x, y, z=None, neg=None, sel=None):
        srcs = [x, y] + ([z] if z is not None else [])
        n = len(srcs)
        sel = sel or [None] * n
        neg = neg or [0] * n
        lo = [1 if q == 'hi' else 0 for q in sel]
        hi = [0 if q == 'lo' else 1 for q in sel]
        m = ''
        if any(lo): m += ' op_sel:[%s]' % ','.join(map(str, lo))
        if not all(hi): m += ' op_sel_hi:[%s]' % ','.join(map(str, hi))
        if any(neg): m += ' neg_lo:[%s] neg_hi:[%s]' % (','.join(map(str, neg)), ','.join(map(str, neg)))
        return self.a('v_pk_%s_f32 %s, %s%s' % (op, d, ', '.join(map(str, srcs)), m))

    def cmul(self, re, im, c, sn, sign, t0, t1):
        self.pk('mul', t0, im, sn)
        self.pk('mul', t1, re, sn)
        self.pk('fma', re, re, c, t0, neg=[0, 0, 1 if sign > 0 else 0])
        self.pk('fma', im, im, c, t1, neg=[0, 0, 0 if sign > 0 else 1])

    def round_bf16(self, d, x):
        self.a('v_cvt_pk_bf16_f32 %s, 0, %s' % (d, x))

    def row_stats(self, s1, s2, t0, t1, mean, rs):
        a = self.a
        for n in (8, 4, 2, 1):
            a('v_add_f32_dpp %s, %s, %s row_ror:%d row_mask:0xf bank_mask:0xf' % (s1, s1, s1, n))
            a('v_add_f32_dpp %s, %s, %s row_ror:%d row_mask:0xf bank_mask:0xf' % (s2, s2, s2, n))
        a('v_mov_b32 %s, %s\nv_mov_b32 %s, %s' % (t0, s1, t1, s2))
        a('v_permlane16_swap_b32 %s, %s\nv_permlane16_swap_b32 %s, %s' % (s1, t0, s2, t1))
        a('v_add_f32 %s, %s, %s\nv_add_f32 %s, %s, %s' % (s1, s1, t0, s2, s2, t1))
        a('v_mul_f32 %s, %s, %s' % (s1, hexf(1.0 / D), s1))
        a('v_mul_f32 %s, %s, %s' % (s2, hexf(1.0 / D), s2))
        a('v_fma_f32 %s, -%s, %s, %s' % (s2, s1, s1, s2))
        a('v_max_f32 %s, 0, %s' % (s2, s2))
        self.round_bf16(s2, s2)
        a('v_add_f32 %s, %s, %s' % (s2, hexf(1e-5), s2))
        self.round_bf16(s2, s2)
        a('v_sqrt_f32 %s, %s' % (s2, s2))
        self.round_bf16(mean, s1)
        self.round_bf16(s2, s2)
        a('v_rcp_f32 %s, %s' % (rs, s2))

    def sentinel_max(self, acc, regs, first):
        regs = list(regs)
        if first:
            self.a('v_max3_u32 %s, %s, %s, %s' % (acc, regs[0], regs[1], regs[2])); regs = regs[3:]
        while len(regs) >= 2:
            self.a('v_max3_u32 %s, %s, %s, %s' % (acc, acc, regs[0], regs[1])); regs = regs[2:]
        if regs:
            self.a('v_max_u32 %s, %s, %s' % (acc, acc, regs[0]))

    def spin_out(self, lab):
        self.a('s_cmp_eq_u32 %s, 0\ns_cbranch_scc1 %s\ns_sub_u32 %s, %s, 1' % (self.spin, lab, self.spin, self.spin))

    def srd(self, slot, nbytes):
        r = self.s.alloc(4)
        self.a('s_load_dwordx2 %s, s[0:1], %d' % (r[0:2], slot * 8))
        self.a('s_mov_b32 %s, %d\ns_mov_b32 %s, 0x20000' % (r[2], nbytes, r[3]))
        return r

    def prologue(self):
        a, v, s = self.a, self.v, self.s
        cfg = self.cfg
        a('s_cmp_ge_u32 s2, 256\ns_cbranch_scc1 L_end')
        self.stamp('start')
        self.WS = self.srd(9, WS_BYTES)
        self.X = self.srd(0, S * D * 2)
        self.WR = self.srd(1, S * 225 * 2)
        self.WI = self.srd(2, S * 225 * 2)
        self.WG = self.srd(4, D * F * 2)
        self.WU = self.srd(5, D * F * 2)
        self.WD = self.srd(6, F * D * 2)
        self.OUT = self.srd(7, S * D * 2)
        self.DBG = self.srd(8, 256)
        self.sx, self.si, self.sw, self.sreg = s.alloc(), s.alloc(), s.alloc(), s.alloc()
        self.l, self.n16, self.g, self.p = v.alloc(), v.alloc(), v.alloc(), v.alloc()
        self.l16, self.t16, self.ones = v.alloc(), v.alloc(), v.alloc(4)
        t = v.alloc()
        a('v_lshrrev_b32 %s, 6, v0' % t)
        a('v_and_b32 %s, 63, v0' % self.l)
        a('v_readfirstlane_b32 %s, %s' % (self.sw, t))
        a('v_lshlrev_b32 %s, 4, v0' % self.t16)
        a('v_lshlrev_b32 %s, 4, %s' % (self.l16, self.l))
        a('s_and_b32 %s, s2, 7\ns_lshr_b32 %s, s2, 3' % (self.sx, self.si))
        a('s_lshl_b32 %s, %s, 5\ns_add_u32 %s, %s, %s' % (self.sreg, self.sx, self.sreg, self.sreg, self.si))
        for k in range(4):
            a('v_mov_b32 %s, -1' % self.ones[k])
        a('v_and_b32 %s, 31, %s' % (self.p, self.l))
        a('v_and_b32 %s, 15, %s' % (self.n16, self.l))
        a('v_lshrrev_b32 %s, 4, %s' % (self.g, self.l))
        vx = v.alloc(); sxo = s.alloc(); self.sY1, self.sY2 = s.alloc(), s.alloc()
        a('v_lshrrev_b32 %s, 5, %s' % (t, self.l))
        a('v_mul_u32_u24 %s, %d, %s' % (t, 32 * 896, t))
        a('v_lshl_add_u32 %s, %s, 2, %s' % (vx, self.p, t))
        a('s_lshl_b32 %s, %s, 2\ns_add_u32 %s, %s, %s\ns_lshl_b32 %s, %s, 6\ns_add_u32 %s, %s, %s\ns_mul_i32 %s, %s, 896'
          % (sxo, self.sx, sxo, sxo, self.sw, sxo, sxo, sxo, sxo, self.si, sxo, sxo))
        a('s_mul_i32 %s, %s, %d' % (self.sY1, self.sreg, YS))
        a('s_add_u32 %s, %s, %d' % (self.sY2, self.sY1, Y2_OFF))
        vt2 = v.alloc()
        a('v_add_u32 %s, 4096, %s' % (vt2, self.t16))
        a('s_waitcnt lgkmcnt(0)')
        a('buffer_store_dwordx4 %s, %s, %s, %s offen sc1' % (self.ones, self.t16, self.WS, self.sY1))
        clr1 = a('buffer_store_dwordx4 %s, %s, %s, %s offen sc1' % (self.ones, vt2, self.WS, self.sY1))
        self.xr = v.alloc(7)
        for d2 in range(7):
            xl = a('buffer_load_dword %s, %s, %s, %s offen offset:%d' % (self.xr[d2], vx, self.X, sxo, 128 * d2))
        self.xload = xl
        if cfg.get('codepf', 1):
            pc = s.alloc(2); junk = v.alloc()
            a('s_getpc_b64 %s' % pc)
            a('s_lshl_b32 %s, %s, 10' % (sxo, self.si))
            a('v_and_b32 %s, 7, %s\nv_lshl_add_u32 %s, %s, 7, %s' % (t, self.l, t, t, sxo))
            a('global_load_dword %s, %s, %s' % (junk, t, pc), 'unused')
            s.release(pc)
            self.junk = junk
        a('buffer_store_dwordx4 %s, %s, %s, %s offen sc1' % (self.ones, self.t16, self.WS, self.sY2))
        a('buffer_store_dwordx4 %s, %s, %s, %s offen sc1' % (self.ones, vt2, self.WS, self.sY2))
        self.vz0, self.vz1, self.sZ = v.alloc(), v.alloc(), s.alloc()
        a('v_lshrrev_b32 %s, 3, v0\nv_lshlrev_b32 %s, 9, %s' % (t, t, t))
        a('v_and_b32 %s, 7, v0\nv_lshl_add_u32 %s, %s, 4, %s' % (self.vz0, self.vz0, self.vz0, t))
        a('v_add_u32 %s, 16384, %s' % (self.vz1, self.vz0))
        a('v_mov_b32 %s, %d' % (t, OOB))
        a('v_cmp_gt_u32 vcc, 192, v0')
        a('v_cndmask_b32 %s, %s, %s, vcc' % (self.vz1, t, self.vz1))
        a('s_lshr_b32 %s, %s, 2\ns_mul_i32 %s, %s, 28672' % (self.sZ, self.sreg, self.sZ, self.sZ))
        a('s_and_b32 %s, %s, 3\ns_lshl_b32 %s, %s, 7' % (sxo, self.si, sxo, sxo))
        a('s_add_u32 %s, %s, %s\ns_add_u32 %s, %s, %d' % (self.sZ, self.sZ, sxo, self.sZ, self.sZ, Z2_OFF))
        a('buffer_store_dwordx4 %s, %s, %s, %s offen sc1' % (self.ones, self.vz0, self.WS, self.sZ))
        a('buffer_store_dwordx4 %s, %s, %s, %s offen sc1' % (self.ones, self.vz1, self.WS, self.sZ))
        a('v_cmp_gt_u32 vcc, 16, v0')
        a('v_cndmask_b32 %s, %s, %s, vcc' % (vt2, t, self.t16))
        a('s_lshl_b32 %s, s2, 8\ns_add_u32 %s, %s, %d' % (sxo, sxo, sxo, FL_OFF))
        self.clr2 = a('buffer_store_dwordx4 %s, %s, %s, %s offen sc1' % (self.ones, vt2, self.WS, sxo))
        v.release(vx, vt2)
        sj, ssg, scol, sstep = s.alloc(), s.alloc(), s.alloc(), s.alloc()
        self.scs = s.alloc(2)
        a('s_lshr_b32 %s, %s, 2\ns_mul_i32 %s, %s, 7\ns_and_b32 %s, %s, 3' % (sj, self.sreg, sj, sj, sxo, self.sreg))
        a('s_cmp_eq_u32 %s, 0' % sxo)
        a('s_cselect_b32 %s, %s, %s' % (self.scs[0], hexf(1.0 / (S * D)), self.scs[0]))
        a('s_cselect_b32 %s, %s, %s' % (self.scs[0], self.scs[0], hexf(2.0 / (S * D))))
        a('s_add_u32 %s, %s, %s' % (sj, sj, sxo))
        a('s_sub_u32 %s, 448, %s' % (scol, sj))
        a('s_cmp_gt_u32 %s, 224' % sj)
        a('s_cselect_b32 %s, %s, %s' % (scol, scol, sj))
        a('s_cselect_b32 %s, -1, 1' % ssg)
        a('s_cselect_b32 %s, 0x80000000, 0' % self.scs[1])
        a('s_xor_b32 %s, %s, %s' % (self.scs[1], self.scs[1], self.scs[0]))
        a('s_lshl_b32 %s, %s, 1' % (scol, scol))
        self.n = v.alloc()
        a('s_lshl_b32 %s, %s, 4\nv_add_u32 %s, %s, %s' % (sxo, self.sw, self.n, sxo, self.n16))
        vk = v.alloc()
        a('v_lshl_add_u32 %s, %s, 8, %s' % (vk, self.g, self.n))
        a('v_mul_lo_u32 %s, %s, %s' % (vk, vk, ssg))
        self.Wr, self.Wi = v.alloc(8), v.alloc(8)
        for k in range(8):
            a('v_mov_b32 %s, 0\nv_mov_b32 %s, 0' % (self.Wr[k], self.Wi[k]))
        vo = v.alloc(2)
        for k in range(8):
            tt, r = k // 4, k % 4
            o = vo[k % 2]
            a('s_mul_i32 %s, %s, %d' % (sstep, ssg, 64 * r + 1024 * tt))
            a('v_add_u32 %s, %s, %s\nv_and_b32 %s, 2047, %s\nv_mul_u32_u24 %s, 450, %s' % (o, sstep, vk, o, o, o, o))
            a('buffer_load_short_d16_hi %s, %s, %s, %s offen' % (self.Wr[k], o, self.WR, scol))
            self.wload = a('buffer_load_short_d16_hi %s, %s, %s, %s offen' % (self.Wi[k], o, self.WI, scol))
        v.release(vk, vo)
        s.release(sj, ssg, scol, sstep)
        self.srb, self.sfs, self.srb64, self.scb = s.alloc(), s.alloc(), s.alloc(), s.alloc()
        q7 = s.alloc()
        a('s_mul_i32 %s, %s, 37\ns_lshr_b32 %s, %s, 8' % (q7, self.si, q7, q7))
        a('s_mul_i32 %s, %s, 7\ns_sub_u32 %s, %s, %s' % (self.scb, q7, self.scb, self.si, self.scb))
        a('s_lshl_b32 %s, %s, 2\ns_add_u32 %s, %s, %s' % (self.srb64, self.sx, self.srb64, self.srb64, q7))
        if cfg.get('g1map', 1) == 1:
            a('s_lshr_b32 %s, %s, 1' % (self.srb, self.srb64))
            a('s_and_b32 %s, %s, 1\ns_mul_i32 %s, %s, 7\ns_add_u32 %s, %s, %s' % (self.sfs, q7, self.sfs, self.sfs, self.sfs, self.sfs, self.scb))
        else:
            a('s_lshr_b32 %s, %s, 1\ns_lshl_b32 %s, %s, 2\ns_add_u32 %s, %s, %s' % (self.srb, self.sx, self.srb, self.srb, self.srb, self.srb, q7))
            a('s_and_b32 %s, %s, 1\ns_mul_i32 %s, %s, 7\ns_add_u32 %s, %s, %s' % (self.sfs, self.sx, self.sfs, self.sfs, self.sfs, self.sfs, self.scb))
        s.release(q7)
        a('s_cmp_lt_u32 %s, 28' % self.si)
        a('s_cselect_b32 %s, %s, 0\ns_cselect_b32 %s, %s, 0' % (self.WG[2], self.WG[2], self.WU[2], self.WU[2]))
        self.vsg, self.vsu, self.sst, self.sbig = v.alloc(), v.alloc(), s.alloc(), s.alloc()
        a('v_lshrrev_b32 %s, 2, %s\nv_mul_u32_u24 %s, 3584, %s' % (t, self.l, t, t))
        a('v_and_b32 %s, 3, %s\nv_lshl_add_u32 %s, %s, 4, %s' % (self.vsg, self.l, self.vsg, self.vsg, t))
        a('v_xor_b32 %s, 32, %s' % (self.vsu, self.vsg))
        a('s_lshl_b32 %s, %s, 2\ns_add_u32 %s, %s, %s\ns_lshl_b32 %s, %s, 6' % (self.sst, self.sfs, self.sst, self.sst, self.sw, self.sst, self.sst))
        a('s_mul_i32 %s, %s, 28672' % (self.sbig, self.sw))
        self.stage_dma()
        v.release(t)
        s.release(sxo)
        self.consts(clr1)

    def stage_dma(self):
        a = self.a
        for k in range(14):
            a('s_add_u32 m0, %s, %d' % (self.sbig, BIG + 2048 * k))
            a('buffer_load_dwordx4 %s, %s, %s offen lds' % (self.vsg, self.WG, self.sst))
            a('s_add_u32 m0, m0, 1024')
            self.stg = a('buffer_load_dwordx4 %s, %s, %s offen lds' % (self.vsu, self.WU, self.sst))
            a('s_add_u32 %s, %s, %d' % (self.sst, self.sst, 16 * 3584))

    def stage_read(self, rnd):
        a, v = self.a, self.v
        if rnd == 0:
            self.vtr = v.alloc(2)
            t, u = v.alloc(), v.alloc()
            a('v_bfe_u32 %s, %s, 1, 1\nv_mul_u32_u24 %s, 1056, %s' % (t, self.l, t, t))
            a('v_bfe_u32 %s, %s, 2, 2\nv_lshl_add_u32 %s, %s, 6, %s' % (u, self.l, t, u, t))
            a('v_lshrrev_b32 %s, 5, %s\nv_lshl_add_u32 %s, %s, 9, %s' % (u, self.l, t, u, t))
            a('v_and_b32 %s, 1, %s\nv_lshl_add_u32 %s, %s, 4, %s' % (u, self.l, t, u, t))
            a('v_bfe_u32 %s, %s, 4, 1\nv_lshl_add_u32 %s, %s, 3, %s' % (u, self.l, t, u, t))
            a('v_add_u32 %s, %s, %s' % (self.vtr[0], self.sbig, t))
            a('v_xor_b32 %s, 32, %s' % (self.vtr[1], self.vtr[0]))
            v.release(t, u)
        a.wait(vm=self.stg)
        for k in range(14):
            for t in range(2):
                for e in range(2):
                    b = (t * 28 + rnd * 14 + k) * 4 + 2 * e
                    a('ds_read_b64_tr_b16 a[%d:%d], %s offset:%d' % (b, b + 1, self.vtr[t], BIG + k * 2048 + e * 256))
        if rnd == 1:
            v.release(self.vtr, self.vsg, self.vsu)

    def consts(self, clr1):
        a, v, s = self.a, self.v, self.s
        self.F64r, self.F64i = v.alloc(16), v.alloc(16)
        self.F32r, self.F32i = v.alloc(16), v.alloc(16)
        self.C2, self.S2 = v.alloc(8), v.alloc(8)
        self.C1, self.S1 = v.alloc(6), v.alloc(6)
        fn, a0, ang, c, sn, msk, g4 = [v.alloc() for _ in range(7)]
        a('v_and_b32 %s, 1, %s\nv_mul_u32_u24 %s, 0x8000, %s\nv_lshl_or_b32 %s, %s, 16, %s' % (msk, self.l, msk, msk, msk, msk, msk))
        a('v_lshlrev_b32 %s, 2, %s\nv_cvt_f32_u32 %s, %s' % (g4, self.g, g4, g4))
        a('v_lshlrev_b32 %s, 1, %s\nv_cvt_f32_u32 %s, %s\nv_add_f32 %s, 1.0, %s' % (fn, self.p, fn, fn, a0, fn))
        for j in range(1, 4):
            for e, src in enumerate((fn, a0)):
                a('v_mul_f32 %s, %s, %s' % (ang, hexf(j / 448.0), src))
                a('v_cos_f32 %s, %s\nv_sin_f32 %s, %s' % (self.C1[2 * j - 2 + e], ang, self.S1[2 * j - 2 + e], ang))
        a('v_cvt_f32_u32 %s, %s\nv_mul_f32 %s, %s, %s\nv_mul_f32 %s, %s, %s' % (fn, self.n, fn, hexf(1 / 64.0), fn, a0, fn, g4))
        for q in range(2):
            for r in range(4):
                k = 4 * q + r
                a('v_fmamk_f32 %s, %s, %s, %s' % (ang, fn, hexf(16 * q + r), a0))
                a('v_cos_f32 %s, %s\nv_sin_f32 %s, %s' % (c, ang, sn, ang))
                a('v_mul_f32 %s, %s, %s' % (ang, hexf(1 / 32.0), ang))
                a('v_cvt_pk_bf16_f32 %s, %s, %s' % (self.F64r[k], c, sn))
                a('v_cvt_pk_bf16_f32 %s, -%s, %s' % (self.F64i[k], sn, c))
                a('v_cos_f32 %s, %s\nv_sin_f32 %s, %s' % (self.C2[k], ang, self.S2[k], ang))
                a('v_xor_b32 %s, %s, %s\nv_xor_b32 %s, %s, %s' % (self.F64r[k + 8], msk, self.F64r[k], self.F64i[k + 8], msk, self.F64i[k]))
        a.wait(vm=clr1)
        a('s_barrier')
        lab = a.label('L_noarr')
        a('s_cmp_lg_u32 %s, 0\ns_cbranch_scc1 %s' % (self.sw, lab))
        t = s.alloc()
        a('s_and_b32 %s, s2, 1\ns_lshl_b32 %s, %s, 7' % (t, t, t))
        a('v_mov_b32 %s, 1\nv_mov_b32 %s, 0' % (c, sn))
        a('s_mov_b64 exec, 1')
        a('buffer_atomic_add %s, %s, %s, %s offen sc1' % (c, sn, self.DBG, t))
        a('s_mov_b64 exec, -1')
        a.nvm -= 1
        a(lab + ':')
        s.release(t)
        a('v_cvt_f32_u32 %s, %s\nv_mul_f32 %s, %s, %s\nv_mul_f32 %s, %s, %s' % (fn, self.n16, fn, hexf(1 / 32.0), fn, a0, fn, g4))
        for r in range(4):
            a('v_fmamk_f32 %s, %s, %s, %s' % (ang, fn, hexf(r), a0))
            a('v_cos_f32 %s, %s\nv_sin_f32 %s, %s' % (c, ang, sn, ang))
            a('v_cvt_pk_bf16_f32 %s, %s, %s' % (self.F32r[r], c, sn))
            a('v_cvt_pk_bf16_f32 %s, -%s, %s' % (self.F32i[r], sn, c))
            for M in (self.F32r, self.F32i):
                a('v_xor_b32 %s, %s, %s' % (M[4 + r], msk, M[r]))
                for q in range(2):
                    if r % 2: a('v_xor_b32 %s, 0x80008000, %s' % (M[8 + 4 * q + r], M[4 * q + r]))
                    else: a('v_mov_b32 %s, %s' % (M[8 + 4 * q + r], M[4 * q + r]))
        v.release(fn, a0, ang, c, sn, msk, g4)
        self.K7 = s.alloc(6, 2)
        for k in range(1, 4):
            a('s_mov_b32 %s, %s' % (self.K7[2 * k - 2], hexf(math.cos(2 * math.pi * k / 7))))
            a('s_mov_b32 %s, %s' % (self.K7[2 * k - 1], hexf(math.sin(2 * math.pi * k / 7))))

    def k7(self, m):
        m %= 7
        return (self.K7.sub(2 * m - 2, 2), 1) if m <= 3 else (self.K7.sub(2 * (7 - m) - 2, 2), -1)

    def p1(self):
        a, v, s = self.a, self.v, self.s
        vw0, vw1, vr0, vr1, t, u = [v.alloc() for _ in range(6)]
        a('v_lshrrev_b32 %s, 5, %s\ns_lshl_b32 s3, %s, 1\nv_add_u32 %s, s3, %s' % (t, self.l, self.sw, t, t))
        self.va = v.alloc()
        a('v_mov_b32 %s, %s' % (self.va, t))
        a('v_bfe_u32 %s, %s, 1, 2\nv_xor_b32 %s, %s, %s' % (u, self.p, t, t, u))
        a('v_bfe_u32 %s, %s, 3, 1\nv_mul_u32_u24 %s, 12, %s\nv_xor_b32 %s, %s, %s' % (u, self.p, u, u, t, t, u))
        a('v_lshlrev_b32 %s, 4, %s' % (t, t))
        a('v_lshrrev_b32 %s, 1, %s\nv_lshl_add_u32 %s, %s, 8, %s' % (u, self.p, t, u, t))
        a('v_and_b32 %s, 1, %s\nv_lshl_add_u32 %s, %s, 3, %s' % (u, self.p, t, u, t))
        a('v_add_u32 %s, %d, %s\nv_xor_b32 %s, 128, %s' % (vw0, L_V, t, vw1, vw0))
        a('v_xor_b32 %s, %s, %s\nv_lshlrev_b32 %s, 4, %s\nv_lshl_add_u32 %s, %s, 8, %s' % (t, self.n16, self.g, t, t, t, self.g, t))
        a('v_add_u32 %s, %d, %s\nv_xor_b32 %s, 192, %s' % (vr0, L_V, t, vr1, vr0))
        vst = v.alloc()
        a('v_lshlrev_b32 %s, 4, %s\nv_lshl_add_u32 %s, %s, 6, %s' % (t, self.g, t, self.n16, t))
        a('s_lshl_b32 s3, %s, 10\nv_add_u32 %s, s3, %s' % (self.sw, vst, t))
        a.wait(vm=self.xload)
        self.stamp('x')
        self.Xf = X = v.alloc(14)
        P = lambda R_, k: R_.sub(2 * k, 2)
        for d2 in range(7):
            a('v_lshlrev_b32 %s, 16, %s\nv_and_b32 %s, 0xffff0000, %s' % (X[2 * d2], self.xr[d2], X[2 * d2 + 1], self.xr[d2]))
        v.release(self.xr)
        T, U, RE, IM = v.alloc(6), v.alloc(6), v.alloc(8), v.alloc(6)
        sq, t0, t1 = v.alloc(2), v.alloc(2), v.alloc(2)
        for k in range(1, 4):
            self.pk('add', P(T, k - 1), P(X, k), P(X, 7 - k))
        self.pk('mul', sq, P(X, 0), P(X, 0))
        self.pk('add', P(RE, 0), P(X, 0), P(T, 0))
        for d2 in range(1, 4): self.pk('fma', sq, P(X, d2), P(X, d2), sq)
        self.pk('add', t0, P(T, 1), P(T, 2))
        for d2 in range(4, 7): self.pk('fma', sq, P(X, d2), P(X, d2), sq)
        self.pk('add', P(RE, 0), P(RE, 0), t0)
        s1, s2, mean, rs = [v.alloc() for _ in range(4)]
        a('v_add_f32 %s, %s, %s' % (s2, sq[0], sq[1]))
        a('v_add_f32 %s, %s, %s' % (s1, RE[0], RE[1]))
        for k in range(1, 4):
            self.pk('add', P(U, k - 1), P(X, k), P(X, 7 - k), neg=[0, 1])
        self.row_stats(s1, s2, t, u, mean, rs)
        for j in range(1, 4):
            for k in range(1, 4):
                c, sg = self.k7(j * k)
                self.pk('fma', P(RE, j), P(T, k - 1), c, P(X, 0) if k == 1 else P(RE, j), sel=[None, 'lo', None])
                if k == 1: self.pk('mul', P(IM, j - 1), P(U, 0), c, sel=[None, 'hi'], neg=[0, 1 if sg > 0 else 0])
                else: self.pk('fma', P(IM, j - 1), P(U, k - 1), c, P(IM, j - 1), sel=[None, 'hi', None], neg=[0, 1 if sg > 0 else 0, 0])
        for j in range(1, 4):
            self.cmul(P(RE, j), P(IM, j - 1), P(self.C1, j - 1), P(self.S1, j - 1), -1, t0, t1)
        a('v_mul_f32 %s, %s, %s' % (mean, hexf(-7.0), mean))
        a('v_mov_b32 %s, %s\nv_mov_b32 %s, %s' % (t0[0], rs, t0[1], mean))
        self.pk('add', P(RE, 0), P(RE, 0), t0, sel=[None, 'hi'])
        for j in range(4):
            self.pk('mul', P(RE, j), P(RE, j), t0, sel=[None, 'lo'])
            if j: self.pk('mul', P(IM, j - 1), P(IM, j - 1), t0, sel=[None, 'lo'])
        for j in range(4):
            o = P(T, j) if j < 3 else P(U, 0)
            for e in range(2):
                a('v_cvt_pk_bf16_f32 %s, %s, %s' % (o[e], RE[2 * j + e], IM[2 * j - 2 + e] if j else 0))
            a('ds_write_b64 %s, %s offset:%d' % (vw1 if j & 1 else vw0, o, (j >> 1) * 4096))
        a.wait(vm=self.clr2)
        a.wait_lg0()
        a('s_barrier')
        v.release(T, U, RE, IM, sq, t0, t1, s1, s2, mean, rs, vw0, vw1)
        A = v.alloc(32, 4); acc = v.alloc(16, 4); o = v.alloc(8, 4)
        rd = {}
        for Pp in range(2):
            for q in range(4):
                rd[Pp, q] = a('ds_read_b128 %s, %s offset:%d' % (A.sub(16 * Pp + 4 * q, 4), vr1 if q & 1 else vr0, Pp * 4096 + q * 1024))
        for Pp in range(2):
            for q in range(4):
                a.wait(lg=rd[Pp, q])
                for c, M in enumerate((self.F64r, self.F64i)):
                    d = acc.sub(8 * Pp + 4 * c, 4)
                    a('v_mfma_f32_16x16x32_bf16 %s, %s, %s, %s' % (d, A.sub(16 * Pp + 4 * q, 4), M.sub(4 * q, 4), d if q else 0))
        a('v_add_u32 %s, 4096, %s' % (t, vst))
        for Pp in range(2):
            for r in range(4):
                a('v_cvt_pk_bf16_f32 %s, %s, %s' % (o[4 * Pp + r], acc[8 * Pp + r], acc[8 * Pp + 4 + r]))
            a('buffer_store_dwordx4 %s, %s, %s, %s offen sc1' % (o.sub(4 * Pp, 4), t if Pp else vst, self.WS, self.sY1))
        self.stamp('p1')
        v.release(A, acc, o, vr0, vr1, vst, t, u)

    def p2(self):
        a, v, s = self.a, self.v, self.s
        cnt, t, u = v.alloc(), v.alloc(), v.alloc()
        a('v_and_b32 %s, 1, %s\nv_lshlrev_b32 %s, 7, %s' % (u, self.l, u, u))
        cl = a('buffer_load_dword %s, %s, %s, 0 offen sc1' % (cnt, u, self.DBG))
        self.stage_read(0)
        vg0, vg1, sg = v.alloc(), v.alloc(), s.alloc()
        a('v_lshrrev_b32 %s, 1, %s\nv_lshl_add_u32 %s, %s, 5, %s\nv_mul_u32_u24 %s, %d, %s' % (t, self.g, t, t, self.n16, t, YS, t))
        a('v_and_b32 %s, 1, %s\nv_lshl_add_u32 %s, %s, 4, %s' % (vg0, self.g, vg0, vg0, t))
        a('v_add_u32 %s, %d, %s' % (vg1, 16 * YS, vg0))
        a('s_lshr_b32 %s, %s, 2\ns_lshl_b32 %s, %s, 6' % (sg, self.sreg, sg, sg))
        a('s_and_b32 s3, %s, 2\ns_lshl_b32 s3, s3, 11\ns_add_u32 %s, %s, s3' % (self.sreg, sg, sg))
        a('s_and_b32 s3, %s, 1\ns_lshl_b32 s3, s3, 5\ns_add_u32 %s, %s, s3' % (self.sreg, sg, sg))
        a('s_mul_i32 s3, %s, %d\ns_add_u32 %s, %s, s3' % (self.sw, 64 * YS, sg, sg))
        sm = s.alloc()
        a('s_lshl_b32 %s, %s, 10\ns_add_u32 %s, %s, %d' % (sm, self.sw, sm, sm, L_Y1G))
        vlr, vtw, vst = v.alloc(), v.alloc(), v.alloc()
        a('v_add_u32 %s, %d, %s' % (vlr, L_Y1G, self.l16))
        a('v_lshrrev_b32 %s, 2, %s\nv_lshlrev_b32 %s, 8, %s\nv_lshl_add_u32 %s, %s, 6, %s' % (t, self.n16, t, t, t, self.g, t))
        a('v_and_b32 %s, 3, %s\nv_lshl_add_u32 %s, %s, 2, %s' % (vtw, self.l, t, vtw, t))
        a('s_lshl_b32 s3, %s, 10\ns_add_u32 s3, s3, %d\nv_add_u32 %s, s3, %s' % (self.sw, L_T, vtw, t))
        a('v_lshrrev_b32 %s, 1, %s\nv_lshlrev_b32 %s, 10, %s\nv_lshl_add_u32 %s, %s, 5, %s' % (t, self.g, t, t, t, self.n16, t))
        a('v_and_b32 %s, 1, %s\nv_lshl_add_u32 %s, %s, 4, %s' % (vst, self.g, t, vst, t))
        a('s_lshl_b32 s3, %s, 11\nv_add_u32 %s, s3, %s' % (self.sw, vst, t))
        for k in range(4):
            self.pk('mul', self.Wr.sub(2 * k, 2), self.Wr.sub(2 * k, 2), self.scs, sel=[None, 'lo'])
            self.pk('mul', self.Wi.sub(2 * k, 2), self.Wi.sub(2 * k, 2), self.scs, sel=[None, 'hi'])
        self.spin = s.alloc()
        a('s_mov_b32 %s, %d' % (self.spin, SPIN))
        a.wait_vm0()
        l0, l1 = a.label('L_clr'), a.label('L_clrok')
        a(l0 + ':')
        a('v_cmp_gt_u32 vcc, 128, %s\ns_cbranch_vccz %s' % (cnt, l1))
        self.spin_out(l1)
        a('buffer_load_dword %s, %s, %s, 0 offen sc1' % (cnt, u, self.DBG))
        a.wait_vm0()
        a('s_branch %s' % l0)
        a(l1 + ':')
        self.stamp('drain1')

        def gather():
            a('s_mov_b32 m0, %s' % sm)
            a('buffer_load_dwordx4 %s, %s, %s offen sc1 lds' % (vg0, self.WS, sg))
            a('s_add_u32 m0, %s, 4096' % sm)
            return a('buffer_load_dwordx4 %s, %s, %s offen sc1 lds' % (vg1, self.WS, sg))
        gl = gather()
        a('s_mov_b32 %s, %d' % (self.spin, SPIN))
        a.wait_lg0()
        self.stage_dma()
        a.wait(vm=gl)
        lr, lf, lo = a.label('L_p2'), a.label('L_p2fail'), a.label('L_p2ok')
        a(lr + ':')
        a('s_barrier')
        A = v.alloc(32, 4); D1 = v.alloc(16, 4); B = v.alloc(8, 4); t0, t1 = v.alloc(2), v.alloc(2)
        rd = {}
        for tt in range(2):
            for q in range(4):
                rd[tt, q] = a('ds_read_b128 %s, %s offset:%d' % (A.sub(16 * tt + 4 * q, 4), vlr, tt * 4096 + q * 1024))
        for tt in range(2):
            for q in range(4):
                a.wait(lg=rd[tt, q])
                f = A.sub(16 * tt + 4 * q, 4)
                for c, M in enumerate((self.F64r, self.F64i)):
                    d = D1.sub(8 * tt + 4 * c, 4)
                    a('v_mfma_f32_16x16x32_bf16 %s, %s, %s, %s' % (d, f, M.sub(4 * q, 4), d if q else 0))
                self.sentinel_max(cnt, [f[k] for k in range(4)], tt == 0 and q == 0)
        a('v_cmp_eq_u32 vcc, -1, %s\ns_cbranch_vccnz %s' % (cnt, lf))
        a(lo + ':')
        self.stamp('g1')
        self.tail = getattr(self, 'tail', [])

        def fail2():
            a(lf + ':')
            self.spin_out(lo)
            a('s_barrier')
            gather()
            a.wait_vm0()
            a('s_branch %s' % lr)
        self.tail.append(fail2)

        def twiddle(Dr, Di, C, Sn, sign, swap):
            for tt in range(2):
                for h in range(2):
                    k = 4 * tt + 2 * h
                    re, im = Dr(tt).sub(2 * h, 2), Di(tt).sub(2 * h, 2)
                    self.cmul(re, im, C.sub(k, 2), Sn.sub(k, 2), sign, t0, t1)
                    for e in range(2):
                        x, y = (im[e], re[e]) if swap else (re[e], im[e])
                        a('v_cvt_pk_bf16_f32 %s, %s, %s' % (B[k + e], x, y))

        def f32stage(Dd):
            for tt in range(2):
                for c, M in enumerate((self.F32r, self.F32i)):
                    d = Dd.sub(8 * tt + 4 * c, 4)
                    for q in range(2):
                        a('v_mfma_f32_16x16x32_bf16 %s, %s, %s, %s' % (d, M.sub(8 * tt + 4 * q, 4), B.sub(4 * q, 4), d if q else 0))
        R0 = lambda Dd: (lambda tt: Dd.sub(8 * tt, 4))
        R1 = lambda Dd: (lambda tt: Dd.sub(8 * tt + 4, 4))
        D2 = A.sub(0, 16)
        twiddle(R0(D1), R1(D1), self.C2, self.S2, -1, False)
        f32stage(D2)
        twiddle(R0(D2), R1(D2), self.Wr, self.Wi, +1, True)
        f32stage(D1)
        twiddle(R1(D1), R0(D1), self.C2, self.S2, +1, True)
        for tt in range(2):
            for r in range(4):
                a('ds_write_b32 %s, %s offset:%d' % (vtw, B[4 * tt + r], tt * 4096 + r * 16))
        a.wait_lg0()
        a('s_barrier')
        for tt in range(2):
            for q in range(4):
                rd[tt, q] = a('ds_read_b128 %s, %s offset:%d' % (A.sub(16 * tt + 4 * q, 4), vlr, L_T - L_Y1G + tt * 4096 + q * 1024))
        for tt in range(2):
            for q in range(4):
                a.wait(lg=rd[tt, q])
                for c, M in enumerate((self.F64r, self.F64i)):
                    d = D1.sub(8 * tt + 4 * c, 4)
                    a('v_mfma_f32_16x16x32_bf16 %s, %s, %s, %s' % (d, M.sub(4 * q, 4), A.sub(16 * tt + 4 * q, 4), d if q else 0))
        for tt in range(2):
            im, re = D1.sub(8 * tt, 4), D1.sub(8 * tt + 4, 4)
            o = B.sub(4 * tt, 4)
            a('v_cvt_pk_bf16_f32 %s, %s, %s\nv_cvt_pk_bf16_f32 %s, %s, %s' % (o[0], re[0], re[1], o[1], re[2], re[3]))
            a('v_cvt_pk_bf16_f32 %s, %s, %s\nv_cvt_pk_bf16_f32 %s, %s, %s' % (o[2], im[0], im[1], o[3], im[2], im[3]))
            a('buffer_store_dwordx4 %s, %s, %s, %s offen offset:%d sc1' % (o, vst, self.WS, self.sY2, 512 * tt))
        self.stamp('p2')
        v.release(A, D1, B, t0, t1, vlr, vtw, vst, t, u, self.Wr, self.Wi, self.F32r, self.F32i, self.C2, self.S2)
        v.release(vg0, vg1, cnt); s.release(sg, sm)

    def p3(self):
        a, v, s = self.a, self.v, self.s
        self.stage_read(1)
        t, u, cnt = v.alloc(), v.alloc(), v.alloc()
        vg0, vg1, sg, sm = v.alloc(), v.alloc(), s.alloc(), s.alloc()
        a('v_bfe_u32 %s, %s, 3, 2\nv_lshlrev_b32 %s, 4, %s' % (t, self.l, t, t))
        a('v_lshrrev_b32 %s, 5, %s\nv_lshl_add_u32 %s, %s, 3, %s' % (u, self.l, t, u, t))
        a('v_bfe_u32 %s, %s, 2, 1\nv_lshl_add_u32 %s, %s, 2, %s' % (u, self.l, t, u, t))
        a('v_bfe_u32 %s, %s, 1, 1\nv_add_u32 %s, %s, %s\nv_mul_u32_u24 %s, %d, %s' % (u, self.l, t, t, u, t, YS, t))
        a('v_and_b32 %s, 1, %s\nv_lshl_add_u32 %s, %s, 4, %s' % (u, self.l, vg0, u, t))
        a('v_add_u32 %s, %d, %s' % (vg1, 2 * YS, vg0))
        a('s_mul_i32 %s, %s, %d\ns_lshl_b32 s3, %s, 5\ns_add_u32 %s, %s, s3\ns_add_u32 %s, %s, %d'
          % (sg, self.sw, 64 * YS, self.sreg, sg, sg, sg, sg, Y2_OFF))
        a('s_lshl_b32 %s, %s, 10\ns_add_u32 %s, %s, %d' % (sm, self.sw, sm, sm, L_Y2G))
        vtr, vuw, vur, vzw, vhw, vzr, vhr, vhs = [v.alloc() for _ in range(8)]
        a('v_lshlrev_b32 %s, 7, %s\nv_bfe_u32 %s, %s, 3, 1\nv_lshl_add_u32 %s, %s, 6, %s' % (t, self.g, u, self.l, t, u, t))
        a('v_and_b32 %s, 3, %s\nv_lshl_add_u32 %s, %s, 4, %s' % (u, self.l, t, u, t))
        a('v_bfe_u32 %s, %s, 2, 1\nv_xor_b32 %s, 1, %s\nv_lshl_add_u32 %s, %s, 3, %s' % (u, self.l, u, u, t, u, t))
        a('v_add_u32 %s, %d, %s' % (vtr, L_Y2G, t))
        a('v_lshrrev_b32 %s, 3, %s\nv_lshlrev_b32 %s, 3, %s\nv_add_u32 %s, %s, %s\nv_mul_u32_u24 %s, %d, %s'
          % (t, self.n16, t, t, t, t, self.n16, t, UROW, t))
        a('v_lshl_add_u32 %s, %s, 4, %s\ns_lshl_b32 s3, %s, 6\ns_add_u32 s3, s3, %d\nv_add_u32 %s, s3, %s' % (t, self.g, t, self.sw, L_U, vuw, t))
        a('v_mul_u32_u24 %s, %d, %s\nv_lshl_add_u32 %s, %s, 3, %s\nv_add_u32 %s, %d, %s' % (t, UROW, self.va, t, self.p, t, vur, L_U, t))
        a('v_lshrrev_b32 %s, 2, %s\nv_xor_b32 %s, %s, %s\nv_lshlrev_b32 %s, 4, %s\nv_lshl_add_u32 %s, %s, 7, %s'
          % (t, self.p, u, t, self.va, u, u, t, t, u))
        a('v_and_b32 %s, 3, %s\nv_lshl_add_u32 %s, %s, 2, %s\nv_add_u32 %s, %d, %s' % (u, self.p, t, u, t, vzw, L_ZB, t))
        a('v_mul_u32_u24 %s, 896, %s\nv_lshl_add_u32 %s, %s, 2, %s\nv_add_u32 %s, %d, %s' % (t, self.va, t, self.p, t, vhw, L_HB, t))
        a('v_lshrrev_b32 %s, 3, v0\nv_xor_b32 %s, %s, v0\nv_and_b32 %s, 7, %s\nv_lshlrev_b32 %s, 4, %s\nv_lshl_add_u32 %s, %s, 7, %s'
          % (t, u, t, u, u, u, u, t, t, u))
        a('v_add_u32 %s, %d, %s' % (vzr, L_ZB, t))
        a('s_mul_i32 s3, %s, 1792\ns_add_u32 s3, s3, %d\nv_add_u32 %s, s3, %s' % (self.sw, L_HB, vhr, self.l16))
        a('v_mov_b32 %s, %d\nv_cmp_gt_u32 vcc, 56, %s\nv_cndmask_b32 %s, %s, %s, vcc' % (t, OOB, self.l, vhs, t, self.l16))
        sh = s.alloc()
        a('s_lshl_b32 %s, %s, 2\ns_add_u32 %s, %s, %s\ns_mul_i32 %s, %s, 1792\ns_add_u32 %s, %s, %d'
          % (sh, self.sreg, sh, sh, self.sw, sh, sh, sh, sh, HR_OFF))
        a.wait_vm0()
        self.stamp('drain2')

        def gather():
            a('s_mov_b32 m0, %s' % sm)
            a('buffer_load_dwordx4 %s, %s, %s offen sc1 lds' % (vg0, self.WS, sg))
            a('s_add_u32 m0, %s, 4096' % sm)
            return a('buffer_load_dwordx4 %s, %s, %s offen sc1 lds' % (vg1, self.WS, sg))
        gather()
        a('s_mov_b32 %s, %d' % (self.spin, SPIN))
        a.wait_vm0()
        lr, lf, lo = a.label('L_p3'), a.label('L_p3fail'), a.label('L_p3ok')
        a(lr + ':')
        a('s_barrier')
        A = v.alloc(32, 4); acc = v.alloc(16, 4)
        rd = {}
        for Pp in range(2):
            for q in range(4):
                for e in range(2):
                    rd[Pp, q] = a('ds_read_b64_tr_b16 %s, %s offset:%d' % (A.sub(16 * Pp + 4 * q + 2 * e, 2), vtr, (Pp * 4 + q) * 1024 + e * 512))
        for Pp in range(2):
            for q in range(4):
                a.wait(lg=rd[Pp, q])
                f = A.sub(16 * Pp + 4 * q, 4)
                for c, M in enumerate((self.F64r, self.F64i)):
                    d = acc.sub(8 * Pp + 4 * c, 4)
                    a('v_mfma_f32_16x16x32_bf16 %s, %s, %s, %s' % (d, M.sub(4 * q, 4), f, d if q else 0))
                self.sentinel_max(cnt, [f[k] for k in range(4)], Pp == 0 and q == 0)
        a('v_cmp_eq_u32 vcc, -1, %s\ns_cbranch_vccnz %s' % (cnt, lf))
        a(lo + ':')
        self.stamp('g2')

        def fail3():
            a(lf + ':')
            self.spin_out(lo)
            a('s_barrier')
            gather()
            a.wait_vm0()
            a('s_branch %s' % lr)
        self.tail.append(fail3)
        for Pp in range(2):
            for c in range(2):
                a('ds_write_b128 %s, %s offset:%d' % (vuw, acc.sub(8 * Pp + 4 * (1 - c), 4), (Pp * 32 + c * 8) * UROW))
        a.wait_lg0()
        a('s_barrier')
        v.release(A, acc, self.F64r, self.F64i)
        P = lambda R_, k: R_.sub(2 * k, 2)
        RE, IM, Aa, Bb, Y = v.alloc(8), v.alloc(6), v.alloc(6), v.alloc(6), v.alloc(14)
        t0, t1 = v.alloc(2), v.alloc(2)
        rd = {}
        for j in (1, 2, 3, 0):
            rd[j] = a('ds_read_b64 %s, %s offset:%d' % (P(RE, j), vur, j * 16 * UROW))
            if j: rd[j] = a('ds_read_b64 %s, %s offset:%d' % (P(IM, j - 1), vur, (j * 16 + 8) * UROW))
        for j in range(1, 4):
            a.wait(lg=rd[j])
            self.cmul(P(RE, j), P(IM, j - 1), P(self.C1, j - 1), P(self.S1, j - 1), +1, t0, t1)
        a.wait(lg=rd[0])
        X = self.Xf
        for d in range(1, 4):
            for j in range(1, 4):
                c, sg_ = self.k7(j * d)
                self.pk('fma', P(Aa, d - 1), P(RE, j), c, P(RE, 0) if j == 1 else P(Aa, d - 1), sel=[None, 'lo', None])
                if j == 1: self.pk('mul', P(Bb, d - 1), P(IM, 0), c, sel=[None, 'hi'], neg=[0, 0 if sg_ > 0 else 1])
                else: self.pk('fma', P(Bb, d - 1), P(IM, j - 1), c, P(Bb, d - 1), sel=[None, 'hi', None], neg=[0, 0 if sg_ > 0 else 1, 0])
        self.pk('add', t0, P(RE, 0), P(RE, 1))
        self.pk('add', t1, P(RE, 2), P(RE, 3))
        self.pk('add', t0, t0, P(X, 0))
        self.pk('add', P(Y, 0), t0, t1)
        for d in range(1, 4):
            self.pk('add', t0, P(Aa, d - 1), P(X, d))
            self.pk('add', t1, P(Aa, d - 1), P(X, 7 - d))
            self.pk('add', P(Y, d), t0, P(Bb, d - 1), neg=[0, 1])
            self.pk('add', P(Y, 7 - d), t1, P(Bb, d - 1))
        sq, sm_ = P(Aa, 0), P(Aa, 1)
        self.pk('mul', sq, P(Y, 0), P(Y, 0))
        self.pk('add', sm_, P(Y, 0), P(Y, 1))
        for d in range(1, 7):
            self.pk('fma', sq, P(Y, d), P(Y, d), sq)
            if d > 1: self.pk('add', sm_, sm_, P(Y, d))
        s1, s2, mean = Bb[0], Bb[1], Bb[2]
        a('v_add_f32 %s, %s, %s\nv_add_f32 %s, %s, %s' % (s1, sm_[0], sm_[1], s2, sq[0], sq[1]))
        for d in range(7):
            a('v_cvt_pk_bf16_f32 %s, %s, %s' % (X[d], Y[2 * d], Y[2 * d + 1]))
            a('ds_write_b32 %s, %s offset:%d' % (vhw, X[d], d * 128))
        self.row_stats(s1, s2, t, u, mean, t0[0])
        a('v_mul_f32 %s, -%s, %s' % (t0[1], mean, t0[0]))
        for d in range(7):
            self.pk('fma', P(Y, d), P(Y, d), t0, t0, sel=[None, 'lo', 'hi'])
            a('v_cvt_pk_bf16_f32 %s, %s, %s' % (X[7 + d], Y[2 * d], Y[2 * d + 1]))
            a('ds_write_b32 %s, %s offset:%d' % (vzw, X[7 + d], d * 1024))
        a.wait_lg0()
        a('s_barrier')
        o = v.alloc(16, 4)
        r0 = a('ds_read_b128 %s, %s' % (o.sub(0, 4), vzr))
        r1 = a('ds_read_b128 %s, %s offset:4096' % (o.sub(4, 4), vzr))
        r2 = a('ds_read_b128 %s, %s' % (o.sub(8, 4), vhr))
        r3 = a('ds_read_b128 %s, %s offset:896' % (o.sub(12, 4), vhr))
        a.wait(lg=r0)
        a('buffer_store_dwordx4 %s, %s, %s, %s offen sc1' % (o.sub(0, 4), self.vz0, self.WS, self.sZ))
        a.wait(lg=r1)
        a('buffer_store_dwordx4 %s, %s, %s, %s offen sc1' % (o.sub(4, 4), self.vz1, self.WS, self.sZ))
        a.wait(lg=r2)
        a('buffer_store_dwordx4 %s, %s, %s, %s offen sc1' % (o.sub(8, 4), vhs, self.WS, sh))
        a.wait(lg=r3)
        a('buffer_store_dwordx4 %s, %s, %s, %s offen offset:896 sc1' % (o.sub(12, 4), vhs, self.WS, sh))
        self.stamp('p3')
        v.release(RE, IM, Aa, Bb, Y, t0, t1, X, self.C1, self.S1, o, t, u, vtr, vuw, vur, vzw, vhw, vzr, vhr, vhs,
                  self.vz0, self.vz1, self.va, self.n, self.t16)
        s.release(sh, self.K7, self.scs)
        v.release(vg0, vg1, cnt, self.ones, self.n16, self.g); s.release(sg, sm)
        if hasattr(self, 'junk'): v.release(self.junk)

    def flag_store(self, soff, zero):
        a = self.a
        a('s_mov_b64 exec, 1')
        i = a('buffer_store_dword %s, %s, %s, %s offen sc1' % (zero, zero, self.WS, soff))
        a('s_mov_b64 exec, -1')
        return i

    def gemms(self):
        a, v, s = self.a, self.v, self.s
        cfg = self.cfg
        zero = v.alloc(); t, u = v.alloc(), v.alloc()
        a('v_mov_b32 %s, 0' % zero)
        srf = s.alloc()
        a('s_lshl_b32 %s, %s, 4\ns_add_u32 %s, %s, %d' % (srf, self.sreg, srf, srf, FL_OFF + RFL))
        sA = s.alloc()
        a('s_lshl_b32 %s, %s, 2\ns_add_u32 %s, %s, %s\ns_mul_i32 %s, %s, 28672\ns_add_u32 %s, %s, %d'
          % (sA, self.srb, sA, sA, self.sw, sA, sA, sA, sA, Z2_OFF))
        vz0, vz1, vown = v.alloc(), v.alloc(), v.alloc()
        a('v_add_u32 %s, %d, %s\nv_add_u32 %s, %d, %s\nv_add_u32 %s, %s, %s' % (vz0, BIG, self.l16, vz1, BIG + 57344, self.l16, vown, self.sbig, self.l16))
        vd0, vd1, sring, sdn = v.alloc(), v.alloc(), s.alloc(), s.alloc()
        a('v_lshrrev_b32 %s, 3, %s\nv_mul_u32_u24 %s, 896, %s' % (t, self.l, t, t))
        a('v_bfe_u32 %s, %s, 4, 1\nv_lshlrev_b32 %s, 2, %s\nv_xor_b32 %s, %s, %s\nv_and_b32 %s, 7, %s' % (u, self.l, u, u, u, u, self.l, u, u))
        a('v_lshl_add_u32 %s, %s, 4, %s\nv_add_u32 %s, 7168, %s' % (vd0, u, t, vd1, vd0))
        a('s_mul_i32 %s, %s, 12288\ns_add_u32 %s, %s, %d' % (sring, self.sw, sring, sring, FFT))
        a('s_mul_i32 %s, %s, %d\ns_lshl_b32 s3, %s, 7\ns_add_u32 %s, %s, s3' % (sdn, self.sw, 32 * 896, self.scb, sdn, sdn))
        vdt = v.alloc(2)
        a('v_lshrrev_b32 %s, 5, %s\nv_lshlrev_b32 %s, 10, %s' % (t, self.l, t, t))
        a('v_bfe_u32 %s, %s, 2, 2\nv_lshl_add_u32 %s, %s, 7, %s' % (u, self.l, t, u, t))
        a('v_bfe_u32 %s, %s, 3, 1\ns_and_b32 s3, %s, 1\nv_xor_b32 %s, s3, %s\nv_lshl_add_u32 %s, %s, 6, %s' % (u, self.l, self.sw, u, u, t, u, t))
        a('v_and_b32 %s, 1, %s\nv_lshl_add_u32 %s, %s, 5, %s' % (u, self.l, t, u, t))
        a('v_bfe_u32 %s, %s, 4, 1\nv_lshl_add_u32 %s, %s, 4, %s' % (u, self.l, t, u, t))
        a('v_bfe_u32 %s, %s, 1, 1\nv_lshl_add_u32 %s, %s, 3, %s' % (u, self.l, t, u, t))
        a('v_add_u32 %s, %s, %s\nv_xor_b32 %s, 64, %s' % (vdt[0], sring, t, vdt[1], vdt[0]))
        sH, sHf = s.alloc(), s.alloc()
        a('s_mul_i32 %s, %s, 448\ns_mul_i32 s3, %s, 28\ns_add_u32 %s, %s, s3\ns_add_u32 %s, %s, %s\ns_lshl_b32 %s, %s, 10\ns_add_u32 %s, %s, %d'
          % (sH, self.srb, self.sw, sH, sH, sH, sH, self.sfs, sH, sH, sH, sH, HH_OFF))
        a('s_lshl_b32 %s, %s, 2\ns_add_u32 %s, %s, %s\ns_lshl_b32 %s, %s, 9\ns_lshl_b32 s3, %s, 4\ns_add_u32 %s, %s, s3\ns_add_u32 %s, %s, %d'
          % (sHf, self.srb, sHf, sHf, self.sw, sHf, sHf, self.sfs, sHf, sHf, sHf, sHf, FL_OFF + HFL))
        a.wait_vm0()
        self.stamp('drain3')
        lidle = a.label('L_idle')
        a('s_cmp_ge_u32 %s, 28\ns_cbranch_scc1 %s' % (self.si, lidle))

        def idle():
            a(lidle + ':')
            a('s_barrier')
            a('s_cmp_lg_u32 %s, 0\ns_cbranch_scc1 L_fin' % self.sw)
            self.flag_store(srf, zero)
            a('s_branch L_fin')
        self.tail.append(idle)

        CH = 4; NCH = 7
        def a_dma(c):
            a('s_add_u32 m0, %s, %d\ns_add_u32 s3, %s, %d' % (self.sbig, BIG + c * 4096, sA, c * 4096))
            for k in range(CH):
                i = a('buffer_load_dwordx4 %s, %s, s3 offen offset:%d sc1 lds' % (self.l16, self.WS, k * 1024))
            return i
        chk = v.alloc()
        vh = v.alloc(2); vpf, vpr, pf, pr = [v.alloc() for _ in range(4)]
        vt = v.alloc(16, 4)
        adma = {}
        l0 = a.label('L_a0')
        a(l0 + ':')
        for c in range(NCH): adma[c] = a_dma(c)

        def verify_read(c):
            a.wait(vm=adma[c])
            return [a('ds_read_b128 %s, %s offset:%d' % (vt.sub(4 * k, 4), vown, BIG + c * 4096 + k * 1024)) for k in range(CH)][-1]

        def verify_ops(c):
            lf, lo = a.label('L_afail'), a.label('L_aok')
            ops = []
            for k in range(CH):
                ops.append(lambda k=k: self.sentinel_max(chk, [vt[4 * k + e] for e in range(4)], k == 0))
            def fin():
                a('v_cmp_eq_u32 vcc, -1, %s\ns_cbranch_vccnz %s' % (chk, lf))
                a(lo + ':')
                a('s_barrier')
            ops.append(fin)
            def fail():
                a(lf + ':')
                self.spin_out(lo)
                if c == 0:
                    a.wait_vm0()
                    a('s_branch %s' % l0)
                    return
                a_dma(c)
                a.wait_vm0()
                for k in range(CH): a('ds_read_b128 %s, %s offset:%d' % (vt.sub(4 * k, 4), vown, BIG + c * 4096 + k * 1024))
                a.wait_lg0()
                self.sentinel_max(chk, [vt[e] for e in range(16)], True)
                a('v_cmp_eq_u32 vcc, -1, %s\ns_cbranch_vccnz %s\ns_branch %s' % (chk, lf, lo))
            self.tail.append(fail)
            return ops
        r = verify_read(0)
        a.wait(lg=r)
        for op in verify_ops(0): op()
        self.stamp('a0')
        lab = a.label('L_nohf')
        a('s_cmp_lg_u32 %s, 0\ns_cbranch_scc1 %s' % (self.sw, lab))
        self.flag_store(srf, zero)
        a.nvm -= 1
        a(lab + ':')

        accA, accB, zf = v.alloc(64, 4), v.alloc(64, 4), v.alloc(32, 4)
        zrd = {}
        def zread(sg, rt):
            ks = sg % 28
            off = rt * 28672 + ks * 1024
            base = vz0
            if rt >= 2: base, off = vz1, off - 57344
            zrd[sg, rt] = a('ds_read_b128 %s, %s offset:%d' % (zf.sub(16 * (sg % 2) + 4 * rt, 4), base, off))
        for rt in range(4): zread(0, rt)

        fill = {}
        def at(sg, rt, fn): fill.setdefault((sg, rt), []).append(fn)
        vr = {}
        for c in range(1, NCH):
            b = 4 * (c - 1)
            at(b, 0, lambda c=c: vr.__setitem__(c, verify_read(c)))
            ops = verify_ops(c)
            at(b + 1, 0, lambda c=c: a.wait(lg=vr[c]))
            for k in range(CH): at(b + 1, k, ops[k])
            at(b + 2, 3, ops[CH])
        s_tr = lambda n: max(2 * n + 2, 14 + n)
        ddma, dtr = {}, {}
        def d_dma(n):
            tt, fs = n // 14, n % 14
            if n >= 6: a.wait(lg=dtr[n - 6])
            a('s_add_u32 m0, %s, %d\ns_add_u32 s3, %s, %d' % (sring, (n % 6) * 2048, sdn, (128 * fs + 16 * tt) * 896))
            a('buffer_load_dwordx4 %s, %s, s3 offen lds' % (vd0, self.WD))
            a('s_add_u32 m0, m0, 1024')
            ddma[n] = a('buffer_load_dwordx4 %s, %s, s3 offen lds' % (vd1, self.WD))
        def d_tr(n, ct):
            if ct == 0: a.wait(vm=ddma[n])
            for e in range(2):
                b = 8 * n + 4 * ct + 2 * e
                dtr[n] = a('ds_read_b64_tr_b16 a[%d:%d], %s offset:%d' % (b, b + 1, vdt[ct], (n % 6) * 2048 + e * 512))
        late = []
        for n in range(28):
            sd = n if n < 6 else s_tr(n - 6) + 1
            at(sd, 2, lambda n=n: d_dma(n))
            for ct in range(2):
                if s_tr(n) < 56: at(s_tr(n), ct, lambda n=n, ct=ct: d_tr(n, ct))
                else: late.append(lambda n=n, ct=ct: d_tr(n, ct))
        hst = {}
        def epi_ops(acc, rt, tt):
            x = acc.sub(16 * rt, 16); ops = []
            for h in range(2):
                for r in range(4):
                    ops.append(lambda h=h, r=r: a('v_mul_f32 %s, %s, %s' % (x[8 * h + r], x[8 * h + r], x[8 * h + 4 + r])))
            for k in range(4):
                b = 8 * (k // 2) + 2 * (k % 2)
                ops.append(lambda k=k, b=b: a('v_cvt_pk_bf16_f32 %s, %s, %s' % (x[4 + k], x[b], x[b + 1])))
            def st():
                a('s_add_u32 s3, %s, %d' % (sH, rt * 112 * 1024 + tt * 14336))
                hst[tt, rt] = a('buffer_store_dwordx4 %s, %s, %s, s3 offen sc1' % (x.sub(4, 4), self.l16, self.WS))
            ops.append(st)
            return ops
        for rt in range(4):
            ops = epi_ops(accA, rt, 0)
            for k, op in enumerate(ops): at(29 + rt, min(k // 3, 3), op)
        def hflag0():
            a.wait(vm=hst[0, 3])
            self.flag_store(sHf, zero)
        at(cfg.get('hf0', 41), 3, hflag0)
        sHl, sPf, sPr = s.alloc(), s.alloc(), s.alloc()
        def g2setup():
            a('s_mul_i32 %s, %s, 224\ns_mul_i32 s3, %s, 28\ns_add_u32 %s, %s, s3\ns_lshl_b32 %s, %s, 10\ns_add_u32 %s, %s, %d'
              % (sHl, self.srb64, self.sw, sHl, sHl, sHl, sHl, sHl, sHl, HH_OFF))
            a('s_lshr_b32 s3, %s, 1\ns_mul_i32 s3, s3, 114688\nv_add_u32 %s, s3, %s' % (self.sw, vh[0], self.l16))
            a('s_sub_u32 s3, 114688, s3\nv_add_u32 %s, s3, %s' % (vh[1], self.l16))
        def g2setup2():
            a('s_lshr_b32 %s, %s, 1\ns_lshl_b32 %s, %s, 2\ns_add_u32 %s, %s, %s\ns_lshl_b32 %s, %s, 9\ns_add_u32 %s, %s, %d'
              % (sPf, self.srb64, sPf, sPf, sPf, sPf, self.sw, sPf, sPf, sPf, sPf, FL_OFF + HFL))
            a('s_lshl_b32 %s, %s, 7\ns_add_u32 %s, %s, %d' % (sPr, self.srb64, sPr, sPr, FL_OFF + RFL))
            a('v_min_u32 %s, 13, %s\nv_lshlrev_b32 %s, 4, %s' % (vpf, self.l, vpf, vpf))
            a('v_and_b32 %s, 7, %s\nv_lshlrev_b32 %s, 4, %s' % (vpr, self.l, vpr, vpr))
        at(34, 1, g2setup); at(35, 1, g2setup2)
        pl = {}
        def poll_issue():
            a('buffer_load_dword %s, %s, %s, %s offen sc1' % (pr, vpr, self.WS, sPr))
            pl[0] = a('buffer_load_dword %s, %s, %s, %s offen sc1' % (pf, vpf, self.WS, sPf))
        def poll_check0():
            lf, lo = a.label('L_hfail'), a.label('L_hok')
            a.wait(vm=pl[0])
            a('v_max_u32 %s, %s, %s\nv_cmp_eq_u32 vcc, -1, %s\ns_cbranch_vccnz %s' % (pf, pf, pr, pf, lf))
            a(lo + ':')
            def fail():
                a(lf + ':')
                self.spin_out(lo)
                poll_issue()
                a.wait_vm0()
                a('v_max_u32 %s, %s, %s\nv_cmp_eq_u32 vcc, -1, %s\ns_cbranch_vccnz %s\ns_branch %s' % (pf, pf, pr, pf, lf, lo))
            self.tail.append(fail)
        p0 = cfg.get('hp0', 47)
        at(p0, 3, poll_issue); at(p0 + 4, 3, poll_check0)
        v.release(t, u)
        early = v.alloc(4 * cfg.get('early', 13), 4)
        slots = [early.sub(4 * k, 4) for k in range(early.n // 4)] + [vt.sub(4 * k, 4) for k in range(4)]
        nearly = len(slots)
        slots += [zf.sub(4 * k, 4) for k in range(8)]
        hld, hslot = {}, {}
        def h_load(n, rt, slot):
            if (n % 4 == 0 and rt == 0) or h_load.force:
                a('s_add_u32 %s, %s, %d' % (h_load.s, sHl, (n // 4) * 4096)); h_load.force = False
            hslot[n, rt] = slot
            hld[n, rt] = a('buffer_load_dwordx4 %s, %s, %s, %s offen offset:%d sc1' % (slot, vh[rt], self.WS, h_load.s, (n % 4) * 1024))
        h_load.s = s.alloc(); h_load.force = True
        order = [(n, rt) for n in range(28) for rt in range(2)]
        gaps = [(sg, rt) for sg in range(p0 + 5, 56) for rt in range(4)]
        per = -(-nearly // len(gaps))
        for k in range(nearly):
            sg, rt = gaps[k // per]
            at(sg, rt, lambda k=k: h_load(order[k][0], order[k][1], slots[k]))

        for sg in range(56):
            acc = accA if sg < 28 else accB
            for rt in range(4):
                a.wait(lg=zrd[sg, rt])
                d = acc.sub(16 * rt, 16)
                a('v_mfma_f32_32x32x16_bf16 %s, a[%d:%d], %s, %s' % (d, 4 * sg, 4 * sg + 3, zf.sub(16 * (sg % 2) + 4 * rt, 4), d if sg % 28 else 0))
                if sg < 55: zread(sg + 1, rt)
                for fn in fill.get((sg, rt), []): fn()
        self.stamp('g1end')
        v.release(vz0, vz1, vown, vd0, vd1, chk)
        nxt = nearly
        for k in range(nearly, min(28, len(slots))):
            h_load(order[k][0], order[k][1], slots[k]); nxt = k + 1
        for fn in late: fn()
        acc = accA
        def g2_mfma(n, rt):
            a.wait(vm=hld[n, rt])
            if n == 27 and rt == 0: a.wait(lg=dtr[27])
            for ct in range(2):
                d = acc.sub(16 * (ct + 2 * rt), 16)
                a('v_mfma_f32_32x32x16_bf16 %s, a[%d:%d], %s, %s' % (d, 8 * n + 4 * ct, 8 * n + 4 * ct + 3, hslot[n, rt], d if n else 0))
        a.wait(lg=dtr[26])
        done = 0
        for rt in range(4):
            for k, op in enumerate(epi_ops(accB, rt, 1)):
                op()
                if k == 7:
                    g2_mfma(*order[done]); done += 1
        free = [accB.sub(16 * rt + 8, 4) for rt in range(4)] + [accB.sub(16 * rt + 12, 4) for rt in range(4)] + [accB.sub(16 * rt, 4) for rt in range(4)]
        while nxt < 28:
            h_load(order[nxt][0], order[nxt][1], free.pop(0)); nxt += 1
        self.stamp('hst1')
        f1 = cfg.get('hf1', 20)
        while done < f1:
            g2_mfma(*order[done]); free.append(hslot[order[done]]); done += 1
        a.wait(vm=hst[1, 3])
        a('s_add_u32 s3, %s, 256' % sHf)
        self.flag_store('s3', zero)
        vo, vr_ = v.alloc(), v.alloc(); so, sr = s.alloc(), s.alloc()
        hres = [free.pop(0), free.pop(0)]
        a('v_lshrrev_b32 %s, 5, %s\nv_lshlrev_b32 %s, 5, %s' % (vr_, self.l, vr_, vr_))
        a('v_mul_u32_u24 %s, 896, %s\nv_add_u32 %s, %s, %s' % (pf, self.p, pf, pf, vr_))
        a('v_and_b32 %s, 7, %s\nv_lshlrev_b32 %s, 5, %s\nv_lshrrev_b32 %s, 3, %s\nv_add_u32 %s, %s, %s' % (vo, self.l, vo, vo, pr, self.p, vo, vo, pr))
        a('v_mul_u32_u24 %s, 896, %s\nv_add_u32 %s, %s, %s\nv_mov_b32 %s, %s' % (vo, vo, vo, vo, vr_, vr_, pf))
        a('s_lshl_b32 %s, %s, 1\ns_and_b32 s3, %s, 1\ns_add_u32 %s, %s, s3\ns_lshl_b32 %s, %s, 6' % (so, self.scb, self.sw, so, so, so, so))
        a('s_lshl_b32 %s, %s, 1\ns_lshr_b32 s3, %s, 1\ns_add_u32 %s, %s, s3' % (sr, self.srb64, self.sw, sr, sr))
        a('s_and_b32 s3, %s, 7\ns_lshl_b32 s3, s3, 2\ns_lshr_b32 %s, %s, 3\ns_lshl_b32 %s, %s, 8\ns_add_u32 s3, s3, %s' % (sr, sPr, sr, sPr, sPr, sPr))
        a('s_mul_i32 s3, s3, 896\ns_mul_i32 %s, %s, %d\ns_add_u32 %s, %s, %s\ns_add_u32 %s, %s, %d\ns_add_u32 %s, %s, s3'
          % (sr, sr, 32 * 896, sr, sr, so, sr, sr, HR_OFF, so, so))
        a('buffer_load_dwordx4 %s, %s, %s, %s offen sc1' % (hres[0], vr_, self.WS, sr))
        hrl = a('buffer_load_dwordx4 %s, %s, %s, %s offen offset:16 sc1' % (hres[1], vr_, self.WS, sr))
        while done < 28:
            g2_mfma(*order[done]); free.append(hslot[order[done]]); done += 1
        for k in range(4):
            o = order[k]
            free.append(hslot[o])
        lp, lo = a.label('L_h1poll'), a.label('L_h1ok')
        a('s_add_u32 %s, %s, 256' % (sPf, sPf))
        a(lp + ':')
        a('buffer_load_dword %s, %s, %s, %s offen sc1' % (pf, vpf, self.WS, sPf))
        a.wait_vm0()
        a('v_cmp_eq_u32 vcc, -1, %s\ns_cbranch_vccz %s' % (pf, lo))
        self.spin_out(lo)
        a('s_branch %s' % lp)
        a(lo + ':')
        self.stamp('h1')
        free += [accB.sub(16 * rt + 4, 4) for rt in range(4)]
        order2 = [(n, 1) for n in range(14, 28)] + [(n, 0) for n in range(14, 28)]
        assert len(free) >= 28, len(free)
        last = None
        for n, rt in order2:
            h_load.force = last is None or last // 4 != n // 4
            last = n
            h_load(n, rt, free.pop(0))
        vrw = v.alloc(); vrr = [v.alloc() for _ in range(3)]
        a('v_add_u32 %s, %s, %s' % (vrw, sring, self.l16))
        for j in range(1, 4):
            a('s_xor_b32 s3, %s, %d\ns_mul_i32 s3, s3, 12288\ns_add_u32 s3, s3, %d\nv_add_u32 %s, s3, %s' % (self.sw, j, FFT + (j - 1) * 4096, vrr[j - 1], self.l16))
        a.wait(lg=dtr[27])
        def red_write(j, i):
            a('ds_write_b128 %s, %s offset:%d' % (vrw, acc.sub(16 * j + 4 * i, 4), (j - 1) * 4096 + i * 1024))
        wr = [(j, i) for j in (2, 3) for i in range(4)]
        for k, (n, rt) in enumerate(order2):
            a.wait(vm=hld[n, rt])
            for ct in ((1, 0) if rt == 0 else (0, 1)):
                d = acc.sub(16 * (ct + 2 * rt), 16)
                a('v_mfma_f32_32x32x16_bf16 %s, a[%d:%d], %s, %s' % (d, 8 * n + 4 * ct, 8 * n + 4 * ct + 3, hslot[n, rt], d))
            if k >= 17 and wr: red_write(*wr.pop(0))
        self.stamp('g2end')
        res = v.alloc(16) if False else early.sub(0, 16)
        for k in range(8):
            a('v_lshlrev_b32 %s, 16, %s\nv_and_b32 %s, 0xffff0000, %s' % (res[2 * k], hres[k // 4][k % 4], res[2 * k + 1], hres[k // 4][k % 4]))
        for i in range(4): red_write(1, i)
        for k in range(8):
            self.pk('add', res.sub(2 * k, 2), res.sub(2 * k, 2), acc.sub(2 * k, 2))
        a.wait_lg0()
        a('s_barrier')
        rd = {}
        for i in range(4):
            for j in range(1, 4):
                rd[j, i] = a('ds_read_b128 %s, %s offset:%d' % (acc.sub(16 * j + 4 * i, 4), vrr[j - 1], i * 1024))
        for i in range(4):
            for j in range(1, 4):
                a.wait(lg=rd[j, i])
                for e in range(2):
                    self.pk('add', res.sub(4 * i + 2 * e, 2), res.sub(4 * i + 2 * e, 2), acc.sub(16 * j + 4 * i + 2 * e, 2))
            for e in range(2):
                a('v_cvt_pk_bf16_f32 %s, %s, %s' % (acc[2 * i + e], res[4 * i + 2 * e], res[4 * i + 2 * e + 1]))
            if i % 2:
                a('buffer_store_dwordx4 %s, %s, %s, %s offen offset:%d' % (acc.sub(2 * i - 2, 4), vo, self.OUT, so, 8 * i - 8))

    def finish(self):
        a = self.a
        a('L_fin:')
        if self.stamps:
            self.stamp('end')
            a('s_waitcnt vmcnt(0) lgkmcnt(0)')
            self.stamp('done')
            a('s_waitcnt lgkmcnt(0)')
            a('s_lshl_b32 s3, s2, 2\ns_add_u32 s3, s3, %s\ns_lshl_b32 s3, s3, 8\ns_add_u32 s3, s3, %d' % (self.sw, ST_OFF))
            a('v_mov_b32 v1, 0\ns_mov_b64 exec, 1')
            for k, (nm, r) in enumerate(self.stamps):
                a('v_mov_b32 v2, %s' % r[0])
                a('buffer_store_dword v2, v1, %s, s3 offen offset:%d' % (self.WS, 4 * k))
        a('L_end:')
        a('s_endpgm')
        for fn in self.tail: fn()

    def build(self):
        self.s.free.discard(3)
        self.prologue(); self.p1(); self.p2(); self.p3(); self.gemms(); self.finish()
        nops = self.a.fix_hazards()
        errs = self.a.check_waits()
        return nops, errs


HEAD = '''; Kernarg layout (80 bytes, pointers only, base s[0:1]):
; @launch grid=(256,1,1) block=(256,1,1) lds=%d
.amdgcn_target "amdgcn-amd-amdhsa--gfx950"
.text
.globl %s
.p2align 8
.type %s,@function
%s:
'''
TAIL = '''
.fill 8192, 4, 0xbf800000
.section .rodata,"a"
.p2align 6
.amdhsa_kernel %s
  .amdhsa_next_free_vgpr 512
  .amdhsa_next_free_sgpr 102
  .amdhsa_accum_offset 256
  .amdhsa_group_segment_fixed_size 0
  .amdhsa_kernarg_size 80
  .amdhsa_user_sgpr_count 2
  .amdhsa_user_sgpr_kernarg_segment_ptr 1
  .amdhsa_system_sgpr_workgroup_id_x 1
.end_amdhsa_kernel
'''


def generate(cfg, path):
    g = Gen(cfg)
    nops, errs = g.build()
    for e in errs: print('WAIT-CHECK:', e)
    src = HEAD % (LDS_BYTES, KNAME, KNAME, KNAME) + g.a.text() + TAIL % KNAME
    open(path, 'w').write(src)
    import os
    if g.stamps: open(path[:-2] + '.stamps', 'w').write(' '.join(x[0] for x in g.stamps))
    elif os.path.exists(path[:-2] + '.stamps'): os.remove(path[:-2] + '.stamps')
    n = sum(1 for x in g.a.ins if x.kind not in ('label', 'dir'))
    print('%s: %d instructions, %d hazard states, vgpr hi %d, sgpr hi %d, stamps %s' % (path, n, nops, g.v.hi, g.s.hi, [x[0] for x in g.stamps]))
    return g


if __name__ == '__main__':
    cfg = {}
    path = 'k.s'
    for arg in sys.argv[1:]:
        if '=' in arg:
            k, val = arg.split('='); cfg[k] = int(val)
        else: path = arg
    generate(cfg, path)
```

```python
import math, struct, sys
from asmdsl import *

KNAME = 'sequential_preLN__spectral_gfnet__glu_gated_bilinear__prompt_kernel'
S, D, F = 2048, 448, 1792

Y1_OFF, Y2_OFF, Z2_OFF, HR_OFF, HH_OFF, FL_OFF, ST_OFF, WT_OFF = 0, 2 << 20, 4 << 20, 6 << 20, 8 << 20, 16 << 20, 17 << 20, 18 << 20
WS_BYTES = 20 << 20
YS = 8192
HFL = 0
RFL = 32768
CFL = 65536
EPO = 131072
OOB = 0x7f000000

BIG = 0
FFT = 114688
L_V, L_Y1G, L_T = FFT, FFT + 8192, FFT + 16384
L_Y2G, L_U, L_ZB, L_HB = FFT, FFT + 8192, FFT + 26112, FFT + 33280
L_W = FFT + 24576
UROW = 272
LDS_BYTES = 163840
SPIN = 1 << 16


def f2u(x):
    return struct.unpack('<I', struct.pack('<f', x))[0]


def hexf(x):
    return '0x%08x' % f2u(x)


class Gen:
    def __init__(self, cfg):
        self.cfg = cfg
        self.a = Asm()
        self.v = Regs('v', 1, 256)
        self.s = Regs('s', 3, 102)
        self.stamps = []

    def stamp(self, name):
        if not self.cfg.get('stamps') or name in self.cfg.get('skip', '').split(','):
            return
        r = self.s.alloc(2)
        self.stamps.append((name, r))
        self.a('%s %s' % ('s_memtime' if self.cfg.get('clk') else 's_memrealtime', r))

    def pk(self, op, d, x, y, z=None, neg=None, sel=None):
        srcs = [x, y] + ([z] if z is not None else [])
        n = len(srcs)
        sel = sel or [None] * n
        neg = neg or [0] * n
        lo = [1 if q == 'hi' else 0 for q in sel]
        hi = [0 if q == 'lo' else 1 for q in sel]
        m = ''
        if any(lo): m += ' op_sel:[%s]' % ','.join(map(str, lo))
        if not all(hi): m += ' op_sel_hi:[%s]' % ','.join(map(str, hi))
        if any(neg): m += ' neg_lo:[%s] neg_hi:[%s]' % (','.join(map(str, neg)), ','.join(map(str, neg)))
        return self.a('v_pk_%s_f32 %s, %s%s' % (op, d, ', '.join(map(str, srcs)), m))

    def cmul(self, re, im, c, sn, sign, t0, t1):
        self.pk('mul', t0, im, sn)
        self.pk('mul', t1, re, sn)
        self.pk('fma', re, re, c, t0, neg=[0, 0, 1 if sign > 0 else 0])
        self.pk('fma', im, im, c, t1, neg=[0, 0, 0 if sign > 0 else 1])

    def round_bf16(self, d, x):
        self.a('v_cvt_pk_bf16_f32 %s, 0, %s' % (d, x))

    def row_stats(self, s1, s2, t0, t1, mean, rs):
        a = self.a
        for n in (8, 4, 2, 1):
            a('v_add_f32_dpp %s, %s, %s row_ror:%d row_mask:0xf bank_mask:0xf' % (s1, s1, s1, n))
            a('v_add_f32_dpp %s, %s, %s row_ror:%d row_mask:0xf bank_mask:0xf' % (s2, s2, s2, n))
        a('v_mov_b32 %s, %s\nv_mov_b32 %s, %s' % (t0, s1, t1, s2))
        a('v_permlane16_swap_b32 %s, %s\nv_permlane16_swap_b32 %s, %s' % (s1, t0, s2, t1))
        a('v_add_f32 %s, %s, %s\nv_add_f32 %s, %s, %s' % (s1, s1, t0, s2, s2, t1))
        a('v_mul_f32 %s, %s, %s' % (s1, hexf(1.0 / D), s1))
        a('v_mul_f32 %s, %s, %s' % (s2, hexf(1.0 / D), s2))
        a('v_fma_f32 %s, -%s, %s, %s' % (s2, s1, s1, s2))
        a('v_max_f32 %s, 0, %s' % (s2, s2))
        self.round_bf16(s2, s2)
        a('v_add_f32 %s, %s, %s' % (s2, hexf(1e-5), s2))
        self.round_bf16(s2, s2)
        a('v_sqrt_f32 %s, %s' % (s2, s2))
        self.round_bf16(mean, s1)
        self.round_bf16(s2, s2)
        a('v_rcp_f32 %s, %s' % (rs, s2))

    def sentinel_max(self, acc, regs, first):
        regs = list(regs)
        if first:
            self.a('v_max3_u32 %s, %s, %s, %s' % (acc, regs[0], regs[1], regs[2])); regs = regs[3:]
        while len(regs) >= 2:
            self.a('v_max3_u32 %s, %s, %s, %s' % (acc, acc, regs[0], regs[1])); regs = regs[2:]
        if regs:
            self.a('v_max_u32 %s, %s, %s' % (acc, acc, regs[0]))

    def spin_out(self, lab):
        self.a('s_cmp_eq_u32 %s, 0\ns_cbranch_scc1 %s\ns_sub_u32 %s, %s, 1' % (self.spin, lab, self.spin, self.spin))

    def srd(self, slot, nbytes):
        r = self.s.alloc(4)
        self.a('s_load_dwordx2 %s, s[0:1], %d' % (r[0:2], slot * 8))
        self.a('s_mov_b32 %s, %d\ns_mov_b32 %s, 0x20000' % (r[2], nbytes, r[3]))
        return r

    def prologue(self):
        a, v, s = self.a, self.v, self.s
        cfg = self.cfg
        a('s_cmp_ge_u32 s2, 256\ns_cbranch_scc1 L_end')
        self.stamp('start')
        self.WS = self.srd(9, WS_BYTES)
        self.X = self.srd(0, S * D * 2)
        self.sx, self.si, self.sw, self.sreg = s.alloc(), s.alloc(), s.alloc(), s.alloc()
        self.l, self.n16, self.g, self.p = v.alloc(), v.alloc(), v.alloc(), v.alloc()
        self.l16, self.t16, self.ones = v.alloc(), v.alloc(), v.alloc(4)
        t = v.alloc(); self.junk = v.alloc()
        a('s_and_b32 %s, s2, 7\ns_lshr_b32 %s, s2, 3' % (self.sx, self.si))
        if cfg.get('codepf', 1):
            pc = s.alloc(2)
            a('s_getpc_b64 %s' % pc)
            a('s_lshl_b32 s3, %s, 10' % self.si)
            a('v_and_b32 %s, 7, v0\nv_lshl_add_u32 %s, %s, 7, s3' % (t, t, t))
            a('global_load_dword %s, %s, %s' % (self.junk, t, pc), 'unused')
            s.release(pc)
        self.WR = self.srd(1, S * 225 * 2)
        self.WI = self.srd(2, S * 225 * 2)
        self.WG = self.srd(4, D * F * 2)
        self.WU = self.srd(5, D * F * 2)
        self.WD = self.srd(6, F * D * 2)
        self.OUT = self.srd(7, S * D * 2)
        a('v_lshrrev_b32 %s, 6, v0' % t)
        a('v_and_b32 %s, 63, v0' % self.l)
        a('v_readfirstlane_b32 %s, %s' % (self.sw, t))
        a('v_lshlrev_b32 %s, 4, v0' % self.t16)
        a('v_lshlrev_b32 %s, 4, %s' % (self.l16, self.l))
        a('s_lshl_b32 %s, %s, 5\ns_add_u32 %s, %s, %s' % (self.sreg, self.sx, self.sreg, self.sreg, self.si))
        for k in range(4):
            a('v_mov_b32 %s, -1' % self.ones[k])
        a('v_and_b32 %s, 31, %s' % (self.p, self.l))
        a('v_and_b32 %s, 15, %s' % (self.n16, self.l))
        a('v_lshrrev_b32 %s, 4, %s' % (self.g, self.l))
        vx = v.alloc(); sxo = s.alloc(); self.sY1, self.sY2, self.sWt = s.alloc(), s.alloc(), s.alloc()
        a('v_lshrrev_b32 %s, 5, %s' % (t, self.l))
        a('v_mul_u32_u24 %s, %d, %s' % (t, 32 * 896, t))
        a('v_lshl_add_u32 %s, %s, 2, %s' % (vx, self.p, t))
        a('s_lshl_b32 %s, %s, 2\ns_add_u32 %s, %s, %s\ns_lshl_b32 %s, %s, 6\ns_add_u32 %s, %s, %s\ns_mul_i32 %s, %s, 896'
          % (sxo, self.sx, sxo, sxo, self.sw, sxo, sxo, sxo, sxo, self.si, sxo, sxo))
        a('s_mul_i32 %s, %s, %d' % (self.sY1, self.sreg, YS))
        a('s_add_u32 %s, %s, %d\ns_add_u32 %s, %s, %d' % (self.sY2, self.sY1, Y2_OFF, self.sWt, self.sY1, WT_OFF))
        self.t16b = vt2 = v.alloc()
        a('v_add_u32 %s, 4096, %s' % (vt2, self.t16))
        self.n = v.alloc()
        a('s_lshl_b32 s3, %s, 4\nv_add_u32 %s, s3, %s' % (self.sw, self.n, self.n16))
        vwo = v.alloc(4); ssg, swb = s.alloc(), s.alloc()
        a('s_and_b32 %s, %s, 15\ns_lshr_b32 s3, %s, 6\ns_lshl_b32 s3, s3, 4\ns_add_u32 %s, %s, s3' % (swb, self.sreg, self.sreg, swb, swb))
        a('s_and_b32 s3, %s, 48\ns_lshl_b32 s3, s3, 4\ns_add_u32 %s, %s, s3' % (self.sreg, swb, swb))
        a('s_cmp_ge_u32 %s, 2\ns_cselect_b32 %s, -1, 1' % (self.sw, ssg))
        a('v_lshrrev_b32 %s, 5, %s\nv_lshl_add_u32 %s, %s, 6, %s\nv_mul_lo_u32 %s, %s, %s' % (t, self.l, t, t, swb, t, t, ssg))
        for n in range(4):
            o = vwo[n]
            a('s_mul_i32 s3, %s, %d' % (ssg, 128 * (n % 2) + 1024 * (n // 2)))
            a('v_add_u32 %s, s3, %s\nv_and_b32 %s, 2047, %s\nv_mul_u32_u24 %s, 450, %s' % (o, t, o, o, o, o))
            a('v_and_b32 %s, -4, %s\nv_lshl_add_u32 %s, %s, 4, %s' % (o, o, o, self.p, o))
        s.release(ssg, swb)
        self.consts_a()
        a('s_waitcnt lgkmcnt(0)')
        if cfg.get('wsoff'):
            a('s_add_u32 %s, %s, %d\ns_addc_u32 %s, %s, 0' % (self.WS[0], self.WS[0], cfg['wsoff'] << 20, self.WS[1], self.WS[1]))
        self.tagbase = s.alloc(2)
        a('s_add_u32 %s, %s, %d\ns_addc_u32 %s, %s, 0' % (self.tagbase[0], self.WS[0], FL_OFF, self.tagbase[1], self.WS[1]))
        self.stamp('karg')
        self.tag = s.alloc()
        a('s_load_dword %s, %s, %d' % (self.tag, self.tagbase, EPO))
        ops = {}
        def do_c():
            if cfg.get('noclr1'): a('s_mov_b32 %s, 0' % self.WS[2])
            for so in (self.sY1, self.sWt):
                a('buffer_store_dwordx4 %s, %s, %s, %s offen sc1' % (self.ones, self.t16, self.WS, so))
                ops['c'] = a('buffer_store_dwordx4 %s, %s, %s, %s offen sc1' % (self.ones, vt2, self.WS, so))
            if cfg.get('noclr1'): a('s_mov_b32 %s, %d' % (self.WS[2], WS_BYTES))
        self.xr = v.alloc(7)
        def do_x():
            nt = ' nt' if cfg.get('xnt', 1) else ''
            for d2 in range(7):
                self.xload = a('buffer_load_dword %s, %s, %s, %s offen offset:%d%s' % (self.xr[d2], vx, self.X, sxo, 128 * d2, nt))
        def do_w():
            nt = ' nt' if cfg.get('wnt', 0) else ''
            if cfg.get('now'): a('s_mov_b32 %s, 0' % self.WR[2])
            a('s_and_b32 s3, %s, 1\ns_cmp_eq_u32 s3, 0' % self.sw)
            a('s_cselect_b32 %s, %s, %s\ns_cselect_b32 %s, %s, %s' % (self.WR[0], self.WR[0], self.WI[0], self.WR[1], self.WR[1], self.WI[1]))
            a('s_lshl_b32 s3, %s, 12' % self.sw)
            for n in range(4):
                a('s_add_u32 m0, s3, %d' % (L_W + 1024 * n))
                self.wload = a('buffer_load_dwordx4 %s, %s, 0 offen%s lds' % (vwo[n], self.WR, nt))
        self.first_ops = dict(c=do_c, x=do_x, w=do_w)
        order = cfg.get('order', 'cxw')
        for ch in order.split('_')[0]: self.first_ops[ch]()
        self.late_ops = order.split('_')[1] if '_' in order else ''
        self.stamp('wiss')
        u = v.alloc()
        self.srb, self.sfs, self.srb64, self.scb = s.alloc(), s.alloc(), s.alloc(), s.alloc()
        q7 = s.alloc()
        a('s_mul_i32 %s, %s, 37\ns_lshr_b32 %s, %s, 8' % (q7, self.si, q7, q7))
        a('s_mul_i32 %s, %s, 7\ns_sub_u32 %s, %s, %s' % (self.scb, q7, self.scb, self.si, self.scb))
        a('s_lshl_b32 %s, %s, 2\ns_add_u32 %s, %s, %s' % (self.srb64, self.sx, self.srb64, self.srb64, q7))
        a('s_lshr_b32 %s, %s, 1\ns_lshl_b32 %s, %s, 2\ns_add_u32 %s, %s, %s' % (self.srb, self.sx, self.srb, self.srb, self.srb, self.srb, q7))
        a('s_and_b32 %s, %s, 1\ns_mul_i32 %s, %s, 7\ns_add_u32 %s, %s, %s' % (self.sfs, self.sx, self.sfs, self.sfs, self.sfs, self.sfs, self.scb))
        s.release(q7)
        if cfg.get('gupf', 1):
            pf = s.alloc(4)
            a('s_and_b32 s3, %s, 1\ns_cmp_eq_u32 s3, 0' % self.sw)
            a('s_cselect_b32 %s, %s, %s\ns_cselect_b32 %s, %s, %s' % (pf[0], self.WG[0], self.WU[0], pf[1], self.WG[1], self.WU[1]))
            a('s_mov_b32 %s, %d\ns_mov_b32 %s, 0x20000' % (pf[2], D * F * 2, pf[3]))
            a('v_mul_u32_u24 %s, 3584, %s\nv_min_u32 %s, 13, %s\nv_lshl_add_u32 %s, %s, 7, %s' % (t, self.g, u, self.n16, t, u, t))
            a('s_lshl_b32 %s, %s, 1\ns_lshr_b32 s3, %s, 1\ns_add_u32 %s, %s, s3\ns_mul_i32 %s, %s, %d' % (sxo, self.si, self.sw, sxo, sxo, sxo, sxo, 7 * 3584))
            a('s_and_b32 s3, %s, 1\ns_mul_i32 s3, s3, 1792\ns_add_u32 %s, %s, s3\ns_add_u32 s3, %s, %d' % (self.sx, sxo, sxo, sxo, 4 * 3584))
            a('buffer_load_dword %s, %s, %s, %s offen' % (self.junk, t, pf, sxo), 'unused')
            a('buffer_load_dword %s, %s, %s, s3 offen' % (self.junk, t, pf), 'unused')
            s.release(pf)
        a('s_cmp_lt_u32 %s, %d' % (self.si, 0 if cfg.get('nostage') else 28))
        if cfg.get('nowd'): a('s_mov_b32 %s, 0' % self.WD[2])
        a('s_cselect_b32 %s, %s, 0\ns_cselect_b32 %s, %s, 0' % (self.WG[2], self.WG[2], self.WU[2], self.WU[2]))
        self.stamp('issued')
        self.vsg, self.vsu, self.sst, self.sbig = v.alloc(), v.alloc(), s.alloc(), s.alloc()
        a('v_lshrrev_b32 %s, 2, %s\nv_mul_u32_u24 %s, 3584, %s' % (t, self.l, t, t))
        a('v_and_b32 %s, 3, %s\nv_lshl_add_u32 %s, %s, 4, %s' % (self.vsg, self.l, self.vsg, self.vsg, t))
        a('v_xor_b32 %s, 32, %s' % (self.vsu, self.vsg))
        a('s_lshl_b32 %s, %s, 2\ns_add_u32 %s, %s, %s\ns_lshl_b32 %s, %s, 6' % (self.sst, self.sfs, self.sst, self.sst, self.sw, self.sst, self.sst))
        a('s_mul_i32 %s, %s, 28672' % (self.sbig, self.sw))
        self.consts_b()
        for ch in self.late_ops: self.first_ops[ch]()
        v.release(vwo, vx)
        a.wait(vm=ops['c'])
        a.wait_lg0()
        s.release(self.tagbase)
        a('s_mul_i32 %s, %s, 0x9e3779b1\ns_add_u32 %s, %s, 0x7f4a7c15' % (self.tag, self.tag, self.tag, self.tag))
        a('s_barrier')
        lab = a.label('L_noarr')
        a('s_cmp_lg_u32 %s, 0\ns_cbranch_scc1 %s' % (self.sw, lab))
        a('s_lshl_b32 s3, %s, 4\ns_add_u32 s3, s3, %d' % (self.sreg, FL_OFF + CFL))
        a('v_mov_b32 %s, %s\nv_lshlrev_b32 %s, 12, v0' % (t, self.tag, u))
        a('s_mov_b64 exec, 0xff')
        a('buffer_store_dword %s, %s, %s, s3 offen sc1' % (t, u, self.WS))
        a('s_mov_b64 exec, -1')
        a.nvm -= 1
        a(lab + ':')
        self.stamp('clr1')
        if cfg.get('xfirst'):
            a.wait(vm=self.xload)
            self.stamp('x0')
        if cfg.get('noclr'): a('s_mov_b32 %s, 0' % self.WS[2])
        a('buffer_store_dwordx4 %s, %s, %s, %s offen sc1' % (self.ones, self.t16, self.WS, self.sY2))
        a('buffer_store_dwordx4 %s, %s, %s, %s offen sc1' % (self.ones, vt2, self.WS, self.sY2))
        self.vz0, self.vz1, self.sZ = v.alloc(), v.alloc(), s.alloc()
        a('v_lshrrev_b32 %s, 3, v0\nv_lshlrev_b32 %s, 9, %s' % (t, t, t))
        a('v_and_b32 %s, 7, v0\nv_lshl_add_u32 %s, %s, 4, %s' % (self.vz0, self.vz0, self.vz0, t))
        a('v_add_u32 %s, 16384, %s' % (self.vz1, self.vz0))
        a('v_mov_b32 %s, %d' % (t, OOB))
        a('v_cmp_gt_u32 vcc, 192, v0')
        a('v_cndmask_b32 %s, %s, %s, vcc' % (self.vz1, t, self.vz1))
        a('s_lshr_b32 %s, %s, 2\ns_mul_i32 %s, %s, 28672' % (self.sZ, self.sreg, self.sZ, self.sZ))
        a('s_and_b32 %s, %s, 3\ns_lshl_b32 %s, %s, 7' % (sxo, self.si, sxo, sxo))
        a('s_add_u32 %s, %s, %s\ns_add_u32 %s, %s, %d' % (self.sZ, self.sZ, sxo, self.sZ, self.sZ, Z2_OFF))
        a('buffer_store_dwordx4 %s, %s, %s, %s offen sc1' % (self.ones, self.vz0, self.WS, self.sZ))
        a('buffer_store_dwordx4 %s, %s, %s, %s offen sc1' % (self.ones, self.vz1, self.WS, self.sZ))
        a('v_cmp_gt_u32 vcc, 16, v0')
        a('v_cndmask_b32 %s, %s, %s, vcc' % (u, t, self.t16))
        a('s_lshl_b32 %s, s2, 8\ns_add_u32 %s, %s, %d' % (sxo, sxo, sxo, FL_OFF))
        self.clr2 = a('buffer_store_dwordx4 %s, %s, %s, %s offen sc1' % (self.ones, u, self.WS, sxo))
        if cfg.get('noclr'): a('s_mov_b32 %s, %d' % (self.WS[2], WS_BYTES))
        self.stamp('c2iss')
        v.release(t, u)
        s.release(sxo)

    def stage_dma(self, k0, k1):
        a = self.a
        if self.cfg.get('nostage') == 2:
            self.stg = 0
            return
        for k in range(k0, k1):
            a('s_add_u32 m0, %s, %d' % (self.sbig, BIG + 2048 * k))
            a('buffer_load_dwordx4 %s, %s, %s offen lds' % (self.vsg, self.WG, self.sst))
            a('s_add_u32 m0, m0, 1024')
            self.stg = a('buffer_load_dwordx4 %s, %s, %s offen lds' % (self.vsu, self.WU, self.sst))
            a('s_add_u32 %s, %s, %d' % (self.sst, self.sst, 16 * 3584))

    def stage_read(self, rnd):
        a, v = self.a, self.v
        if rnd == 0:
            self.vtr = v.alloc(2)
            t, u = v.alloc(), v.alloc()
            a('v_bfe_u32 %s, %s, 1, 1\nv_mul_u32_u24 %s, 1056, %s' % (t, self.l, t, t))
            a('v_bfe_u32 %s, %s, 2, 2\nv_lshl_add_u32 %s, %s, 6, %s' % (u, self.l, t, u, t))
            a('v_lshrrev_b32 %s, 5, %s\nv_lshl_add_u32 %s, %s, 9, %s' % (u, self.l, t, u, t))
            a('v_and_b32 %s, 1, %s\nv_lshl_add_u32 %s, %s, 4, %s' % (u, self.l, t, u, t))
            a('v_bfe_u32 %s, %s, 4, 1\nv_lshl_add_u32 %s, %s, 3, %s' % (u, self.l, t, u, t))
            a('v_add_u32 %s, %s, %s' % (self.vtr[0], self.sbig, t))
            a('v_xor_b32 %s, 32, %s' % (self.vtr[1], self.vtr[0]))
            v.release(t, u)
        a.wait(vm=self.stg)
        for k in range(14):
            for t in range(2):
                for e in range(2):
                    b = (t * 28 + rnd * 14 + k) * 4 + 2 * e
                    a('ds_read_b64_tr_b16 a[%d:%d], %s offset:%d' % (b, b + 1, self.vtr[t], BIG + k * 2048 + e * 256))
        if rnd == 1:
            v.release(self.vtr, self.vsg, self.vsu)

    def consts_a(self):
        a, v, s = self.a, self.v, self.s
        self.F64r, self.F64i = v.alloc(16), v.alloc(16)
        self.C2, self.S2 = v.alloc(8), v.alloc(8)
        self.ct = fn, a0, ang, c, sn, msk, g4 = [v.alloc() for _ in range(7)]
        a('v_and_b32 %s, 1, %s\nv_mul_u32_u24 %s, 0x8000, %s\nv_lshl_or_b32 %s, %s, 16, %s' % (msk, self.l, msk, msk, msk, msk, msk))
        a('v_lshlrev_b32 %s, 2, %s\nv_cvt_f32_u32 %s, %s' % (g4, self.g, g4, g4))
        a('v_cvt_f32_u32 %s, %s\nv_mul_f32 %s, %s, %s\nv_mul_f32 %s, %s, %s' % (fn, self.n, fn, hexf(1 / 64.0), fn, a0, fn, g4))
        self.f64rows(range(self.cfg.get('ca', 4)))

    def f64rows(self, ks):
        a = self.a
        fn, a0, ang, c, sn, msk, g4 = self.ct
        for k in ks:
            q, r = k // 4, k % 4
            a('v_fmamk_f32 %s, %s, %s, %s' % (ang, fn, hexf(16 * q + r), a0))
            a('v_cos_f32 %s, %s\nv_sin_f32 %s, %s' % (c, ang, sn, ang))
            a('v_mul_f32 %s, %s, %s' % (ang, hexf(1 / 32.0), ang))
            a('v_cvt_pk_bf16_f32 %s, %s, %s' % (self.F64r[k], c, sn))
            a('v_cvt_pk_bf16_f32 %s, -%s, %s' % (self.F64i[k], sn, c))
            a('v_cos_f32 %s, %s\nv_sin_f32 %s, %s' % (self.C2[k], ang, self.S2[k], ang))
            a('v_xor_b32 %s, %s, %s\nv_xor_b32 %s, %s, %s' % (self.F64r[k + 8], msk, self.F64r[k], self.F64i[k + 8], msk, self.F64i[k]))

    def consts_b(self):
        a, v, s = self.a, self.v, self.s
        fn, a0, ang, c, sn, msk, g4 = self.ct
        self.f64rows(range(self.cfg.get('ca', 4), 8))
        self.F32r, self.F32i = v.alloc(16), v.alloc(16)
        self.C1, self.S1 = v.alloc(6), v.alloc(6)
        a('v_lshlrev_b32 %s, 1, %s\nv_cvt_f32_u32 %s, %s\nv_add_f32 %s, 1.0, %s' % (fn, self.p, fn, fn, a0, fn))
        for j in range(1, 4):
            for e, src in enumerate((fn, a0)):
                a('v_mul_f32 %s, %s, %s' % (ang, hexf(j / 448.0), src))
                a('v_cos_f32 %s, %s\nv_sin_f32 %s, %s' % (self.C1[2 * j - 2 + e], ang, self.S1[2 * j - 2 + e], ang))
        a('v_cvt_f32_u32 %s, %s\nv_mul_f32 %s, %s, %s\nv_mul_f32 %s, %s, %s' % (fn, self.n16, fn, hexf(1 / 32.0), fn, a0, fn, g4))
        for r in range(4):
            a('v_fmamk_f32 %s, %s, %s, %s' % (ang, fn, hexf(r), a0))
            a('v_cos_f32 %s, %s\nv_sin_f32 %s, %s' % (c, ang, sn, ang))
            a('v_cvt_pk_bf16_f32 %s, %s, %s' % (self.F32r[r], c, sn))
            a('v_cvt_pk_bf16_f32 %s, -%s, %s' % (self.F32i[r], sn, c))
            for M in (self.F32r, self.F32i):
                a('v_xor_b32 %s, %s, %s' % (M[4 + r], msk, M[r]))
                for q in range(2):
                    if r % 2: a('v_xor_b32 %s, 0x80008000, %s' % (M[8 + 4 * q + r], M[4 * q + r]))
                    else: a('v_mov_b32 %s, %s' % (M[8 + 4 * q + r], M[4 * q + r]))
        v.release(*self.ct)
        self.K7 = s.alloc(6, 2)
        for k in range(1, 4):
            a('s_mov_b32 %s, %s' % (self.K7[2 * k - 2], hexf(math.cos(2 * math.pi * k / 7))))
            a('s_mov_b32 %s, %s' % (self.K7[2 * k - 1], hexf(math.sin(2 * math.pi * k / 7))))

    def k7(self, m):
        m %= 7
        return (self.K7.sub(2 * m - 2, 2), 1) if m <= 3 else (self.K7.sub(2 * (7 - m) - 2, 2), -1)

    def p1(self):
        a, v, s = self.a, self.v, self.s
        vw0, vw1, vr0, vr1, t, u = [v.alloc() for _ in range(6)]
        a('v_lshrrev_b32 %s, 5, %s\ns_lshl_b32 s3, %s, 1\nv_add_u32 %s, s3, %s' % (t, self.l, self.sw, t, t))
        self.va = v.alloc()
        a('v_mov_b32 %s, %s' % (self.va, t))
        a('v_bfe_u32 %s, %s, 1, 2\nv_xor_b32 %s, %s, %s' % (u, self.p, t, t, u))
        a('v_bfe_u32 %s, %s, 3, 1\nv_mul_u32_u24 %s, 12, %s\nv_xor_b32 %s, %s, %s' % (u, self.p, u, u, t, t, u))
        a('v_lshlrev_b32 %s, 4, %s' % (t, t))
        a('v_lshrrev_b32 %s, 1, %s\nv_lshl_add_u32 %s, %s, 8, %s' % (u, self.p, t, u, t))
        a('v_and_b32 %s, 1, %s\nv_lshl_add_u32 %s, %s, 3, %s' % (u, self.p, t, u, t))
        a('v_add_u32 %s, %d, %s\nv_xor_b32 %s, 128, %s' % (vw0, L_V, t, vw1, vw0))
        a('v_xor_b32 %s, %s, %s\nv_lshlrev_b32 %s, 4, %s\nv_lshl_add_u32 %s, %s, 8, %s' % (t, self.n16, self.g, t, t, t, self.g, t))
        a('v_add_u32 %s, %d, %s\nv_xor_b32 %s, 192, %s' % (vr0, L_V, t, vr1, vr0))
        vst = v.alloc()
        a('v_lshlrev_b32 %s, 4, %s\nv_lshl_add_u32 %s, %s, 6, %s' % (t, self.g, t, self.n16, t))
        a('s_lshl_b32 s3, %s, 10\nv_add_u32 %s, s3, %s' % (self.sw, vst, t))
        a.wait(vm=self.xload)
        self.stamp('x')
        self.Xf = X = v.alloc(14)
        P = lambda R_, k: R_.sub(2 * k, 2)
        for d2 in range(7):
            a('v_lshlrev_b32 %s, 16, %s\nv_and_b32 %s, 0xffff0000, %s' % (X[2 * d2], self.xr[d2], X[2 * d2 + 1], self.xr[d2]))
        v.release(self.xr)
        T, U, RE, IM = v.alloc(6), v.alloc(6), v.alloc(8), v.alloc(6)
        sq, t0, t1 = v.alloc(2), v.alloc(2), v.alloc(2)
        for k in range(1, 4):
            self.pk('add', P(T, k - 1), P(X, k), P(X, 7 - k))
        self.pk('mul', sq, P(X, 0), P(X, 0))
        self.pk('add', P(RE, 0), P(X, 0), P(T, 0))
        for d2 in range(1, 4): self.pk('fma', sq, P(X, d2), P(X, d2), sq)
        self.pk('add', t0, P(T, 1), P(T, 2))
        for d2 in range(4, 7): self.pk('fma', sq, P(X, d2), P(X, d2), sq)
        self.pk('add', P(RE, 0), P(RE, 0), t0)
        s1, s2, mean, rs = [v.alloc() for _ in range(4)]
        a('v_add_f32 %s, %s, %s' % (s2, sq[0], sq[1]))
        a('v_add_f32 %s, %s, %s' % (s1, RE[0], RE[1]))
        for k in range(1, 4):
            self.pk('add', P(U, k - 1), P(X, k), P(X, 7 - k), neg=[0, 1])
        self.row_stats(s1, s2, t, u, mean, rs)
        for j in range(1, 4):
            for k in range(1, 4):
                c, sg = self.k7(j * k)
                self.pk('fma', P(RE, j), P(T, k - 1), c, P(X, 0) if k == 1 else P(RE, j), sel=[None, 'lo', None])
                if k == 1: self.pk('mul', P(IM, j - 1), P(U, 0), c, sel=[None, 'hi'], neg=[0, 1 if sg > 0 else 0])
                else: self.pk('fma', P(IM, j - 1), P(U, k - 1), c, P(IM, j - 1), sel=[None, 'hi', None], neg=[0, 1 if sg > 0 else 0, 0])
        for j in range(1, 4):
            self.cmul(P(RE, j), P(IM, j - 1), P(self.C1, j - 1), P(self.S1, j - 1), -1, t0, t1)
        a('v_mul_f32 %s, %s, %s' % (mean, hexf(-7.0), mean))
        a('v_mul_f32 %s, %s, %s\nv_mov_b32 %s, %s' % (t0[0], hexf(2.0 / (S * D)), rs, t0[1], mean))
        a('v_mul_f32 %s, %s, %s' % (t1[0], hexf(1.0 / (S * D)), rs))
        self.pk('add', P(RE, 0), P(RE, 0), t0, sel=[None, 'hi'])
        for j in range(4):
            self.pk('mul', P(RE, j), P(RE, j), t0 if j else t1, sel=[None, 'lo'])
            if j: self.pk('mul', P(IM, j - 1), P(IM, j - 1), t0, sel=[None, 'lo'])
        for j in range(4):
            o = P(T, j) if j < 3 else P(U, 0)
            for e in range(2):
                a('v_cvt_pk_bf16_f32 %s, %s, %s' % (o[e], RE[2 * j + e], IM[2 * j - 2 + e] if j else 0))
            a('ds_write_b64 %s, %s offset:%d' % (vw1 if j & 1 else vw0, o, (j >> 1) * 4096))
        a.wait_lg0()
        a('s_barrier')
        v.release(T, U, RE, IM, sq, t0, t1, s1, s2, mean, rs, vw0, vw1)
        A = v.alloc(32, 4); acc = v.alloc(16, 4); o = v.alloc(8, 4)
        rd = {}
        for Pp in range(2):
            for q in range(4):
                rd[Pp, q] = a('ds_read_b128 %s, %s offset:%d' % (A.sub(16 * Pp + 4 * q, 4), vr1 if q & 1 else vr0, Pp * 4096 + q * 1024))
        for Pp in range(2):
            for q in range(4):
                a.wait(lg=rd[Pp, q])
                for c, M in enumerate((self.F64r, self.F64i)):
                    d = acc.sub(8 * Pp + 4 * c, 4)
                    a('v_mfma_f32_16x16x32_bf16 %s, %s, %s, %s' % (d, A.sub(16 * Pp + 4 * q, 4), M.sub(4 * q, 4), d if q else 0))
        a('v_add_u32 %s, 4096, %s' % (t, vst))
        for Pp in range(2):
            for r in range(4):
                a('v_cvt_pk_bf16_f32 %s, %s, %s' % (o[4 * Pp + r], acc[8 * Pp + r], acc[8 * Pp + 4 + r]))
            self.y1st = a('buffer_store_dwordx4 %s, %s, %s, %s offen sc1' % (o.sub(4 * Pp, 4), t if Pp else vst, self.WS, self.sY1))
        self.stamp('p1')
        v.release(A, acc, o, vr0, vr1, vst, t, u)

    def p2(self):
        a, v, s = self.a, self.v, self.s
        cnt, t, u = v.alloc(), v.alloc(), v.alloc()
        scf = s.alloc()
        a('s_lshl_b32 %s, %s, 12\ns_add_u32 %s, %s, %d' % (scf, self.sx, scf, scf, FL_OFF + CFL))
        cl = a('buffer_load_dword %s, %s, %s, %s offen sc1' % (cnt, self.t16, self.WS, scf))
        wq = v.alloc(8, 4); vj, vm_ = v.alloc(), v.alloc()
        a('v_lshrrev_b32 %s, 2, v0\nv_mul_u32_u24 %s, 7, %s\nv_and_b32 %s, 3, v0\nv_add_u32 %s, %s, %s' % (vj, vj, vj, t, vj, vj, t))
        a('v_sub_u32 %s, %d, %s\nv_cmp_lt_u32 vcc, 224, %s' % (t, 448 + 4096, vj, vj))
        a('v_mov_b32 %s, 0x80000000' % vm_)
        a('v_cndmask_b32 %s, %s, %s, vcc\nv_cndmask_b32 %s, 0, %s, vcc' % (vj, vj, t, vm_, vm_))
        a('s_and_b32 s3, %s, 1\ns_lshl_b32 s3, s3, 1\ns_add_u32 s3, s3, %d\nv_lshl_add_u32 %s, %s, 1, s3' % (self.sreg, L_W, vj, vj))
        a.wait(vm=self.clr2)
        self.stamp('clr2')
        a('s_barrier')
        wh = v.alloc(8)
        for k in range(8):
            a('ds_read_u16 %s, %s offset:%d' % (wq[k], vj, 512 * k))
            a('ds_read_u16_d16_hi %s, %s offset:%d' % (wh[k], vj, 4096 + 512 * k))
        a.wait_lg0()
        for k in range(8): a('v_and_b32 %s, 0xffff0000, %s' % (wh[k], wh[k]))
        v.release(wh)
        for h in range(2):
            for k in range(4 * h, 4 * h + 4): a('v_bitop3_b32 %s, %s, %s, %s bitop3:0x56' % (wq[k], wq[k], wh[k], vm_))
            wst = a('buffer_store_dwordx4 %s, %s, %s, %s offen sc1' % (wq.sub(4 * h, 4), self.t16b if h else self.t16, self.WS, self.sWt))
        v.release(vm_, self.t16b)
        na = self.cfg.get('na', 4)
        self.stage_dma(0, na)
        swg = s.alloc()
        a('v_mul_u32_u24 %s, %d, v0' % (vj, YS))
        a('s_lshl_b32 %s, %s, 4\ns_add_u32 %s, %s, %d' % (swg, self.sreg, swg, swg, WT_OFF))
        vg0, vg1, sg = v.alloc(), v.alloc(), s.alloc()
        a('v_lshrrev_b32 %s, 1, %s\nv_lshl_add_u32 %s, %s, 5, %s\nv_mul_u32_u24 %s, %d, %s' % (t, self.g, t, t, self.n16, t, YS, t))
        a('v_and_b32 %s, 1, %s\nv_lshl_add_u32 %s, %s, 4, %s' % (vg0, self.g, vg0, vg0, t))
        a('v_add_u32 %s, %d, %s' % (vg1, 16 * YS, vg0))
        a('s_lshr_b32 %s, %s, 2\ns_lshl_b32 %s, %s, 6' % (sg, self.sreg, sg, sg))
        a('s_and_b32 s3, %s, 2\ns_lshl_b32 s3, s3, 11\ns_add_u32 %s, %s, s3' % (self.sreg, sg, sg))
        a('s_and_b32 s3, %s, 1\ns_lshl_b32 s3, s3, 5\ns_add_u32 %s, %s, s3' % (self.sreg, sg, sg))
        a('s_mul_i32 s3, %s, %d\ns_add_u32 %s, %s, s3' % (self.sw, 64 * YS, sg, sg))
        sm = s.alloc()
        a('s_lshl_b32 %s, %s, 10\ns_add_u32 %s, %s, %d' % (sm, self.sw, sm, sm, L_Y1G))
        vlr, vtw, vst = v.alloc(), v.alloc(), v.alloc()
        a('v_add_u32 %s, %d, %s' % (vlr, L_Y1G, self.l16))
        a('v_lshrrev_b32 %s, 2, %s\nv_lshlrev_b32 %s, 8, %s\nv_lshl_add_u32 %s, %s, 6, %s' % (t, self.n16, t, t, t, self.g, t))
        a('v_and_b32 %s, 3, %s\nv_lshl_add_u32 %s, %s, 2, %s' % (vtw, self.l, t, vtw, t))
        a('s_lshl_b32 s3, %s, 10\ns_add_u32 s3, s3, %d\nv_add_u32 %s, s3, %s' % (self.sw, L_T, vtw, t))
        a('v_lshrrev_b32 %s, 1, %s\nv_lshlrev_b32 %s, 10, %s\nv_lshl_add_u32 %s, %s, 5, %s' % (t, self.g, t, t, t, self.n16, t))
        a('v_and_b32 %s, 1, %s\nv_lshl_add_u32 %s, %s, 4, %s' % (vst, self.g, t, vst, t))
        a('s_lshl_b32 s3, %s, 11\nv_add_u32 %s, s3, %s' % (self.sw, vst, t))
        self.spin = s.alloc()
        a('s_mov_b32 %s, %d' % (self.spin, SPIN))
        a.wait(vm=cl)
        self.stamp('cnt')
        l0, l1 = a.label('L_clr'), a.label('L_clrok')
        a(l0 + ':')
        a('v_cmp_ne_u32 vcc, %s, %s\ns_cbranch_vccz %s' % (self.tag, cnt, l1))
        self.spin_out(l1)
        a('s_sleep 4')
        a('buffer_load_dword %s, %s, %s, %s offen sc1' % (cnt, self.t16, self.WS, scf))
        a.nvm -= 1
        a.wait_vm0()
        a('s_branch %s' % l0)
        a(l1 + ':')
        self.stamp('drain1')

        def gather():
            a('s_mov_b32 m0, %s' % sm)
            a('buffer_load_dwordx4 %s, %s, %s offen sc1 lds' % (vg0, self.WS, sg))
            a('s_add_u32 m0, %s, 4096' % sm)
            return a('buffer_load_dwordx4 %s, %s, %s offen sc1 lds' % (vg1, self.WS, sg))
        gl = gather()
        a('s_mov_b32 %s, %d' % (self.spin, SPIN))

        def wgather():
            a('buffer_load_dwordx4 %s, %s, %s, %s offen sc1' % (wq.sub(0, 4), vj, self.WS, swg))
            a('s_add_u32 s3, %s, 4096' % swg)
            return a('buffer_load_dwordx4 %s, %s, %s, s3 offen sc1' % (wq.sub(4, 4), vj, self.WS))
        a.wait(vm=wst)
        wl = wgather()
        self.stage_dma(na, 14)
        a.wait(vm=gl)
        lr, lf, lo = a.label('L_p2'), a.label('L_p2fail'), a.label('L_p2ok')
        a(lr + ':')
        a('s_barrier')
        A = v.alloc(32, 4); D1 = v.alloc(16, 4); B = v.alloc(8, 4); t0, t1 = v.alloc(2), v.alloc(2)
        rd = {}
        for tt in range(2):
            for q in range(4):
                rd[tt, q] = a('ds_read_b128 %s, %s offset:%d' % (A.sub(16 * tt + 4 * q, 4), vlr, tt * 4096 + q * 1024))
        for tt in range(2):
            for q in range(4):
                a.wait(lg=rd[tt, q])
                f = A.sub(16 * tt + 4 * q, 4)
                for c, M in enumerate((self.F64r, self.F64i)):
                    d = D1.sub(8 * tt + 4 * c, 4)
                    a('v_mfma_f32_16x16x32_bf16 %s, %s, %s, %s' % (d, f, M.sub(4 * q, 4), d if q else 0))
                self.sentinel_max(cnt, [f[k] for k in range(4)], tt == 0 and q == 0)
        a('v_cmp_eq_u32 vcc, -1, %s\ns_cbranch_vccnz %s' % (cnt, lf))
        a(lo + ':')
        self.stamp('g1')
        self.tail = getattr(self, 'tail', [])

        def fail2():
            a(lf + ':')
            self.spin_out(lo)
            a('s_barrier')
            gather()
            a.wait_vm0()
            a('s_branch %s' % lr)
        self.tail.append(fail2)

        def twiddle(Dr, Di, C, Sn, sign, swap):
            for tt in range(2):
                for h in range(2):
                    k = 4 * tt + 2 * h
                    re, im = Dr(tt).sub(2 * h, 2), Di(tt).sub(2 * h, 2)
                    self.cmul(re, im, C.sub(k, 2), Sn.sub(k, 2), sign, t0, t1)
                    for e in range(2):
                        x, y = (im[e], re[e]) if swap else (re[e], im[e])
                        a('v_cvt_pk_bf16_f32 %s, %s, %s' % (B[k + e], x, y))

        def f32stage(Dd):
            for tt in range(2):
                for c, M in enumerate((self.F32r, self.F32i)):
                    d = Dd.sub(8 * tt + 4 * c, 4)
                    for q in range(2):
                        a('v_mfma_f32_16x16x32_bf16 %s, %s, %s, %s' % (d, M.sub(8 * tt + 4 * q, 4), B.sub(4 * q, 4), d if q else 0))
        R0 = lambda Dd: (lambda tt: Dd.sub(8 * tt, 4))
        R1 = lambda Dd: (lambda tt: Dd.sub(8 * tt + 4, 4))
        D2 = A.sub(0, 16)
        twiddle(R0(D1), R1(D1), self.C2, self.S2, -1, False)
        f32stage(D2)
        lwf, lwo = a.label('L_wfail'), a.label('L_wok')
        a.wait(vm=wl)
        self.sentinel_max(cnt, [wq[k] for k in range(8)], True)
        a('v_cmp_eq_u32 vcc, -1, %s\ns_cbranch_vccnz %s' % (cnt, lwf))
        a(lwo + ':')

        def failw():
            a(lwf + ':')
            self.spin_out(lwo)
            wgather()
            a.wait_vm0()
            self.sentinel_max(cnt, [wq[k] for k in range(8)], True)
            a('v_cmp_eq_u32 vcc, -1, %s\ns_cbranch_vccnz %s\ns_branch %s' % (cnt, lwf, lwo))
        self.tail.append(failw)
        Wr, Wi = A.sub(16, 8), A.sub(24, 8)
        for k in range(8):
            a('v_lshlrev_b32 %s, 16, %s\nv_and_b32 %s, 0xffff0000, %s' % (Wr[k], wq[k], Wi[k], wq[k]))
        twiddle(R0(D2), R1(D2), Wr, Wi, +1, True)
        f32stage(D1)
        twiddle(R1(D1), R0(D1), self.C2, self.S2, +1, True)
        for tt in range(2):
            for r in range(4):
                a('ds_write_b32 %s, %s offset:%d' % (vtw, B[4 * tt + r], tt * 4096 + r * 16))
        a.wait_lg0()
        a('s_barrier')
        for tt in range(2):
            for q in range(4):
                rd[tt, q] = a('ds_read_b128 %s, %s offset:%d' % (A.sub(16 * tt + 4 * q, 4), vlr, L_T - L_Y1G + tt * 4096 + q * 1024))
        for tt in range(2):
            for q in range(4):
                a.wait(lg=rd[tt, q])
                for c, M in enumerate((self.F64r, self.F64i)):
                    d = D1.sub(8 * tt + 4 * c, 4)
                    a('v_mfma_f32_16x16x32_bf16 %s, %s, %s, %s' % (d, M.sub(4 * q, 4), A.sub(16 * tt + 4 * q, 4), d if q else 0))
        for tt in range(2):
            im, re = D1.sub(8 * tt, 4), D1.sub(8 * tt + 4, 4)
            o = B.sub(4 * tt, 4)
            a('v_cvt_pk_bf16_f32 %s, %s, %s\nv_cvt_pk_bf16_f32 %s, %s, %s' % (o[0], re[0], re[1], o[1], re[2], re[3]))
            a('v_cvt_pk_bf16_f32 %s, %s, %s\nv_cvt_pk_bf16_f32 %s, %s, %s' % (o[2], im[0], im[1], o[3], im[2], im[3]))
            self.y2st = a('buffer_store_dwordx4 %s, %s, %s, %s offen offset:%d sc1' % (o, vst, self.WS, self.sY2, 512 * tt))
        self.stamp('p2')
        v.release(A, D1, B, t0, t1, vlr, vtw, vst, t, u, wq, vj, self.F32r, self.F32i, self.C2, self.S2)
        v.release(vg0, vg1, cnt); s.release(sg, sm, swg, scf)

    def p3(self):
        a, v, s = self.a, self.v, self.s
        self.stage_read(0)
        t, u, cnt = v.alloc(), v.alloc(), v.alloc()
        vg0, vg1, sg, sm = v.alloc(), v.alloc(), s.alloc(), s.alloc()
        a('v_bfe_u32 %s, %s, 3, 2\nv_lshlrev_b32 %s, 4, %s' % (t, self.l, t, t))
        a('v_lshrrev_b32 %s, 5, %s\nv_lshl_add_u32 %s, %s, 3, %s' % (u, self.l, t, u, t))
        a('v_bfe_u32 %s, %s, 2, 1\nv_lshl_add_u32 %s, %s, 2, %s' % (u, self.l, t, u, t))
        a('v_bfe_u32 %s, %s, 1, 1\nv_add_u32 %s, %s, %s\nv_mul_u32_u24 %s, %d, %s' % (u, self.l, t, t, u, t, YS, t))
        a('v_and_b32 %s, 1, %s\nv_lshl_add_u32 %s, %s, 4, %s' % (u, self.l, vg0, u, t))
        a('v_add_u32 %s, %d, %s' % (vg1, 2 * YS, vg0))
        a('s_mul_i32 %s, %s, %d\ns_lshl_b32 s3, %s, 5\ns_add_u32 %s, %s, s3\ns_add_u32 %s, %s, %d'
          % (sg, self.sw, 64 * YS, self.sreg, sg, sg, sg, sg, Y2_OFF))
        a('s_lshl_b32 %s, %s, 10\ns_add_u32 %s, %s, %d' % (sm, self.sw, sm, sm, L_Y2G))
        vtr, vuw, vur, vzw, vhw, vzr, vhr, vhs = [v.alloc() for _ in range(8)]
        a('v_lshlrev_b32 %s, 7, %s\nv_bfe_u32 %s, %s, 3, 1\nv_lshl_add_u32 %s, %s, 6, %s' % (t, self.g, u, self.l, t, u, t))
        a('v_and_b32 %s, 3, %s\nv_lshl_add_u32 %s, %s, 4, %s' % (u, self.l, t, u, t))
        a('v_bfe_u32 %s, %s, 2, 1\nv_xor_b32 %s, 1, %s\nv_lshl_add_u32 %s, %s, 3, %s' % (u, self.l, u, u, t, u, t))
        a('v_add_u32 %s, %d, %s' % (vtr, L_Y2G, t))
        a('v_lshrrev_b32 %s, 3, %s\nv_lshlrev_b32 %s, 3, %s\nv_add_u32 %s, %s, %s\nv_mul_u32_u24 %s, %d, %s'
          % (t, self.n16, t, t, t, t, self.n16, t, UROW, t))
        a('v_lshl_add_u32 %s, %s, 4, %s\ns_lshl_b32 s3, %s, 6\ns_add_u32 s3, s3, %d\nv_add_u32 %s, s3, %s' % (t, self.g, t, self.sw, L_U, vuw, t))
        a('v_mul_u32_u24 %s, %d, %s\nv_lshl_add_u32 %s, %s, 3, %s\nv_add_u32 %s, %d, %s' % (t, UROW, self.va, t, self.p, t, vur, L_U, t))
        a('v_lshrrev_b32 %s, 2, %s\nv_xor_b32 %s, %s, %s\nv_lshlrev_b32 %s, 4, %s\nv_lshl_add_u32 %s, %s, 7, %s'
          % (t, self.p, u, t, self.va, u, u, t, t, u))
        a('v_and_b32 %s, 3, %s\nv_lshl_add_u32 %s, %s, 2, %s\nv_add_u32 %s, %d, %s' % (u, self.p, t, u, t, vzw, L_ZB, t))
        a('v_mul_u32_u24 %s, 896, %s\nv_lshl_add_u32 %s, %s, 2, %s\nv_add_u32 %s, %d, %s' % (t, self.va, t, self.p, t, vhw, L_HB, t))
        a('v_lshrrev_b32 %s, 3, v0\nv_xor_b32 %s, %s, v0\nv_and_b32 %s, 7, %s\nv_lshlrev_b32 %s, 4, %s\nv_lshl_add_u32 %s, %s, 7, %s'
          % (t, u, t, u, u, u, u, t, t, u))
        a('v_add_u32 %s, %d, %s' % (vzr, L_ZB, t))
        a('s_mul_i32 s3, %s, 1792\ns_add_u32 s3, s3, %d\nv_add_u32 %s, s3, %s' % (self.sw, L_HB, vhr, self.l16))
        a('v_mov_b32 %s, %d\nv_cmp_gt_u32 vcc, 56, %s\nv_cndmask_b32 %s, %s, %s, vcc' % (t, OOB, self.l, vhs, t, self.l16))
        sh = s.alloc()
        a('s_lshl_b32 %s, %s, 2\ns_add_u32 %s, %s, %s\ns_mul_i32 %s, %s, 1792\ns_add_u32 %s, %s, %d'
          % (sh, self.sreg, sh, sh, self.sw, sh, sh, sh, sh, HR_OFF))
        nb = self.cfg.get('nb', 4)
        a.wait_lg0()
        self.stage_dma(0, nb)
        a.wait(vm=self.y2st)
        self.stamp('drain2')

        def gather():
            a('s_mov_b32 m0, %s' % sm)
            a('buffer_load_dwordx4 %s, %s, %s offen sc1 lds' % (vg0, self.WS, sg))
            a('s_add_u32 m0, %s, 4096' % sm)
            return a('buffer_load_dwordx4 %s, %s, %s offen sc1 lds' % (vg1, self.WS, sg))
        gl = gather()
        a('s_mov_b32 %s, %d' % (self.spin, SPIN))
        self.stage_dma(nb, 14)
        if self.cfg.get('wdpf', 1):
            a('s_lshl_b32 s3, %s, 2\ns_add_u32 s3, s3, %s\ns_mul_i32 s3, s3, %d\nv_lshlrev_b32 %s, 3, %s' % (self.si, self.sw, 98 * 128, t, self.l16))
            a('buffer_load_dword %s, %s, %s, s3 offen' % (self.junk, t, self.WD), 'unused')
            a('s_add_u32 s3, s3, %d' % (34 * 128))
            a('buffer_load_dword %s, %s, %s, s3 offen' % (self.junk, t, self.WD), 'unused')
        a.wait(vm=gl)
        lr, lf, lo = a.label('L_p3'), a.label('L_p3fail'), a.label('L_p3ok')
        a(lr + ':')
        a('s_barrier')
        A = v.alloc(32, 4); acc = v.alloc(16, 4)
        rd = {}
        for Pp in range(2):
            for q in range(4):
                for e in range(2):
                    rd[Pp, q] = a('ds_read_b64_tr_b16 %s, %s offset:%d' % (A.sub(16 * Pp + 4 * q + 2 * e, 2), vtr, (Pp * 4 + q) * 1024 + e * 512))
        for Pp in range(2):
            for q in range(4):
                a.wait(lg=rd[Pp, q])
                f = A.sub(16 * Pp + 4 * q, 4)
                for c, M in enumerate((self.F64r, self.F64i)):
                    d = acc.sub(8 * Pp + 4 * c, 4)
                    a('v_mfma_f32_16x16x32_bf16 %s, %s, %s, %s' % (d, M.sub(4 * q, 4), f, d if q else 0))
                self.sentinel_max(cnt, [f[k] for k in range(4)], Pp == 0 and q == 0)
        a('v_cmp_eq_u32 vcc, -1, %s\ns_cbranch_vccnz %s' % (cnt, lf))
        a(lo + ':')
        self.stamp('g2')

        def fail3():
            a(lf + ':')
            self.spin_out(lo)
            a('s_barrier')
            gather()
            a.wait_vm0()
            a('s_branch %s' % lr)
        self.tail.append(fail3)
        lab = a.label('L_noepo')
        a('s_or_b32 s3, s2, %s\ns_cmp_lg_u32 s3, 0\ns_cbranch_scc1 %s' % (self.sw, lab))
        a('v_mov_b32 %s, %s\nv_mov_b32 %s, %d' % (t, self.tag, u, FL_OFF + EPO))
        a('s_mov_b64 exec, 1')
        a('buffer_store_dword %s, %s, %s, 0 offen sc1' % (t, u, self.WS))
        a('s_mov_b64 exec, -1')
        a.nvm -= 1
        a(lab + ':')
        for Pp in range(2):
            for c in range(2):
                a('ds_write_b128 %s, %s offset:%d' % (vuw, acc.sub(8 * Pp + 4 * (1 - c), 4), (Pp * 32 + c * 8) * UROW))
        a.wait_lg0()
        a('s_barrier')
        v.release(A, acc, self.F64r, self.F64i)
        P = lambda R_, k: R_.sub(2 * k, 2)
        RE, IM, Aa, Bb, Y = v.alloc(8), v.alloc(6), v.alloc(6), v.alloc(6), v.alloc(14)
        t0, t1 = v.alloc(2), v.alloc(2)
        rd = {}
        for j in (1, 2, 3, 0):
            rd[j] = a('ds_read_b64 %s, %s offset:%d' % (P(RE, j), vur, j * 16 * UROW))
            if j: rd[j] = a('ds_read_b64 %s, %s offset:%d' % (P(IM, j - 1), vur, (j * 16 + 8) * UROW))
        for j in range(1, 4):
            a.wait(lg=rd[j])
            self.cmul(P(RE, j), P(IM, j - 1), P(self.C1, j - 1), P(self.S1, j - 1), +1, t0, t1)
        a.wait(lg=rd[0])
        X = self.Xf
        for d in range(1, 4):
            for j in range(1, 4):
                c, sg_ = self.k7(j * d)
                self.pk('fma', P(Aa, d - 1), P(RE, j), c, P(RE, 0) if j == 1 else P(Aa, d - 1), sel=[None, 'lo', None])
                if j == 1: self.pk('mul', P(Bb, d - 1), P(IM, 0), c, sel=[None, 'hi'], neg=[0, 0 if sg_ > 0 else 1])
                else: self.pk('fma', P(Bb, d - 1), P(IM, j - 1), c, P(Bb, d - 1), sel=[None, 'hi', None], neg=[0, 0 if sg_ > 0 else 1, 0])
        self.pk('add', t0, P(RE, 0), P(RE, 1))
        self.pk('add', t1, P(RE, 2), P(RE, 3))
        self.pk('add', t0, t0, P(X, 0))
        self.pk('add', P(Y, 0), t0, t1)
        for d in range(1, 4):
            self.pk('add', t0, P(Aa, d - 1), P(X, d))
            self.pk('add', t1, P(Aa, d - 1), P(X, 7 - d))
            self.pk('add', P(Y, d), t0, P(Bb, d - 1), neg=[0, 1])
            self.pk('add', P(Y, 7 - d), t1, P(Bb, d - 1))
        sq, sm_ = P(Aa, 0), P(Aa, 1)
        self.pk('mul', sq, P(Y, 0), P(Y, 0))
        self.pk('add', sm_, P(Y, 0), P(Y, 1))
        for d in range(1, 7):
            self.pk('fma', sq, P(Y, d), P(Y, d), sq)
            if d > 1: self.pk('add', sm_, sm_, P(Y, d))
        s1, s2, mean = Bb[0], Bb[1], Bb[2]
        a('v_add_f32 %s, %s, %s\nv_add_f32 %s, %s, %s' % (s1, sm_[0], sm_[1], s2, sq[0], sq[1]))
        for d in range(7):
            a('v_cvt_pk_bf16_f32 %s, %s, %s' % (X[d], Y[2 * d], Y[2 * d + 1]))
            a('ds_write_b32 %s, %s offset:%d' % (vhw, X[d], d * 128))
        self.row_stats(s1, s2, t, u, mean, t0[0])
        a('v_mul_f32 %s, -%s, %s' % (t0[1], mean, t0[0]))
        for d in range(7):
            self.pk('fma', P(Y, d), P(Y, d), t0, t0, sel=[None, 'lo', 'hi'])
            a('v_cvt_pk_bf16_f32 %s, %s, %s' % (X[7 + d], Y[2 * d], Y[2 * d + 1]))
            a('ds_write_b32 %s, %s offset:%d' % (vzw, X[7 + d], d * 1024))
        a.wait_lg0()
        a('s_barrier')
        o = v.alloc(16, 4)
        r0 = a('ds_read_b128 %s, %s' % (o.sub(0, 4), vzr))
        r1 = a('ds_read_b128 %s, %s offset:4096' % (o.sub(4, 4), vzr))
        r2 = a('ds_read_b128 %s, %s' % (o.sub(8, 4), vhr))
        r3 = a('ds_read_b128 %s, %s offset:896' % (o.sub(12, 4), vhr))
        a.wait(lg=r0)
        a('buffer_store_dwordx4 %s, %s, %s, %s offen sc1' % (o.sub(0, 4), self.vz0, self.WS, self.sZ))
        a.wait(lg=r1)
        a('buffer_store_dwordx4 %s, %s, %s, %s offen sc1' % (o.sub(4, 4), self.vz1, self.WS, self.sZ))
        a.wait(lg=r2)
        a('buffer_store_dwordx4 %s, %s, %s, %s offen sc1' % (o.sub(8, 4), vhs, self.WS, sh))
        a.wait(lg=r3)
        a('buffer_store_dwordx4 %s, %s, %s, %s offen offset:896 sc1' % (o.sub(12, 4), vhs, self.WS, sh))
        self.stamp('p3')
        v.release(RE, IM, Aa, Bb, Y, t0, t1, X, self.C1, self.S1, o, t, u, vtr, vuw, vur, vzw, vhw, vzr, vhr, vhs,
                  self.vz0, self.vz1, self.va, self.n, self.t16)
        s.release(sh, self.K7)
        v.release(vg0, vg1, cnt, self.ones, self.n16, self.g); s.release(sg, sm)

    def flag_store(self, soff, zero):
        a = self.a
        a('s_mov_b64 exec, 1')
        i = a('buffer_store_dword %s, %s, %s, %s offen sc1' % (zero, zero, self.WS, soff))
        a('s_mov_b64 exec, -1')
        return i

    def gemms(self):
        a, v, s = self.a, self.v, self.s
        cfg = self.cfg
        self.stage_read(1)
        zero = v.alloc(); t, u = v.alloc(), v.alloc()
        a('v_mov_b32 %s, 0' % zero)
        srf = s.alloc()
        a('s_lshl_b32 %s, %s, 4\ns_add_u32 %s, %s, %d' % (srf, self.sreg, srf, srf, FL_OFF + RFL))
        sA = s.alloc()
        a('s_lshl_b32 %s, %s, 2\ns_add_u32 %s, %s, %s\ns_mul_i32 %s, %s, 28672\ns_add_u32 %s, %s, %d'
          % (sA, self.srb, sA, sA, self.sw, sA, sA, sA, sA, Z2_OFF))
        vz0, vz1, vown = v.alloc(), v.alloc(), v.alloc()
        a('v_add_u32 %s, %d, %s\nv_add_u32 %s, %d, %s\nv_add_u32 %s, %s, %s' % (vz0, BIG, self.l16, vz1, BIG + 57344, self.l16, vown, self.sbig, self.l16))
        vd0, vd1, sring, sdn = v.alloc(), v.alloc(), s.alloc(), s.alloc()
        a('v_lshrrev_b32 %s, 3, %s\nv_mul_u32_u24 %s, 896, %s' % (t, self.l, t, t))
        a('v_bfe_u32 %s, %s, 4, 1\nv_lshlrev_b32 %s, 2, %s\nv_xor_b32 %s, %s, %s\nv_and_b32 %s, 7, %s' % (u, self.l, u, u, u, u, self.l, u, u))
        a('v_lshl_add_u32 %s, %s, 4, %s\nv_add_u32 %s, 7168, %s' % (vd0, u, t, vd1, vd0))
        a('s_mul_i32 %s, %s, 12288\ns_add_u32 %s, %s, %d' % (sring, self.sw, sring, sring, FFT))
        a('s_mul_i32 %s, %s, %d\ns_lshl_b32 s3, %s, 7\ns_add_u32 %s, %s, s3' % (sdn, self.sw, 32 * 896, self.scb, sdn, sdn))
        vdt = v.alloc(2)
        a('v_lshrrev_b32 %s, 5, %s\nv_lshlrev_b32 %s, 10, %s' % (t, self.l, t, t))
        a('v_bfe_u32 %s, %s, 2, 2\nv_lshl_add_u32 %s, %s, 7, %s' % (u, self.l, t, u, t))
        a('v_bfe_u32 %s, %s, 3, 1\ns_and_b32 s3, %s, 1\nv_xor_b32 %s, s3, %s\nv_lshl_add_u32 %s, %s, 6, %s' % (u, self.l, self.sw, u, u, t, u, t))
        a('v_and_b32 %s, 1, %s\nv_lshl_add_u32 %s, %s, 5, %s' % (u, self.l, t, u, t))
        a('v_bfe_u32 %s, %s, 4, 1\nv_lshl_add_u32 %s, %s, 4, %s' % (u, self.l, t, u, t))
        a('v_bfe_u32 %s, %s, 1, 1\nv_lshl_add_u32 %s, %s, 3, %s' % (u, self.l, t, u, t))
        a('v_add_u32 %s, %s, %s\nv_xor_b32 %s, 64, %s' % (vdt[0], sring, t, vdt[1], vdt[0]))
        sH, sHf = s.alloc(), s.alloc()
        a('s_mul_i32 %s, %s, 448\ns_mul_i32 s3, %s, 28\ns_add_u32 %s, %s, s3\ns_add_u32 %s, %s, %s\ns_lshl_b32 %s, %s, 10\ns_add_u32 %s, %s, %d'
          % (sH, self.srb, self.sw, sH, sH, sH, sH, self.sfs, sH, sH, sH, sH, HH_OFF))
        a('s_lshl_b32 %s, %s, 2\ns_add_u32 %s, %s, %s\ns_lshl_b32 %s, %s, 9\ns_lshl_b32 s3, %s, 4\ns_add_u32 %s, %s, s3\ns_add_u32 %s, %s, %d'
          % (sHf, self.srb, sHf, sHf, self.sw, sHf, sHf, self.sfs, sHf, sHf, sHf, sHf, FL_OFF + HFL))
        a('s_waitcnt vmcnt(0) lgkmcnt(0)')
        v.release(self.junk)
        self.stamp('drain3')
        lidle = a.label('L_idle')
        a('s_cmp_ge_u32 %s, 28\ns_cbranch_scc1 %s' % (self.si, lidle))

        def idle():
            a(lidle + ':')
            a('s_barrier')
            a('s_cmp_lg_u32 %s, 0\ns_cbranch_scc1 L_fin' % self.sw)
            self.flag_store(srf, zero)
            a('s_branch L_fin')
        self.tail.append(idle)

        CH = 4; NCH = 7
        def a_dma(c):
            a('s_add_u32 m0, %s, %d\ns_add_u32 s3, %s, %d' % (self.sbig, BIG + c * 4096, sA, c * 4096))
            for k in range(CH):
                i = a('buffer_load_dwordx4 %s, %s, s3 offen offset:%d sc1 lds' % (self.l16, self.WS, k * 1024))
            return i
        chk = v.alloc()
        vh = v.alloc(2); vpf, vpr, pf, pr = [v.alloc() for _ in range(4)]
        vt = v.alloc(16, 4)
        adma = {}
        l0 = a.label('L_a0')
        a(l0 + ':')
        for c in range(NCH): adma[c] = a_dma(c)

        def verify_read(c):
            a.wait(vm=adma[c])
            return [a('ds_read_b128 %s, %s offset:%d' % (vt.sub(4 * k, 4), vown, BIG + c * 4096 + k * 1024)) for k in range(CH)][-1]

        def verify_ops(c):
            lf, lo = a.label('L_afail'), a.label('L_aok')
            ops = []
            for k in range(CH):
                ops.append(lambda k=k: self.sentinel_max(chk, [vt[4 * k + e] for e in range(4)], k == 0))
            def fin():
                a('v_cmp_eq_u32 vcc, -1, %s\ns_cbranch_vccnz %s' % (chk, lf))
                a(lo + ':')
                a('s_barrier')
            ops.append(fin)
            def fail():
                a(lf + ':')
                self.spin_out(lo)
                if c == 0:
                    a.wait_vm0()
                    a('s_branch %s' % l0)
                    return
                a_dma(c)
                a.wait_vm0()
                for k in range(CH): a('ds_read_b128 %s, %s offset:%d' % (vt.sub(4 * k, 4), vown, BIG + c * 4096 + k * 1024))
                a.wait_lg0()
                self.sentinel_max(chk, [vt[e] for e in range(16)], True)
                a('v_cmp_eq_u32 vcc, -1, %s\ns_cbranch_vccnz %s\ns_branch %s' % (chk, lf, lo))
            self.tail.append(fail)
            return ops
        r = verify_read(0)
        a.wait(lg=r)
        for op in verify_ops(0): op()
        self.stamp('a0')
        lab = a.label('L_nohf')
        a('s_cmp_lg_u32 %s, 0\ns_cbranch_scc1 %s' % (self.sw, lab))
        self.flag_store(srf, zero)
        a.nvm -= 1
        a(lab + ':')

        accA, accB, zf = v.alloc(64, 4), v.alloc(64, 4), v.alloc(32, 4)
        zrd = {}
        def zread(sg, rt):
            ks = sg % 28
            off = rt * 28672 + ks * 1024
            base = vz0
            if rt >= 2: base, off = vz1, off - 57344
            zrd[sg, rt] = a('ds_read_b128 %s, %s offset:%d' % (zf.sub(16 * (sg % 2) + 4 * rt, 4), base, off))
        for rt in range(4): zread(0, rt)

        fill = {}
        def at(sg, rt, fn): fill.setdefault((sg, rt), []).append(fn)
        vr = {}
        for c in range(1, NCH):
            b = 4 * (c - 1)
            at(b, 0, lambda c=c: vr.__setitem__(c, verify_read(c)))
            ops = verify_ops(c)
            at(b + 1, 0, lambda c=c: a.wait(lg=vr[c]))
            for k in range(CH): at(b + 1, k, ops[k])
            at(b + 2, 3, ops[CH])
        s_tr = lambda n: max(2 * n + 2, 14 + n)
        ddma, dtr = {}, {}
        def d_dma(n):
            tt, fs = n // 14, n % 14
            if n >= 6: a.wait(lg=dtr[n - 6])
            a('s_add_u32 m0, %s, %d\ns_add_u32 s3, %s, %d' % (sring, (n % 6) * 2048, sdn, (128 * fs + 16 * tt) * 896))
            a('buffer_load_dwordx4 %s, %s, s3 offen lds' % (vd0, self.WD))
            a('s_add_u32 m0, m0, 1024')
            ddma[n] = a('buffer_load_dwordx4 %s, %s, s3 offen lds' % (vd1, self.WD))
        def d_tr(n, ct):
            if ct == 0: a.wait(vm=ddma[n])
            for e in range(2):
                b = 8 * n + 4 * ct + 2 * e
                dtr[n] = a('ds_read_b64_tr_b16 a[%d:%d], %s offset:%d' % (b, b + 1, vdt[ct], (n % 6) * 2048 + e * 512))
        late = []
        for n in range(28):
            sd = n if n < 6 else s_tr(n - 6) + 1
            at(sd, 2, lambda n=n: d_dma(n))
            for ct in range(2):
                if s_tr(n) < 56: at(s_tr(n), ct, lambda n=n, ct=ct: d_tr(n, ct))
                else: late.append(lambda n=n, ct=ct: d_tr(n, ct))
        hst = {}
        def epi_ops(acc, rt, tt):
            x = acc.sub(16 * rt, 16); ops = []
            for h in range(2):
                for r in range(4):
                    ops.append(lambda h=h, r=r: a('v_mul_f32 %s, %s, %s' % (x[8 * h + r], x[8 * h + r], x[8 * h + 4 + r])))
            for k in range(4):
                b = 8 * (k // 2) + 2 * (k % 2)
                ops.append(lambda k=k, b=b: a('v_cvt_pk_bf16_f32 %s, %s, %s' % (x[4 + k], x[b], x[b + 1])))
            def st():
                a('s_add_u32 s3, %s, %d' % (sH, rt * 112 * 1024 + tt * 14336))
                hst[tt, rt] = a('buffer_store_dwordx4 %s, %s, %s, s3 offen sc1' % (x.sub(4, 4), self.l16, self.WS))
            ops.append(st)
            return ops
        for rt in range(4):
            ops = epi_ops(accA, rt, 0)
            for k, op in enumerate(ops): at(29 + rt, min(k // 3, 3), op)
        def hflag0():
            a.wait(vm=hst[0, 3])
            self.flag_store(sHf, zero)
        at(cfg.get('hf0', 41), 3, hflag0)
        sHl, sPf, sPr = s.alloc(), s.alloc(), s.alloc()
        def g2setup():
            a('s_mul_i32 %s, %s, 224\ns_mul_i32 s3, %s, 28\ns_add_u32 %s, %s, s3\ns_lshl_b32 %s, %s, 10\ns_add_u32 %s, %s, %d'
              % (sHl, self.srb64, self.sw, sHl, sHl, sHl, sHl, sHl, sHl, HH_OFF))
            a('s_lshr_b32 s3, %s, 1\ns_mul_i32 s3, s3, 114688\nv_add_u32 %s, s3, %s' % (self.sw, vh[0], self.l16))
            a('s_sub_u32 s3, 114688, s3\nv_add_u32 %s, s3, %s' % (vh[1], self.l16))
        def g2setup2():
            a('s_lshr_b32 %s, %s, 1\ns_lshl_b32 %s, %s, 2\ns_add_u32 %s, %s, %s\ns_lshl_b32 %s, %s, 9\ns_add_u32 %s, %s, %d'
              % (sPf, self.srb64, sPf, sPf, sPf, sPf, self.sw, sPf, sPf, sPf, sPf, FL_OFF + HFL))
            a('s_lshl_b32 %s, %s, 7\ns_add_u32 %s, %s, %d' % (sPr, self.srb64, sPr, sPr, FL_OFF + RFL))
            a('v_min_u32 %s, 13, %s\nv_lshlrev_b32 %s, 4, %s' % (vpf, self.l, vpf, vpf))
            a('v_and_b32 %s, 7, %s\nv_lshlrev_b32 %s, 4, %s' % (vpr, self.l, vpr, vpr))
        at(34, 1, g2setup); at(35, 1, g2setup2)
        pl = {}
        def poll_issue():
            a('buffer_load_dword %s, %s, %s, %s offen sc1' % (pr, vpr, self.WS, sPr))
            pl[0] = a('buffer_load_dword %s, %s, %s, %s offen sc1' % (pf, vpf, self.WS, sPf))
        def poll_check0():
            lf, lo = a.label('L_hfail'), a.label('L_hok')
            a.wait(vm=pl[0])
            a('v_max_u32 %s, %s, %s\nv_cmp_eq_u32 vcc, -1, %s\ns_cbranch_vccnz %s' % (pf, pf, pr, pf, lf))
            a(lo + ':')
            def fail():
                a(lf + ':')
                self.spin_out(lo)
                poll_issue()
                a.wait_vm0()
                a('v_max_u32 %s, %s, %s\nv_cmp_eq_u32 vcc, -1, %s\ns_cbranch_vccnz %s\ns_branch %s' % (pf, pf, pr, pf, lf, lo))
            self.tail.append(fail)
        p0 = cfg.get('hp0', 47)
        at(p0, 3, poll_issue); at(p0 + 4, 3, poll_check0)
        v.release(t, u)
        early = v.alloc(4 * cfg.get('early', 13), 4)
        slots = [early.sub(4 * k, 4) for k in range(early.n // 4)] + [vt.sub(4 * k, 4) for k in range(4)]
        nearly = len(slots)
        slots += [zf.sub(4 * k, 4) for k in range(8)]
        hld, hslot = {}, {}
        def h_load(n, rt, slot):
            if (n % 4 == 0 and rt == 0) or h_load.force:
                a('s_add_u32 %s, %s, %d' % (h_load.s, sHl, (n // 4) * 4096)); h_load.force = False
            hslot[n, rt] = slot
            hld[n, rt] = a('buffer_load_dwordx4 %s, %s, %s, %s offen offset:%d sc1' % (slot, vh[rt], self.WS, h_load.s, (n % 4) * 1024))
        h_load.s = s.alloc(); h_load.force = True
        order = [(n, rt) for n in range(28) for rt in range(2)]
        gaps = [(sg, rt) for sg in range(p0 + 5, 56) for rt in range(4)]
        per = -(-nearly // len(gaps))
        for k in range(nearly):
            sg, rt = gaps[k // per]
            at(sg, rt, lambda k=k: h_load(order[k][0], order[k][1], slots[k]))

        for sg in range(56):
            acc = accA if sg < 28 else accB
            for rt in range(4):
                a.wait(lg=zrd[sg, rt])
                d = acc.sub(16 * rt, 16)
                a('v_mfma_f32_32x32x16_bf16 %s, a[%d:%d], %s, %s' % (d, 4 * sg, 4 * sg + 3, zf.sub(16 * (sg % 2) + 4 * rt, 4), d if sg % 28 else 0))
                if sg < 55: zread(sg + 1, rt)
                if (sg, rt) == (28, 0): self.stamp('pass1')
                if (sg, rt) == (p0 + 4, 3): self.stamp('prepoll')
                for fn in fill.get((sg, rt), []): fn()
        self.stamp('g1end')
        v.release(vz0, vz1, vown, vd0, vd1, chk)
        nxt = nearly
        for k in range(nearly, min(28, len(slots))):
            h_load(order[k][0], order[k][1], slots[k]); nxt = k + 1
        for fn in late: fn()
        acc = accA
        def g2_mfma(n, rt):
            a.wait(vm=hld[n, rt])
            if n == 27 and rt == 0: a.wait(lg=dtr[27])
            for ct in range(2):
                d = acc.sub(16 * (ct + 2 * rt), 16)
                a('v_mfma_f32_32x32x16_bf16 %s, a[%d:%d], %s, %s' % (d, 8 * n + 4 * ct, 8 * n + 4 * ct + 3, hslot[n, rt], d if n else 0))
        a.wait(lg=dtr[26])
        done = 0
        for rt in range(4):
            for k, op in enumerate(epi_ops(accB, rt, 1)):
                op()
                if k == 7:
                    g2_mfma(*order[done]); done += 1
        free = [accB.sub(16 * rt + 8, 4) for rt in range(4)] + [accB.sub(16 * rt + 12, 4) for rt in range(4)] + [accB.sub(16 * rt, 4) for rt in range(4)]
        while nxt < 28:
            h_load(order[nxt][0], order[nxt][1], free.pop(0)); nxt += 1
        f1 = cfg.get('hf1', 20)
        while done < f1:
            g2_mfma(*order[done]); free.append(hslot[order[done]]); done += 1
        a.wait(vm=hst[1, 3])
        a('s_add_u32 s3, %s, 256' % sHf)
        self.flag_store('s3', zero)
        vo, vr_ = v.alloc(), v.alloc(); so, sr = s.alloc(), s.alloc()
        hres = [free.pop(0), free.pop(0)]
        a('v_lshrrev_b32 %s, 5, %s\nv_lshlrev_b32 %s, 5, %s' % (vr_, self.l, vr_, vr_))
        a('v_mul_u32_u24 %s, 896, %s\nv_add_u32 %s, %s, %s' % (pf, self.p, pf, pf, vr_))
        a('v_and_b32 %s, 7, %s\nv_lshlrev_b32 %s, 5, %s\nv_lshrrev_b32 %s, 3, %s\nv_add_u32 %s, %s, %s' % (vo, self.l, vo, vo, pr, self.p, vo, vo, pr))
        a('v_mul_u32_u24 %s, 896, %s\nv_add_u32 %s, %s, %s\nv_mov_b32 %s, %s' % (vo, vo, vo, vo, vr_, vr_, pf))
        a('s_lshl_b32 %s, %s, 1\ns_and_b32 s3, %s, 1\ns_add_u32 %s, %s, s3\ns_lshl_b32 %s, %s, 6' % (so, self.scb, self.sw, so, so, so, so))
        a('s_lshl_b32 %s, %s, 1\ns_lshr_b32 s3, %s, 1\ns_add_u32 %s, %s, s3' % (sr, self.srb64, self.sw, sr, sr))
        a('s_and_b32 s3, %s, 7\ns_lshl_b32 s3, s3, 2\ns_lshr_b32 %s, %s, 3\ns_lshl_b32 %s, %s, 8\ns_add_u32 s3, s3, %s' % (sr, sPr, sr, sPr, sPr, sPr))
        a('s_mul_i32 s3, s3, 896\ns_mul_i32 %s, %s, %d\ns_add_u32 %s, %s, %s\ns_add_u32 %s, %s, %d\ns_add_u32 %s, %s, s3'
          % (sr, sr, 32 * 896, sr, sr, so, sr, sr, HR_OFF, so, so))
        a('buffer_load_dwordx4 %s, %s, %s, %s offen sc1' % (hres[0], vr_, self.WS, sr))
        hrl = a('buffer_load_dwordx4 %s, %s, %s, %s offen offset:16 sc1' % (hres[1], vr_, self.WS, sr))
        while done < 28:
            g2_mfma(*order[done]); free.append(hslot[order[done]]); done += 1
        for k in range(4):
            o = order[k]
            free.append(hslot[o])
        lp, lo = a.label('L_h1poll'), a.label('L_h1ok')
        a('s_add_u32 %s, %s, 256' % (sPf, sPf))
        a(lp + ':')
        a('buffer_load_dword %s, %s, %s, %s offen sc1' % (pf, vpf, self.WS, sPf))
        a.wait_vm0()
        a('v_cmp_eq_u32 vcc, -1, %s\ns_cbranch_vccz %s' % (pf, lo))
        self.spin_out(lo)
        a('s_branch %s' % lp)
        a(lo + ':')
        self.stamp('h1')
        free += [accB.sub(16 * rt + 4, 4) for rt in range(4)]
        order2 = [(n, 1) for n in range(14, 28)] + [(n, 0) for n in range(14, 28)]
        assert len(free) >= 28, len(free)
        last = None
        for n, rt in order2:
            h_load.force = last is None or last // 4 != n // 4
            last = n
            h_load(n, rt, free.pop(0))
        vrw = v.alloc(); vrr = [v.alloc() for _ in range(3)]
        a('v_add_u32 %s, %s, %s' % (vrw, sring, self.l16))
        for j in range(1, 4):
            a('s_xor_b32 s3, %s, %d\ns_mul_i32 s3, s3, 12288\ns_add_u32 s3, s3, %d\nv_add_u32 %s, s3, %s' % (self.sw, j, FFT + (j - 1) * 4096, vrr[j - 1], self.l16))
        a.wait(lg=dtr[27])
        def red_write(j, i):
            a('ds_write_b128 %s, %s offset:%d' % (vrw, acc.sub(16 * j + 4 * i, 4), (j - 1) * 4096 + i * 1024))
        wr = [(j, i) for j in (2, 3) for i in range(4)]
        for k, (n, rt) in enumerate(order2):
            a.wait(vm=hld[n, rt])
            for ct in ((1, 0) if rt == 0 else (0, 1)):
                d = acc.sub(16 * (ct + 2 * rt), 16)
                a('v_mfma_f32_32x32x16_bf16 %s, a[%d:%d], %s, %s' % (d, 8 * n + 4 * ct, 8 * n + 4 * ct + 3, hslot[n, rt], d))
            if k >= 17 and wr: red_write(*wr.pop(0))
        res = v.alloc(16) if False else early.sub(0, 16)
        for k in range(8):
            a('v_lshlrev_b32 %s, 16, %s\nv_and_b32 %s, 0xffff0000, %s' % (res[2 * k], hres[k // 4][k % 4], res[2 * k + 1], hres[k // 4][k % 4]))
        for i in range(4): red_write(1, i)
        for k in range(8):
            self.pk('add', res.sub(2 * k, 2), res.sub(2 * k, 2), acc.sub(2 * k, 2))
        a.wait_lg0()
        a('s_barrier')
        rd = {}
        for i in range(4):
            for j in range(1, 4):
                rd[j, i] = a('ds_read_b128 %s, %s offset:%d' % (acc.sub(16 * j + 4 * i, 4), vrr[j - 1], i * 1024))
        for i in range(4):
            for j in range(1, 4):
                a.wait(lg=rd[j, i])
                for e in range(2):
                    self.pk('add', res.sub(4 * i + 2 * e, 2), res.sub(4 * i + 2 * e, 2), acc.sub(16 * j + 4 * i + 2 * e, 2))
            for e in range(2):
                a('v_cvt_pk_bf16_f32 %s, %s, %s' % (acc[2 * i + e], res[4 * i + 2 * e], res[4 * i + 2 * e + 1]))
            if i % 2:
                a('buffer_store_dwordx4 %s, %s, %s, %s offen offset:%d' % (acc.sub(2 * i - 2, 4), vo, self.OUT, so, 8 * i - 8))

    def finish(self):
        a = self.a
        a('L_fin:')
        if self.stamps:
            a('s_waitcnt vmcnt(0) lgkmcnt(0)')
            self.stamp('done')
            a('s_waitcnt lgkmcnt(0)')
            a('s_lshl_b32 s3, s2, 2\ns_add_u32 s3, s3, %s\ns_lshl_b32 s3, s3, 8\ns_add_u32 s3, s3, %d' % (self.sw, ST_OFF))
            a('v_mov_b32 v1, 0\ns_mov_b64 exec, 1')
            for k, (nm, r) in enumerate(self.stamps):
                a('v_mov_b32 v2, %s' % r[0])
                a('buffer_store_dword v2, v1, %s, s3 offen offset:%d' % (self.WS, 4 * k))
        a('L_end:')
        a('s_endpgm')
        for fn in self.tail: fn()

    def build(self):
        self.s.free.discard(3)
        self.prologue(); self.p1(); self.p2(); self.p3(); self.gemms(); self.finish()
        nops = self.a.fix_hazards()
        errs = self.a.check_waits()
        return nops, errs


HEAD = '''; Kernarg layout (80 bytes, pointers only, base s[0:1]):
; @launch grid=(256,1,1) block=(256,1,1) lds=%d
.amdgcn_target "amdgcn-amd-amdhsa--gfx950"
.text
.globl %s
.p2align 8
.type %s,@function
%s:
'''
TAIL = '''
.fill 8192, 4, 0xbf800000
.section .rodata,"a"
.p2align 6
.amdhsa_kernel %s
  .amdhsa_next_free_vgpr 512
  .amdhsa_next_free_sgpr 102
  .amdhsa_accum_offset 256
  .amdhsa_group_segment_fixed_size 0
  .amdhsa_kernarg_size 80
  .amdhsa_user_sgpr_count 2
  .amdhsa_user_sgpr_kernarg_segment_ptr 1
  .amdhsa_system_sgpr_workgroup_id_x 1
.end_amdhsa_kernel
'''


def generate(cfg, path):
    g = Gen(cfg)
    nops, errs = g.build()
    for e in errs: print('WAIT-CHECK:', e)
    src = HEAD % (LDS_BYTES, KNAME, KNAME, KNAME) + g.a.text() + TAIL % KNAME
    if cfg.get('stamps'): src += '; cfg ' + ' '.join('%s=%s' % kv for kv in cfg.items()) + '\n'
    open(path, 'w').write(src)
    import os
    if g.stamps: open(path[:-2] + '.stamps', 'w').write(' '.join(x[0] for x in g.stamps))
    elif os.path.exists(path[:-2] + '.stamps'): os.remove(path[:-2] + '.stamps')
    n = sum(1 for x in g.a.ins if x.kind not in ('label', 'dir'))
    print('%s: %d instructions, %d hazard states, vgpr hi %d, sgpr hi %d, stamps %s' % (path, n, nops, g.v.hi, g.s.hi, [x[0] for x in g.stamps]))
    return g


if __name__ == '__main__':
    cfg = {}
    path = 'k.s'
    for arg in sys.argv[1:]:
        if '=' in arg:
            k, val = arg.split('='); cfg[k] = int(val) if val.lstrip('-').isdigit() else val
        else: path = arg
    generate(cfg, path)
```

```python
import math, struct, sys
from asmdsl import *

KNAME = 'sequential_preLN__spectral_gfnet__glu_gated_bilinear__prompt_kernel'
S, D, F = 2048, 448, 1792

Y1_OFF, Y2_OFF, Z2_OFF, HR_OFF, HH_OFF, FL_OFF, ST_OFF, WT_OFF = 0, 2 << 20, 4 << 20, 6 << 20, 8 << 20, 16 << 20, 17 << 20, 18 << 20
WS_BYTES = 20 << 20
YS = 8192
HFL = 0
RFL = 32768
CFL = 65536
EPO = 131072
OOB = 0x7f000000

BIG = 0
FFT = 114688
L_V, L_Y1G, L_T = FFT, FFT + 8192, FFT + 16384
L_Y2G, L_U, L_ZB, L_HB = FFT, FFT + 8192, FFT + 26112, FFT + 33280
L_W = FFT + 24576
UROW = 272
LDS_BYTES = 163840
SPIN = 1 << 16


def f2u(x):
    return struct.unpack('<I', struct.pack('<f', x))[0]


def hexf(x):
    return '0x%08x' % f2u(x)


class Gen:
    def __init__(self, cfg):
        self.cfg = cfg
        self.a = Asm()
        self.v = Regs('v', 1, 256)
        self.s = Regs('s', 3, 102)
        self.stamps = []

    def stamp(self, name):
        if not self.cfg.get('stamps') or name in self.cfg.get('skip', '').split(','):
            return
        r = self.s.alloc(2)
        self.stamps.append((name, r))
        self.a('%s %s' % ('s_memtime' if self.cfg.get('clk') else 's_memrealtime', r))

    def pk(self, op, d, x, y, z=None, neg=None, sel=None):
        srcs = [x, y] + ([z] if z is not None else [])
        n = len(srcs)
        sel = sel or [None] * n
        neg = neg or [0] * n
        lo = [1 if q == 'hi' else 0 for q in sel]
        hi = [0 if q == 'lo' else 1 for q in sel]
        m = ''
        if any(lo): m += ' op_sel:[%s]' % ','.join(map(str, lo))
        if not all(hi): m += ' op_sel_hi:[%s]' % ','.join(map(str, hi))
        if any(neg): m += ' neg_lo:[%s] neg_hi:[%s]' % (','.join(map(str, neg)), ','.join(map(str, neg)))
        return self.a('v_pk_%s_f32 %s, %s%s' % (op, d, ', '.join(map(str, srcs)), m))

    def cmul(self, re, im, c, sn, sign, t0, t1):
        self.pk('mul', t0, im, sn)
        self.pk('mul', t1, re, sn)
        self.pk('fma', re, re, c, t0, neg=[0, 0, 1 if sign > 0 else 0])
        self.pk('fma', im, im, c, t1, neg=[0, 0, 0 if sign > 0 else 1])

    def round_bf16(self, d, x):
        self.a('v_cvt_pk_bf16_f32 %s, 0, %s' % (d, x))

    def row_stats(self, s1, s2, t0, t1, mean, rs):
        a = self.a
        for n in (8, 4, 2, 1):
            a('v_add_f32_dpp %s, %s, %s row_ror:%d row_mask:0xf bank_mask:0xf' % (s1, s1, s1, n))
            a('v_add_f32_dpp %s, %s, %s row_ror:%d row_mask:0xf bank_mask:0xf' % (s2, s2, s2, n))
        a('v_mov_b32 %s, %s\nv_mov_b32 %s, %s' % (t0, s1, t1, s2))
        a('v_permlane16_swap_b32 %s, %s\nv_permlane16_swap_b32 %s, %s' % (s1, t0, s2, t1))
        a('v_add_f32 %s, %s, %s\nv_add_f32 %s, %s, %s' % (s1, s1, t0, s2, s2, t1))
        a('v_mul_f32 %s, %s, %s' % (s1, hexf(1.0 / D), s1))
        a('v_mul_f32 %s, %s, %s' % (s2, hexf(1.0 / D), s2))
        a('v_fma_f32 %s, -%s, %s, %s' % (s2, s1, s1, s2))
        a('v_max_f32 %s, 0, %s' % (s2, s2))
        self.round_bf16(s2, s2)
        a('v_add_f32 %s, %s, %s' % (s2, hexf(1e-5), s2))
        self.round_bf16(s2, s2)
        a('v_sqrt_f32 %s, %s' % (s2, s2))
        self.round_bf16(mean, s1)
        self.round_bf16(s2, s2)
        a('v_rcp_f32 %s, %s' % (rs, s2))

    def sentinel_max(self, acc, regs, first):
        regs = list(regs)
        if first:
            self.a('v_max3_u32 %s, %s, %s, %s' % (acc, regs[0], regs[1], regs[2])); regs = regs[3:]
        while len(regs) >= 2:
            self.a('v_max3_u32 %s, %s, %s, %s' % (acc, acc, regs[0], regs[1])); regs = regs[2:]
        if regs:
            self.a('v_max_u32 %s, %s, %s' % (acc, acc, regs[0]))

    def spin_out(self, lab):
        self.a('s_cmp_eq_u32 %s, 0\ns_cbranch_scc1 %s\ns_sub_u32 %s, %s, 1' % (self.spin, lab, self.spin, self.spin))

    def srd(self, slot, nbytes):
        r = self.s.alloc(4)
        self.a('s_load_dwordx2 %s, s[0:1], %d' % (r[0:2], slot * 8))
        self.a('s_mov_b32 %s, %d\ns_mov_b32 %s, 0x20000' % (r[2], nbytes, r[3]))
        return r

    def prologue(self):
        a, v, s = self.a, self.v, self.s
        cfg = self.cfg
        a('s_cmp_ge_u32 s2, 256\ns_cbranch_scc1 L_end')
        self.stamp('start')
        self.WS = self.srd(9, WS_BYTES)
        self.X = self.srd(0, S * D * 2)
        self.sx, self.si, self.sw, self.sreg = s.alloc(), s.alloc(), s.alloc(), s.alloc()
        self.l, self.n16, self.g, self.p = v.alloc(), v.alloc(), v.alloc(), v.alloc()
        self.l16, self.t16, self.ones = v.alloc(), v.alloc(), v.alloc(4)
        t = v.alloc(); self.junk = v.alloc()
        if cfg.get('scr'): a('s_lshr_b32 %s, s2, 5\ns_and_b32 %s, s2, 31' % (self.sx, self.si))
        else: a('s_and_b32 %s, s2, 7\ns_lshr_b32 %s, s2, 3' % (self.sx, self.si))
        if cfg.get('codepf', 1):
            pc = s.alloc(2)
            a('s_getpc_b64 %s' % pc)
            a('s_lshl_b32 s3, %s, 10' % self.si)
            a('v_and_b32 %s, 7, v0\nv_lshl_add_u32 %s, %s, 7, s3' % (t, t, t))
            a('global_load_dword %s, %s, %s' % (self.junk, t, pc), 'unused')
            s.release(pc)
        self.WR = self.srd(1, S * 225 * 2)
        self.WI = self.srd(2, S * 225 * 2)
        self.WG = self.srd(4, D * F * 2)
        self.WU = self.srd(5, D * F * 2)
        self.WD = self.srd(6, F * D * 2)
        self.OUT = self.srd(7, S * D * 2)
        a('v_lshrrev_b32 %s, 6, v0' % t)
        a('v_and_b32 %s, 63, v0' % self.l)
        a('v_readfirstlane_b32 %s, %s' % (self.sw, t))
        a('v_lshlrev_b32 %s, 4, v0' % self.t16)
        a('v_lshlrev_b32 %s, 4, %s' % (self.l16, self.l))
        a('s_lshl_b32 %s, %s, 5\ns_add_u32 %s, %s, %s' % (self.sreg, self.sx, self.sreg, self.sreg, self.si))
        for k in range(4):
            a('v_mov_b32 %s, -1' % self.ones[k])
        a('v_and_b32 %s, 31, %s' % (self.p, self.l))
        a('v_and_b32 %s, 15, %s' % (self.n16, self.l))
        a('v_lshrrev_b32 %s, 4, %s' % (self.g, self.l))
        vx = v.alloc(); sxo = s.alloc(); self.sY1, self.sY2, self.sWt = s.alloc(), s.alloc(), s.alloc()
        a('v_lshrrev_b32 %s, 5, %s' % (t, self.l))
        a('v_mul_u32_u24 %s, %d, %s' % (t, 32 * 896, t))
        a('v_lshl_add_u32 %s, %s, 2, %s' % (vx, self.p, t))
        a('s_lshl_b32 %s, %s, 2\ns_add_u32 %s, %s, %s\ns_lshl_b32 %s, %s, 6\ns_add_u32 %s, %s, %s\ns_mul_i32 %s, %s, 896'
          % (sxo, self.sx, sxo, sxo, self.sw, sxo, sxo, sxo, sxo, self.si, sxo, sxo))
        a('s_mul_i32 %s, %s, %d' % (self.sY1, self.sreg, YS))
        a('s_add_u32 %s, %s, %d\ns_add_u32 %s, %s, %d' % (self.sY2, self.sY1, Y2_OFF, self.sWt, self.sY1, WT_OFF))
        self.t16b = vt2 = v.alloc()
        a('v_add_u32 %s, 4096, %s' % (vt2, self.t16))
        self.n = v.alloc()
        a('s_lshl_b32 s3, %s, 4\nv_add_u32 %s, s3, %s' % (self.sw, self.n, self.n16))
        vwo = v.alloc(4); ssg, swb = s.alloc(), s.alloc()
        a('s_and_b32 %s, %s, 15\ns_lshr_b32 s3, %s, 6\ns_lshl_b32 s3, s3, 4\ns_add_u32 %s, %s, s3' % (swb, self.sreg, self.sreg, swb, swb))
        a('s_and_b32 s3, %s, 48\ns_lshl_b32 s3, s3, 4\ns_add_u32 %s, %s, s3' % (self.sreg, swb, swb))
        a('s_cmp_ge_u32 %s, 2\ns_cselect_b32 %s, -1, 1' % (self.sw, ssg))
        a('v_lshrrev_b32 %s, 5, %s\nv_lshl_add_u32 %s, %s, 6, %s\nv_mul_lo_u32 %s, %s, %s' % (t, self.l, t, t, swb, t, t, ssg))
        for n in range(4):
            o = vwo[n]
            a('s_mul_i32 s3, %s, %d' % (ssg, 128 * (n % 2) + 1024 * (n // 2)))
            a('v_add_u32 %s, s3, %s\nv_and_b32 %s, 2047, %s\nv_mul_u32_u24 %s, 450, %s' % (o, t, o, o, o, o))
            a('v_and_b32 %s, -4, %s\nv_lshl_add_u32 %s, %s, 4, %s' % (o, o, o, self.p, o))
        s.release(ssg, swb)
        self.consts_a()
        a('s_waitcnt lgkmcnt(0)')
        if cfg.get('wsoff'):
            a('s_add_u32 %s, %s, %d\ns_addc_u32 %s, %s, 0' % (self.WS[0], self.WS[0], cfg['wsoff'] << 20, self.WS[1], self.WS[1]))
        self.tagbase = s.alloc(2)
        a('s_add_u32 %s, %s, %d\ns_addc_u32 %s, %s, 0' % (self.tagbase[0], self.WS[0], FL_OFF, self.tagbase[1], self.WS[1]))
        self.stamp('karg')
        self.tag = s.alloc()
        a('s_load_dword %s, %s, %d' % (self.tag, self.tagbase, EPO))
        ops = {}
        def do_c():
            if cfg.get('noclr1'): a('s_mov_b32 %s, 0' % self.WS[2])
            for so in (self.sY1, self.sWt):
                a('buffer_store_dwordx4 %s, %s, %s, %s offen sc1' % (self.ones, self.t16, self.WS, so))
                ops['c'] = a('buffer_store_dwordx4 %s, %s, %s, %s offen sc1' % (self.ones, vt2, self.WS, so))
            if cfg.get('noclr1'): a('s_mov_b32 %s, %d' % (self.WS[2], WS_BYTES))
        self.xr = v.alloc(7)
        def do_x():
            nt = ' nt' if cfg.get('xnt', 1) else ''
            for d2 in range(7):
                self.xload = a('buffer_load_dword %s, %s, %s, %s offen offset:%d%s' % (self.xr[d2], vx, self.X, sxo, 128 * d2, nt))
        def do_w():
            nt = ' nt' if cfg.get('wnt', 0) else ''
            if cfg.get('now'): a('s_mov_b32 %s, 0' % self.WR[2])
            a('s_and_b32 s3, %s, 1\ns_cmp_eq_u32 s3, 0' % self.sw)
            a('s_cselect_b32 %s, %s, %s\ns_cselect_b32 %s, %s, %s' % (self.WR[0], self.WR[0], self.WI[0], self.WR[1], self.WR[1], self.WI[1]))
            a('s_lshl_b32 s3, %s, 12' % self.sw)
            for n in range(4):
                a('s_add_u32 m0, s3, %d' % (L_W + 1024 * n))
                self.wload = a('buffer_load_dwordx4 %s, %s, 0 offen%s lds' % (vwo[n], self.WR, nt))
        self.first_ops = dict(c=do_c, x=do_x, w=do_w)
        order = cfg.get('order', 'cxw')
        for ch in order.split('_')[0]: self.first_ops[ch]()
        self.late_ops = order.split('_')[1] if '_' in order else ''
        self.stamp('wiss')
        u = v.alloc()
        self.srb, self.sfs, self.srb64, self.scb = s.alloc(), s.alloc(), s.alloc(), s.alloc()
        q7 = s.alloc()
        a('s_mul_i32 %s, %s, 37\ns_lshr_b32 %s, %s, 8' % (q7, self.si, q7, q7))
        a('s_mul_i32 %s, %s, 7\ns_sub_u32 %s, %s, %s' % (self.scb, q7, self.scb, self.si, self.scb))
        a('s_lshl_b32 %s, %s, 2\ns_add_u32 %s, %s, %s' % (self.srb64, self.sx, self.srb64, self.srb64, q7))
        a('s_lshr_b32 %s, %s, 1\ns_lshl_b32 %s, %s, 2\ns_add_u32 %s, %s, %s' % (self.srb, self.sx, self.srb, self.srb, self.srb, self.srb, q7))
        a('s_and_b32 %s, %s, 1\ns_mul_i32 %s, %s, 7\ns_add_u32 %s, %s, %s' % (self.sfs, self.sx, self.sfs, self.sfs, self.sfs, self.sfs, self.scb))
        s.release(q7)
        if cfg.get('gupf', 1):
            pf = s.alloc(4)
            a('s_and_b32 s3, %s, 1\ns_cmp_eq_u32 s3, 0' % self.sw)
            a('s_cselect_b32 %s, %s, %s\ns_cselect_b32 %s, %s, %s' % (pf[0], self.WG[0], self.WU[0], pf[1], self.WG[1], self.WU[1]))
            a('s_mov_b32 %s, %d\ns_mov_b32 %s, 0x20000' % (pf[2], D * F * 2, pf[3]))
            a('v_mul_u32_u24 %s, 3584, %s\nv_min_u32 %s, 13, %s\nv_lshl_add_u32 %s, %s, 7, %s' % (t, self.g, u, self.n16, t, u, t))
            a('s_lshl_b32 %s, %s, 1\ns_lshr_b32 s3, %s, 1\ns_add_u32 %s, %s, s3\ns_mul_i32 %s, %s, %d' % (sxo, self.si, self.sw, sxo, sxo, sxo, sxo, 7 * 3584))
            a('s_and_b32 s3, %s, 1\ns_mul_i32 s3, s3, 1792\ns_add_u32 %s, %s, s3\ns_add_u32 s3, %s, %d' % (self.sx, sxo, sxo, sxo, 4 * 3584))
            a('buffer_load_dword %s, %s, %s, %s offen' % (self.junk, t, pf, sxo), 'unused')
            a('buffer_load_dword %s, %s, %s, s3 offen' % (self.junk, t, pf), 'unused')
            s.release(pf)
        a('s_cmp_lt_u32 %s, %d' % (self.si, 0 if cfg.get('nostage') else 28))
        if cfg.get('nowd'): a('s_mov_b32 %s, 0' % self.WD[2])
        a('s_cselect_b32 %s, %s, 0\ns_cselect_b32 %s, %s, 0' % (self.WG[2], self.WG[2], self.WU[2], self.WU[2]))
        self.stamp('issued')
        self.vsg, self.vsu, self.sst, self.sbig = v.alloc(), v.alloc(), s.alloc(), s.alloc()
        a('v_lshrrev_b32 %s, 2, %s\nv_mul_u32_u24 %s, 3584, %s' % (t, self.l, t, t))
        a('v_and_b32 %s, 3, %s\nv_lshl_add_u32 %s, %s, 4, %s' % (self.vsg, self.l, self.vsg, self.vsg, t))
        a('v_xor_b32 %s, 32, %s' % (self.vsu, self.vsg))
        a('s_lshl_b32 %s, %s, 2\ns_add_u32 %s, %s, %s\ns_lshl_b32 %s, %s, 6' % (self.sst, self.sfs, self.sst, self.sst, self.sw, self.sst, self.sst))
        a('s_mul_i32 %s, %s, 28672' % (self.sbig, self.sw))
        self.consts_b()
        for ch in self.late_ops: self.first_ops[ch]()
        v.release(vwo, vx)
        a.wait(vm=ops['c'])
        a.wait_lg0()
        s.release(self.tagbase)
        a('s_mul_i32 %s, %s, 0x9e3779b1\ns_add_u32 %s, %s, 0x7f4a7c15' % (self.tag, self.tag, self.tag, self.tag))
        a('s_barrier')
        lab = a.label('L_noarr')
        a('s_cmp_lg_u32 %s, 0\ns_cbranch_scc1 %s' % (self.sw, lab))
        a('s_lshl_b32 s3, %s, 4\ns_add_u32 s3, s3, %d' % (self.sreg, FL_OFF + CFL))
        a('v_mov_b32 %s, %s\nv_lshlrev_b32 %s, 12, v0' % (t, self.tag, u))
        a('s_mov_b64 exec, 0xff')
        a('buffer_store_dword %s, %s, %s, s3 offen sc1' % (t, u, self.WS))
        a('s_mov_b64 exec, -1')
        a.nvm -= 1
        a(lab + ':')
        self.stamp('clr1')
        if cfg.get('xfirst'):
            a.wait(vm=self.xload)
            self.stamp('x0')
        if cfg.get('noclr'): a('s_mov_b32 %s, 0' % self.WS[2])
        a('buffer_store_dwordx4 %s, %s, %s, %s offen sc1' % (self.ones, self.t16, self.WS, self.sY2))
        a('buffer_store_dwordx4 %s, %s, %s, %s offen sc1' % (self.ones, vt2, self.WS, self.sY2))
        self.vz0, self.vz1, self.sZ = v.alloc(), v.alloc(), s.alloc()
        a('v_lshrrev_b32 %s, 3, v0\nv_lshlrev_b32 %s, 9, %s' % (t, t, t))
        a('v_and_b32 %s, 7, v0\nv_lshl_add_u32 %s, %s, 4, %s' % (self.vz0, self.vz0, self.vz0, t))
        a('v_add_u32 %s, 16384, %s' % (self.vz1, self.vz0))
        a('v_mov_b32 %s, %d' % (t, OOB))
        a('v_cmp_gt_u32 vcc, 192, v0')
        a('v_cndmask_b32 %s, %s, %s, vcc' % (self.vz1, t, self.vz1))
        a('s_lshr_b32 %s, %s, 2\ns_mul_i32 %s, %s, 28672' % (self.sZ, self.sreg, self.sZ, self.sZ))
        a('s_and_b32 %s, %s, 3\ns_lshl_b32 %s, %s, 7' % (sxo, self.si, sxo, sxo))
        a('s_add_u32 %s, %s, %s\ns_add_u32 %s, %s, %d' % (self.sZ, self.sZ, sxo, self.sZ, self.sZ, Z2_OFF))
        a('buffer_store_dwordx4 %s, %s, %s, %s offen sc1' % (self.ones, self.vz0, self.WS, self.sZ))
        a('buffer_store_dwordx4 %s, %s, %s, %s offen sc1' % (self.ones, self.vz1, self.WS, self.sZ))
        a('v_cmp_gt_u32 vcc, 16, v0')
        a('v_cndmask_b32 %s, %s, %s, vcc' % (u, t, self.t16))
        a('s_lshl_b32 %s, s2, 8\ns_add_u32 %s, %s, %d' % (sxo, sxo, sxo, FL_OFF))
        self.clr2 = a('buffer_store_dwordx4 %s, %s, %s, %s offen sc1' % (self.ones, u, self.WS, sxo))
        if cfg.get('noclr'): a('s_mov_b32 %s, %d' % (self.WS[2], WS_BYTES))
        self.stamp('c2iss')
        v.release(t, u)
        s.release(sxo)

    def stage_dma(self, k0, k1):
        a = self.a
        if self.cfg.get('nostage') == 2:
            self.stg = 0
            return
        for k in range(k0, k1):
            a('s_add_u32 m0, %s, %d' % (self.sbig, BIG + 2048 * k))
            a('buffer_load_dwordx4 %s, %s, %s offen lds' % (self.vsg, self.WG, self.sst))
            a('s_add_u32 m0, m0, 1024')
            self.stg = a('buffer_load_dwordx4 %s, %s, %s offen lds' % (self.vsu, self.WU, self.sst))
            a('s_add_u32 %s, %s, %d' % (self.sst, self.sst, 16 * 3584))

    def stage_read(self, rnd):
        a, v = self.a, self.v
        if rnd == 0:
            self.vtr = v.alloc(2)
            t, u = v.alloc(), v.alloc()
            a('v_bfe_u32 %s, %s, 1, 1\nv_mul_u32_u24 %s, 1056, %s' % (t, self.l, t, t))
            a('v_bfe_u32 %s, %s, 2, 2\nv_lshl_add_u32 %s, %s, 6, %s' % (u, self.l, t, u, t))
            a('v_lshrrev_b32 %s, 5, %s\nv_lshl_add_u32 %s, %s, 9, %s' % (u, self.l, t, u, t))
            a('v_and_b32 %s, 1, %s\nv_lshl_add_u32 %s, %s, 4, %s' % (u, self.l, t, u, t))
            a('v_bfe_u32 %s, %s, 4, 1\nv_lshl_add_u32 %s, %s, 3, %s' % (u, self.l, t, u, t))
            a('v_add_u32 %s, %s, %s' % (self.vtr[0], self.sbig, t))
            a('v_xor_b32 %s, 32, %s' % (self.vtr[1], self.vtr[0]))
            v.release(t, u)
        a.wait(vm=self.stg)
        for k in range(14):
            for t in range(2):
                for e in range(2):
                    b = (t * 28 + rnd * 14 + k) * 4 + 2 * e
                    a('ds_read_b64_tr_b16 a[%d:%d], %s offset:%d' % (b, b + 1, self.vtr[t], BIG + k * 2048 + e * 256))
        if rnd == 1:
            v.release(self.vtr, self.vsg, self.vsu)

    def consts_a(self):
        a, v, s = self.a, self.v, self.s
        self.F64r, self.F64i = v.alloc(16), v.alloc(16)
        self.C2, self.S2 = v.alloc(8), v.alloc(8)
        self.ct = fn, a0, ang, c, sn, msk, g4 = [v.alloc() for _ in range(7)]
        a('v_and_b32 %s, 1, %s\nv_mul_u32_u24 %s, 0x8000, %s\nv_lshl_or_b32 %s, %s, 16, %s' % (msk, self.l, msk, msk, msk, msk, msk))
        a('v_lshlrev_b32 %s, 2, %s\nv_cvt_f32_u32 %s, %s' % (g4, self.g, g4, g4))
        a('v_cvt_f32_u32 %s, %s\nv_mul_f32 %s, %s, %s\nv_mul_f32 %s, %s, %s' % (fn, self.n, fn, hexf(1 / 64.0), fn, a0, fn, g4))
        self.f64rows(range(self.cfg.get('ca', 4)))

    def f64rows(self, ks):
        a = self.a
        fn, a0, ang, c, sn, msk, g4 = self.ct
        for k in ks:
            q, r = k // 4, k % 4
            a('v_fmamk_f32 %s, %s, %s, %s' % (ang, fn, hexf(16 * q + r), a0))
            a('v_cos_f32 %s, %s\nv_sin_f32 %s, %s' % (c, ang, sn, ang))
            a('v_mul_f32 %s, %s, %s' % (ang, hexf(1 / 32.0), ang))
            a('v_cvt_pk_bf16_f32 %s, %s, %s' % (self.F64r[k], c, sn))
            a('v_cvt_pk_bf16_f32 %s, -%s, %s' % (self.F64i[k], sn, c))
            a('v_cos_f32 %s, %s\nv_sin_f32 %s, %s' % (self.C2[k], ang, self.S2[k], ang))
            a('v_xor_b32 %s, %s, %s\nv_xor_b32 %s, %s, %s' % (self.F64r[k + 8], msk, self.F64r[k], self.F64i[k + 8], msk, self.F64i[k]))

    def consts_b(self):
        a, v, s = self.a, self.v, self.s
        fn, a0, ang, c, sn, msk, g4 = self.ct
        self.f64rows(range(self.cfg.get('ca', 4), 8))
        self.F32r, self.F32i = v.alloc(16), v.alloc(16)
        self.C1, self.S1 = v.alloc(6), v.alloc(6)
        a('v_lshlrev_b32 %s, 1, %s\nv_cvt_f32_u32 %s, %s\nv_add_f32 %s, 1.0, %s' % (fn, self.p, fn, fn, a0, fn))
        for j in range(1, 4):
            for e, src in enumerate((fn, a0)):
                a('v_mul_f32 %s, %s, %s' % (ang, hexf(j / 448.0), src))
                a('v_cos_f32 %s, %s\nv_sin_f32 %s, %s' % (self.C1[2 * j - 2 + e], ang, self.S1[2 * j - 2 + e], ang))
        a('v_cvt_f32_u32 %s, %s\nv_mul_f32 %s, %s, %s\nv_mul_f32 %s, %s, %s' % (fn, self.n16, fn, hexf(1 / 32.0), fn, a0, fn, g4))
        for r in range(4):
            a('v_fmamk_f32 %s, %s, %s, %s' % (ang, fn, hexf(r), a0))
            a('v_cos_f32 %s, %s\nv_sin_f32 %s, %s' % (c, ang, sn, ang))
            a('v_cvt_pk_bf16_f32 %s, %s, %s' % (self.F32r[r], c, sn))
            a('v_cvt_pk_bf16_f32 %s, -%s, %s' % (self.F32i[r], sn, c))
            for M in (self.F32r, self.F32i):
                a('v_xor_b32 %s, %s, %s' % (M[4 + r], msk, M[r]))
                for q in range(2):
                    if r % 2: a('v_xor_b32 %s, 0x80008000, %s' % (M[8 + 4 * q + r], M[4 * q + r]))
                    else: a('v_mov_b32 %s, %s' % (M[8 + 4 * q + r], M[4 * q + r]))
        v.release(*self.ct)
        self.K7 = s.alloc(6, 2)
        for k in range(1, 4):
            a('s_mov_b32 %s, %s' % (self.K7[2 * k - 2], hexf(math.cos(2 * math.pi * k / 7))))
            a('s_mov_b32 %s, %s' % (self.K7[2 * k - 1], hexf(math.sin(2 * math.pi * k / 7))))

    def k7(self, m):
        m %= 7
        return (self.K7.sub(2 * m - 2, 2), 1) if m <= 3 else (self.K7.sub(2 * (7 - m) - 2, 2), -1)

    def p1(self):
        a, v, s = self.a, self.v, self.s
        vw0, vw1, vr0, vr1, t, u = [v.alloc() for _ in range(6)]
        a('v_lshrrev_b32 %s, 5, %s\ns_lshl_b32 s3, %s, 1\nv_add_u32 %s, s3, %s' % (t, self.l, self.sw, t, t))
        self.va = v.alloc()
        a('v_mov_b32 %s, %s' % (self.va, t))
        a('v_bfe_u32 %s, %s, 1, 2\nv_xor_b32 %s, %s, %s' % (u, self.p, t, t, u))
        a('v_bfe_u32 %s, %s, 3, 1\nv_mul_u32_u24 %s, 12, %s\nv_xor_b32 %s, %s, %s' % (u, self.p, u, u, t, t, u))
        a('v_lshlrev_b32 %s, 4, %s' % (t, t))
        a('v_lshrrev_b32 %s, 1, %s\nv_lshl_add_u32 %s, %s, 8, %s' % (u, self.p, t, u, t))
        a('v_and_b32 %s, 1, %s\nv_lshl_add_u32 %s, %s, 3, %s' % (u, self.p, t, u, t))
        a('v_add_u32 %s, %d, %s\nv_xor_b32 %s, 128, %s' % (vw0, L_V, t, vw1, vw0))
        a('v_xor_b32 %s, %s, %s\nv_lshlrev_b32 %s, 4, %s\nv_lshl_add_u32 %s, %s, 8, %s' % (t, self.n16, self.g, t, t, t, self.g, t))
        a('v_add_u32 %s, %d, %s\nv_xor_b32 %s, 192, %s' % (vr0, L_V, t, vr1, vr0))
        vst = v.alloc()
        a('v_lshlrev_b32 %s, 4, %s\nv_lshl_add_u32 %s, %s, 6, %s' % (t, self.g, t, self.n16, t))
        a('s_lshl_b32 s3, %s, 10\nv_add_u32 %s, s3, %s' % (self.sw, vst, t))
        a.wait(vm=self.xload)
        self.stamp('x')
        self.Xf = X = v.alloc(14)
        P = lambda R_, k: R_.sub(2 * k, 2)
        for d2 in range(7):
            a('v_lshlrev_b32 %s, 16, %s\nv_and_b32 %s, 0xffff0000, %s' % (X[2 * d2], self.xr[d2], X[2 * d2 + 1], self.xr[d2]))
        v.release(self.xr)
        T, U, RE, IM = v.alloc(6), v.alloc(6), v.alloc(8), v.alloc(6)
        sq, t0, t1 = v.alloc(2), v.alloc(2), v.alloc(2)
        for k in range(1, 4):
            self.pk('add', P(T, k - 1), P(X, k), P(X, 7 - k))
        self.pk('mul', sq, P(X, 0), P(X, 0))
        self.pk('add', P(RE, 0), P(X, 0), P(T, 0))
        for d2 in range(1, 4): self.pk('fma', sq, P(X, d2), P(X, d2), sq)
        self.pk('add', t0, P(T, 1), P(T, 2))
        for d2 in range(4, 7): self.pk('fma', sq, P(X, d2), P(X, d2), sq)
        self.pk('add', P(RE, 0), P(RE, 0), t0)
        s1, s2, mean, rs = [v.alloc() for _ in range(4)]
        a('v_add_f32 %s, %s, %s' % (s2, sq[0], sq[1]))
        a('v_add_f32 %s, %s, %s' % (s1, RE[0], RE[1]))
        for k in range(1, 4):
            self.pk('add', P(U, k - 1), P(X, k), P(X, 7 - k), neg=[0, 1])
        self.row_stats(s1, s2, t, u, mean, rs)
        for j in range(1, 4):
            for k in range(1, 4):
                c, sg = self.k7(j * k)
                self.pk('fma', P(RE, j), P(T, k - 1), c, P(X, 0) if k == 1 else P(RE, j), sel=[None, 'lo', None])
                if k == 1: self.pk('mul', P(IM, j - 1), P(U, 0), c, sel=[None, 'hi'], neg=[0, 1 if sg > 0 else 0])
                else: self.pk('fma', P(IM, j - 1), P(U, k - 1), c, P(IM, j - 1), sel=[None, 'hi', None], neg=[0, 1 if sg > 0 else 0, 0])
        for j in range(1, 4):
            self.cmul(P(RE, j), P(IM, j - 1), P(self.C1, j - 1), P(self.S1, j - 1), -1, t0, t1)
        a('v_mul_f32 %s, %s, %s' % (mean, hexf(-7.0), mean))
        a('v_mul_f32 %s, %s, %s\nv_mov_b32 %s, %s' % (t0[0], hexf(2.0 / (S * D)), rs, t0[1], mean))
        a('v_mul_f32 %s, %s, %s' % (t1[0], hexf(1.0 / (S * D)), rs))
        self.pk('add', P(RE, 0), P(RE, 0), t0, sel=[None, 'hi'])
        for j in range(4):
            self.pk('mul', P(RE, j), P(RE, j), t0 if j else t1, sel=[None, 'lo'])
            if j: self.pk('mul', P(IM, j - 1), P(IM, j - 1), t0, sel=[None, 'lo'])
        for j in range(4):
            o = P(T, j) if j < 3 else P(U, 0)
            for e in range(2):
                a('v_cvt_pk_bf16_f32 %s, %s, %s' % (o[e], RE[2 * j + e], IM[2 * j - 2 + e] if j else 0))
            a('ds_write_b64 %s, %s offset:%d' % (vw1 if j & 1 else vw0, o, (j >> 1) * 4096))
        a.wait_lg0()
        a('s_barrier')
        v.release(T, U, RE, IM, sq, t0, t1, s1, s2, mean, rs, vw0, vw1)
        A = v.alloc(32, 4); acc = v.alloc(16, 4); o = v.alloc(8, 4)
        rd = {}
        for Pp in range(2):
            for q in range(4):
                rd[Pp, q] = a('ds_read_b128 %s, %s offset:%d' % (A.sub(16 * Pp + 4 * q, 4), vr1 if q & 1 else vr0, Pp * 4096 + q * 1024))
        for Pp in range(2):
            for q in range(4):
                a.wait(lg=rd[Pp, q])
                for c, M in enumerate((self.F64r, self.F64i)):
                    d = acc.sub(8 * Pp + 4 * c, 4)
                    a('v_mfma_f32_16x16x32_bf16 %s, %s, %s, %s' % (d, A.sub(16 * Pp + 4 * q, 4), M.sub(4 * q, 4), d if q else 0))
        a('v_add_u32 %s, 4096, %s' % (t, vst))
        for Pp in range(2):
            for r in range(4):
                a('v_cvt_pk_bf16_f32 %s, %s, %s' % (o[4 * Pp + r], acc[8 * Pp + r], acc[8 * Pp + 4 + r]))
            self.y1st = a('buffer_store_dwordx4 %s, %s, %s, %s offen sc1' % (o.sub(4 * Pp, 4), t if Pp else vst, self.WS, self.sY1))
        self.stamp('p1')
        v.release(A, acc, o, vr0, vr1, vst, t, u)

    def p2(self):
        a, v, s = self.a, self.v, self.s
        cnt, t, u = v.alloc(), v.alloc(), v.alloc()
        scf = s.alloc()
        a('s_lshl_b32 %s, %s, 12\ns_add_u32 %s, %s, %d' % (scf, self.sx, scf, scf, FL_OFF + CFL))
        cl = a('buffer_load_dword %s, %s, %s, %s offen sc1' % (cnt, self.t16, self.WS, scf))
        wq = v.alloc(8, 4); vj, vm_ = v.alloc(), v.alloc()
        a('v_lshrrev_b32 %s, 2, v0\nv_mul_u32_u24 %s, 7, %s\nv_and_b32 %s, 3, v0\nv_add_u32 %s, %s, %s' % (vj, vj, vj, t, vj, vj, t))
        a('v_sub_u32 %s, %d, %s\nv_cmp_lt_u32 vcc, 224, %s' % (t, 448 + 4096, vj, vj))
        a('v_mov_b32 %s, 0x80000000' % vm_)
        a('v_cndmask_b32 %s, %s, %s, vcc\nv_cndmask_b32 %s, 0, %s, vcc' % (vj, vj, t, vm_, vm_))
        a('s_and_b32 s3, %s, 1\ns_lshl_b32 s3, s3, 1\ns_add_u32 s3, s3, %d\nv_lshl_add_u32 %s, %s, 1, s3' % (self.sreg, L_W, vj, vj))
        a.wait(vm=self.clr2)
        self.stamp('clr2')
        a('s_barrier')
        wh = v.alloc(8)
        for k in range(8):
            a('ds_read_u16 %s, %s offset:%d' % (wq[k], vj, 512 * k))
            a('ds_read_u16_d16_hi %s, %s offset:%d' % (wh[k], vj, 4096 + 512 * k))
        a.wait_lg0()
        for k in range(8): a('v_and_b32 %s, 0xffff0000, %s' % (wh[k], wh[k]))
        v.release(wh)
        for h in range(2):
            for k in range(4 * h, 4 * h + 4): a('v_bitop3_b32 %s, %s, %s, %s bitop3:0x56' % (wq[k], wq[k], wh[k], vm_))
            wst = a('buffer_store_dwordx4 %s, %s, %s, %s offen sc1' % (wq.sub(4 * h, 4), self.t16b if h else self.t16, self.WS, self.sWt))
        v.release(vm_, self.t16b)
        na = self.cfg.get('na', 4)
        self.stage_dma(0, na)
        swg = s.alloc()
        a('v_mul_u32_u24 %s, %d, v0' % (vj, YS))
        a('s_lshl_b32 %s, %s, 4\ns_add_u32 %s, %s, %d' % (swg, self.sreg, swg, swg, WT_OFF))
        vg0, vg1, sg = v.alloc(), v.alloc(), s.alloc()
        a('v_lshrrev_b32 %s, 1, %s\nv_lshl_add_u32 %s, %s, 5, %s\nv_mul_u32_u24 %s, %d, %s' % (t, self.g, t, t, self.n16, t, YS, t))
        a('v_and_b32 %s, 1, %s\nv_lshl_add_u32 %s, %s, 4, %s' % (vg0, self.g, vg0, vg0, t))
        a('v_add_u32 %s, %d, %s' % (vg1, 16 * YS, vg0))
        a('s_lshr_b32 %s, %s, 2\ns_lshl_b32 %s, %s, 6' % (sg, self.sreg, sg, sg))
        a('s_and_b32 s3, %s, 2\ns_lshl_b32 s3, s3, 11\ns_add_u32 %s, %s, s3' % (self.sreg, sg, sg))
        a('s_and_b32 s3, %s, 1\ns_lshl_b32 s3, s3, 5\ns_add_u32 %s, %s, s3' % (self.sreg, sg, sg))
        a('s_mul_i32 s3, %s, %d\ns_add_u32 %s, %s, s3' % (self.sw, 64 * YS, sg, sg))
        sm = s.alloc()
        a('s_lshl_b32 %s, %s, 10\ns_add_u32 %s, %s, %d' % (sm, self.sw, sm, sm, L_Y1G))
        vlr, vtw, vst = v.alloc(), v.alloc(), v.alloc()
        a('v_add_u32 %s, %d, %s' % (vlr, L_Y1G, self.l16))
        a('v_lshrrev_b32 %s, 2, %s\nv_lshlrev_b32 %s, 8, %s\nv_lshl_add_u32 %s, %s, 6, %s' % (t, self.n16, t, t, t, self.g, t))
        a('v_and_b32 %s, 3, %s\nv_lshl_add_u32 %s, %s, 2, %s' % (vtw, self.l, t, vtw, t))
        a('s_lshl_b32 s3, %s, 10\ns_add_u32 s3, s3, %d\nv_add_u32 %s, s3, %s' % (self.sw, L_T, vtw, t))
        a('v_lshrrev_b32 %s, 1, %s\nv_lshlrev_b32 %s, 10, %s\nv_lshl_add_u32 %s, %s, 5, %s' % (t, self.g, t, t, t, self.n16, t))
        a('v_and_b32 %s, 1, %s\nv_lshl_add_u32 %s, %s, 4, %s' % (vst, self.g, t, vst, t))
        a('s_lshl_b32 s3, %s, 11\nv_add_u32 %s, s3, %s' % (self.sw, vst, t))
        self.spin = s.alloc()
        a('s_mov_b32 %s, %d' % (self.spin, SPIN))
        a.wait(vm=cl)
        self.stamp('cnt')
        l0, l1 = a.label('L_clr'), a.label('L_clrok')
        a(l0 + ':')
        a('v_cmp_ne_u32 vcc, %s, %s\ns_cbranch_vccz %s' % (self.tag, cnt, l1))
        self.spin_out(l1)
        a('s_sleep 4')
        a('buffer_load_dword %s, %s, %s, %s offen sc1' % (cnt, self.t16, self.WS, scf))
        a.nvm -= 1
        a.wait_vm0()
        a('s_branch %s' % l0)
        a(l1 + ':')
        self.stamp('drain1')

        def gather():
            a('s_mov_b32 m0, %s' % sm)
            a('buffer_load_dwordx4 %s, %s, %s offen sc1 lds' % (vg0, self.WS, sg))
            a('s_add_u32 m0, %s, 4096' % sm)
            return a('buffer_load_dwordx4 %s, %s, %s offen sc1 lds' % (vg1, self.WS, sg))
        gl = gather()
        a('s_mov_b32 %s, %d' % (self.spin, SPIN))

        def wgather():
            a('buffer_load_dwordx4 %s, %s, %s, %s offen sc1' % (wq.sub(0, 4), vj, self.WS, swg))
            a('s_add_u32 s3, %s, 4096' % swg)
            return a('buffer_load_dwordx4 %s, %s, %s, s3 offen sc1' % (wq.sub(4, 4), vj, self.WS))
        a.wait(vm=wst)
        wl = wgather()
        self.stage_dma(na, 14)
        a.wait(vm=gl)
        lr, lf, lo = a.label('L_p2'), a.label('L_p2fail'), a.label('L_p2ok')
        a(lr + ':')
        a('s_barrier')
        A = v.alloc(32, 4); D1 = v.alloc(16, 4); B = v.alloc(8, 4); t0, t1 = v.alloc(2), v.alloc(2)
        rd = {}
        for tt in range(2):
            for q in range(4):
                rd[tt, q] = a('ds_read_b128 %s, %s offset:%d' % (A.sub(16 * tt + 4 * q, 4), vlr, tt * 4096 + q * 1024))
        for tt in range(2):
            for q in range(4):
                a.wait(lg=rd[tt, q])
                f = A.sub(16 * tt + 4 * q, 4)
                for c, M in enumerate((self.F64r, self.F64i)):
                    d = D1.sub(8 * tt + 4 * c, 4)
                    a('v_mfma_f32_16x16x32_bf16 %s, %s, %s, %s' % (d, f, M.sub(4 * q, 4), d if q else 0))
                self.sentinel_max(cnt, [f[k] for k in range(4)], tt == 0 and q == 0)
        a('v_cmp_eq_u32 vcc, -1, %s\ns_cbranch_vccnz %s' % (cnt, lf))
        a(lo + ':')
        self.stamp('g1')
        self.tail = getattr(self, 'tail', [])

        def fail2():
            a(lf + ':')
            self.spin_out(lo)
            a('s_barrier')
            gather()
            a.wait_vm0()
            a('s_branch %s' % lr)
        self.tail.append(fail2)

        def twiddle(Dr, Di, C, Sn, sign, swap):
            for tt in range(2):
                for h in range(2):
                    k = 4 * tt + 2 * h
                    re, im = Dr(tt).sub(2 * h, 2), Di(tt).sub(2 * h, 2)
                    self.cmul(re, im, C.sub(k, 2), Sn.sub(k, 2), sign, t0, t1)
                    for e in range(2):
                        x, y = (im[e], re[e]) if swap else (re[e], im[e])
                        a('v_cvt_pk_bf16_f32 %s, %s, %s' % (B[k + e], x, y))

        def f32stage(Dd):
            for tt in range(2):
                for c, M in enumerate((self.F32r, self.F32i)):
                    d = Dd.sub(8 * tt + 4 * c, 4)
                    for q in range(2):
                        a('v_mfma_f32_16x16x32_bf16 %s, %s, %s, %s' % (d, M.sub(8 * tt + 4 * q, 4), B.sub(4 * q, 4), d if q else 0))
        R0 = lambda Dd: (lambda tt: Dd.sub(8 * tt, 4))
        R1 = lambda Dd: (lambda tt: Dd.sub(8 * tt + 4, 4))
        D2 = A.sub(0, 16)
        twiddle(R0(D1), R1(D1), self.C2, self.S2, -1, False)
        f32stage(D2)
        lwf, lwo = a.label('L_wfail'), a.label('L_wok')
        a.wait(vm=wl)
        self.sentinel_max(cnt, [wq[k] for k in range(8)], True)
        a('v_cmp_eq_u32 vcc, -1, %s\ns_cbranch_vccnz %s' % (cnt, lwf))
        a(lwo + ':')

        def failw():
            a(lwf + ':')
            self.spin_out(lwo)
            wgather()
            a.wait_vm0()
            self.sentinel_max(cnt, [wq[k] for k in range(8)], True)
            a('v_cmp_eq_u32 vcc, -1, %s\ns_cbranch_vccnz %s\ns_branch %s' % (cnt, lwf, lwo))
        self.tail.append(failw)
        Wr, Wi = A.sub(16, 8), A.sub(24, 8)
        for k in range(8):
            a('v_lshlrev_b32 %s, 16, %s\nv_and_b32 %s, 0xffff0000, %s' % (Wr[k], wq[k], Wi[k], wq[k]))
        twiddle(R0(D2), R1(D2), Wr, Wi, +1, True)
        f32stage(D1)
        twiddle(R1(D1), R0(D1), self.C2, self.S2, +1, True)
        for tt in range(2):
            for r in range(4):
                a('ds_write_b32 %s, %s offset:%d' % (vtw, B[4 * tt + r], tt * 4096 + r * 16))
        a.wait_lg0()
        a('s_barrier')
        for tt in range(2):
            for q in range(4):
                rd[tt, q] = a('ds_read_b128 %s, %s offset:%d' % (A.sub(16 * tt + 4 * q, 4), vlr, L_T - L_Y1G + tt * 4096 + q * 1024))
        for tt in range(2):
            for q in range(4):
                a.wait(lg=rd[tt, q])
                for c, M in enumerate((self.F64r, self.F64i)):
                    d = D1.sub(8 * tt + 4 * c, 4)
                    a('v_mfma_f32_16x16x32_bf16 %s, %s, %s, %s' % (d, M.sub(4 * q, 4), A.sub(16 * tt + 4 * q, 4), d if q else 0))
        for tt in range(2):
            im, re = D1.sub(8 * tt, 4), D1.sub(8 * tt + 4, 4)
            o = B.sub(4 * tt, 4)
            a('v_cvt_pk_bf16_f32 %s, %s, %s\nv_cvt_pk_bf16_f32 %s, %s, %s' % (o[0], re[0], re[1], o[1], re[2], re[3]))
            a('v_cvt_pk_bf16_f32 %s, %s, %s\nv_cvt_pk_bf16_f32 %s, %s, %s' % (o[2], im[0], im[1], o[3], im[2], im[3]))
            self.y2st = a('buffer_store_dwordx4 %s, %s, %s, %s offen offset:%d sc1' % (o, vst, self.WS, self.sY2, 512 * tt))
        self.stamp('p2')
        v.release(A, D1, B, t0, t1, vlr, vtw, vst, t, u, wq, vj, self.F32r, self.F32i, self.C2, self.S2)
        v.release(vg0, vg1, cnt); s.release(sg, sm, swg, scf)

    def p3(self):
        a, v, s = self.a, self.v, self.s
        self.stage_read(0)
        t, u, cnt = v.alloc(), v.alloc(), v.alloc()
        vg0, vg1, sg, sm = v.alloc(), v.alloc(), s.alloc(), s.alloc()
        a('v_bfe_u32 %s, %s, 3, 2\nv_lshlrev_b32 %s, 4, %s' % (t, self.l, t, t))
        a('v_lshrrev_b32 %s, 5, %s\nv_lshl_add_u32 %s, %s, 3, %s' % (u, self.l, t, u, t))
        a('v_bfe_u32 %s, %s, 2, 1\nv_lshl_add_u32 %s, %s, 2, %s' % (u, self.l, t, u, t))
        a('v_bfe_u32 %s, %s, 1, 1\nv_add_u32 %s, %s, %s\nv_mul_u32_u24 %s, %d, %s' % (u, self.l, t, t, u, t, YS, t))
        a('v_and_b32 %s, 1, %s\nv_lshl_add_u32 %s, %s, 4, %s' % (u, self.l, vg0, u, t))
        a('v_add_u32 %s, %d, %s' % (vg1, 2 * YS, vg0))
        a('s_mul_i32 %s, %s, %d\ns_lshl_b32 s3, %s, 5\ns_add_u32 %s, %s, s3\ns_add_u32 %s, %s, %d'
          % (sg, self.sw, 64 * YS, self.sreg, sg, sg, sg, sg, Y2_OFF))
        a('s_lshl_b32 %s, %s, 10\ns_add_u32 %s, %s, %d' % (sm, self.sw, sm, sm, L_Y2G))
        vtr, vuw, vur, vzw, vhw, vzr, vhr, vhs = [v.alloc() for _ in range(8)]
        a('v_lshlrev_b32 %s, 7, %s\nv_bfe_u32 %s, %s, 3, 1\nv_lshl_add_u32 %s, %s, 6, %s' % (t, self.g, u, self.l, t, u, t))
        a('v_and_b32 %s, 3, %s\nv_lshl_add_u32 %s, %s, 4, %s' % (u, self.l, t, u, t))
        a('v_bfe_u32 %s, %s, 2, 1\nv_xor_b32 %s, 1, %s\nv_lshl_add_u32 %s, %s, 3, %s' % (u, self.l, u, u, t, u, t))
        a('v_add_u32 %s, %d, %s' % (vtr, L_Y2G, t))
        a('v_lshrrev_b32 %s, 3, %s\nv_lshlrev_b32 %s, 3, %s\nv_add_u32 %s, %s, %s\nv_mul_u32_u24 %s, %d, %s'
          % (t, self.n16, t, t, t, t, self.n16, t, UROW, t))
        a('v_lshl_add_u32 %s, %s, 4, %s\ns_lshl_b32 s3, %s, 6\ns_add_u32 s3, s3, %d\nv_add_u32 %s, s3, %s' % (t, self.g, t, self.sw, L_U, vuw, t))
        a('v_mul_u32_u24 %s, %d, %s\nv_lshl_add_u32 %s, %s, 3, %s\nv_add_u32 %s, %d, %s' % (t, UROW, self.va, t, self.p, t, vur, L_U, t))
        a('v_lshrrev_b32 %s, 2, %s\nv_xor_b32 %s, %s, %s\nv_lshlrev_b32 %s, 4, %s\nv_lshl_add_u32 %s, %s, 7, %s'
          % (t, self.p, u, t, self.va, u, u, t, t, u))
        a('v_and_b32 %s, 3, %s\nv_lshl_add_u32 %s, %s, 2, %s\nv_add_u32 %s, %d, %s' % (u, self.p, t, u, t, vzw, L_ZB, t))
        a('v_mul_u32_u24 %s, 896, %s\nv_lshl_add_u32 %s, %s, 2, %s\nv_add_u32 %s, %d, %s' % (t, self.va, t, self.p, t, vhw, L_HB, t))
        a('v_lshrrev_b32 %s, 3, v0\nv_xor_b32 %s, %s, v0\nv_and_b32 %s, 7, %s\nv_lshlrev_b32 %s, 4, %s\nv_lshl_add_u32 %s, %s, 7, %s'
          % (t, u, t, u, u, u, u, t, t, u))
        a('v_add_u32 %s, %d, %s' % (vzr, L_ZB, t))
        a('s_mul_i32 s3, %s, 1792\ns_add_u32 s3, s3, %d\nv_add_u32 %s, s3, %s' % (self.sw, L_HB, vhr, self.l16))
        a('v_mov_b32 %s, %d\nv_cmp_gt_u32 vcc, 56, %s\nv_cndmask_b32 %s, %s, %s, vcc' % (t, OOB, self.l, vhs, t, self.l16))
        sh = s.alloc()
        a('s_lshl_b32 %s, %s, 2\ns_add_u32 %s, %s, %s\ns_mul_i32 %s, %s, 1792\ns_add_u32 %s, %s, %d'
          % (sh, self.sreg, sh, sh, self.sw, sh, sh, sh, sh, HR_OFF))
        nb = self.cfg.get('nb', 4)
        a.wait_lg0()
        self.stage_dma(0, nb)
        a.wait(vm=self.y2st)
        self.stamp('drain2')

        def gather():
            a('s_mov_b32 m0, %s' % sm)
            a('buffer_load_dwordx4 %s, %s, %s offen sc1 lds' % (vg0, self.WS, sg))
            a('s_add_u32 m0, %s, 4096' % sm)
            return a('buffer_load_dwordx4 %s, %s, %s offen sc1 lds' % (vg1, self.WS, sg))
        gl = gather()
        a('s_mov_b32 %s, %d' % (self.spin, SPIN))
        self.stage_dma(nb, 14)
        if self.cfg.get('wdpf', 1):
            a('s_lshl_b32 s3, %s, 2\ns_add_u32 s3, s3, %s\ns_mul_i32 s3, s3, %d\nv_lshlrev_b32 %s, 3, %s' % (self.si, self.sw, 98 * 128, t, self.l16))
            a('buffer_load_dword %s, %s, %s, s3 offen' % (self.junk, t, self.WD), 'unused')
            a('s_add_u32 s3, s3, %d' % (34 * 128))
            a('buffer_load_dword %s, %s, %s, s3 offen' % (self.junk, t, self.WD), 'unused')
        a.wait(vm=gl)
        lr, lf, lo = a.label('L_p3'), a.label('L_p3fail'), a.label('L_p3ok')
        a(lr + ':')
        a('s_barrier')
        A = v.alloc(32, 4); acc = v.alloc(16, 4)
        rd = {}
        for Pp in range(2):
            for q in range(4):
                for e in range(2):
                    rd[Pp, q] = a('ds_read_b64_tr_b16 %s, %s offset:%d' % (A.sub(16 * Pp + 4 * q + 2 * e, 2), vtr, (Pp * 4 + q) * 1024 + e * 512))
        for Pp in range(2):
            for q in range(4):
                a.wait(lg=rd[Pp, q])
                f = A.sub(16 * Pp + 4 * q, 4)
                for c, M in enumerate((self.F64r, self.F64i)):
                    d = acc.sub(8 * Pp + 4 * c, 4)
                    a('v_mfma_f32_16x16x32_bf16 %s, %s, %s, %s' % (d, M.sub(4 * q, 4), f, d if q else 0))
                self.sentinel_max(cnt, [f[k] for k in range(4)], Pp == 0 and q == 0)
        a('v_cmp_eq_u32 vcc, -1, %s\ns_cbranch_vccnz %s' % (cnt, lf))
        a(lo + ':')
        self.stamp('g2')

        def fail3():
            a(lf + ':')
            self.spin_out(lo)
            a('s_barrier')
            gather()
            a.wait_vm0()
            a('s_branch %s' % lr)
        self.tail.append(fail3)
        lab = a.label('L_noepo')
        a('s_or_b32 s3, s2, %s\ns_cmp_lg_u32 s3, 0\ns_cbranch_scc1 %s' % (self.sw, lab))
        a('v_mov_b32 %s, %s\nv_mov_b32 %s, %d' % (t, self.tag, u, FL_OFF + EPO))
        a('s_mov_b64 exec, 1')
        a('buffer_store_dword %s, %s, %s, 0 offen sc1' % (t, u, self.WS))
        a('s_mov_b64 exec, -1')
        a.nvm -= 1
        a(lab + ':')
        for Pp in range(2):
            for c in range(2):
                a('ds_write_b128 %s, %s offset:%d' % (vuw, acc.sub(8 * Pp + 4 * (1 - c), 4), (Pp * 32 + c * 8) * UROW))
        a.wait_lg0()
        a('s_barrier')
        v.release(A, acc, self.F64r, self.F64i)
        P = lambda R_, k: R_.sub(2 * k, 2)
        RE, IM, Aa, Bb, Y = v.alloc(8), v.alloc(6), v.alloc(6), v.alloc(6), v.alloc(14)
        t0, t1 = v.alloc(2), v.alloc(2)
        rd = {}
        for j in (1, 2, 3, 0):
            rd[j] = a('ds_read_b64 %s, %s offset:%d' % (P(RE, j), vur, j * 16 * UROW))
            if j: rd[j] = a('ds_read_b64 %s, %s offset:%d' % (P(IM, j - 1), vur, (j * 16 + 8) * UROW))
        for j in range(1, 4):
            a.wait(lg=rd[j])
            self.cmul(P(RE, j), P(IM, j - 1), P(self.C1, j - 1), P(self.S1, j - 1), +1, t0, t1)
        a.wait(lg=rd[0])
        X = self.Xf
        for d in range(1, 4):
            for j in range(1, 4):
                c, sg_ = self.k7(j * d)
                self.pk('fma', P(Aa, d - 1), P(RE, j), c, P(RE, 0) if j == 1 else P(Aa, d - 1), sel=[None, 'lo', None])
                if j == 1: self.pk('mul', P(Bb, d - 1), P(IM, 0), c, sel=[None, 'hi'], neg=[0, 0 if sg_ > 0 else 1])
                else: self.pk('fma', P(Bb, d - 1), P(IM, j - 1), c, P(Bb, d - 1), sel=[None, 'hi', None], neg=[0, 0 if sg_ > 0 else 1, 0])
        self.pk('add', t0, P(RE, 0), P(RE, 1))
        self.pk('add', t1, P(RE, 2), P(RE, 3))
        self.pk('add', t0, t0, P(X, 0))
        self.pk('add', P(Y, 0), t0, t1)
        for d in range(1, 4):
            self.pk('add', t0, P(Aa, d - 1), P(X, d))
            self.pk('add', t1, P(Aa, d - 1), P(X, 7 - d))
            self.pk('add', P(Y, d), t0, P(Bb, d - 1), neg=[0, 1])
            self.pk('add', P(Y, 7 - d), t1, P(Bb, d - 1))
        sq, sm_ = P(Aa, 0), P(Aa, 1)
        self.pk('mul', sq, P(Y, 0), P(Y, 0))
        self.pk('add', sm_, P(Y, 0), P(Y, 1))
        for d in range(1, 7):
            self.pk('fma', sq, P(Y, d), P(Y, d), sq)
            if d > 1: self.pk('add', sm_, sm_, P(Y, d))
        s1, s2, mean = Bb[0], Bb[1], Bb[2]
        a('v_add_f32 %s, %s, %s\nv_add_f32 %s, %s, %s' % (s1, sm_[0], sm_[1], s2, sq[0], sq[1]))
        for d in range(7):
            a('v_cvt_pk_bf16_f32 %s, %s, %s' % (X[d], Y[2 * d], Y[2 * d + 1]))
            a('ds_write_b32 %s, %s offset:%d' % (vhw, X[d], d * 128))
        self.row_stats(s1, s2, t, u, mean, t0[0])
        a('v_mul_f32 %s, -%s, %s' % (t0[1], mean, t0[0]))
        for d in range(7):
            self.pk('fma', P(Y, d), P(Y, d), t0, t0, sel=[None, 'lo', 'hi'])
            a('v_cvt_pk_bf16_f32 %s, %s, %s' % (X[7 + d], Y[2 * d], Y[2 * d + 1]))
            a('ds_write_b32 %s, %s offset:%d' % (vzw, X[7 + d], d * 1024))
        a.wait_lg0()
        a('s_barrier')
        o = v.alloc(16, 4)
        r0 = a('ds_read_b128 %s, %s' % (o.sub(0, 4), vzr))
        r1 = a('ds_read_b128 %s, %s offset:4096' % (o.sub(4, 4), vzr))
        r2 = a('ds_read_b128 %s, %s' % (o.sub(8, 4), vhr))
        r3 = a('ds_read_b128 %s, %s offset:896' % (o.sub(12, 4), vhr))
        a.wait(lg=r0)
        a('buffer_store_dwordx4 %s, %s, %s, %s offen sc1' % (o.sub(0, 4), self.vz0, self.WS, self.sZ))
        a.wait(lg=r1)
        a('buffer_store_dwordx4 %s, %s, %s, %s offen sc1' % (o.sub(4, 4), self.vz1, self.WS, self.sZ))
        a.wait(lg=r2)
        a('buffer_store_dwordx4 %s, %s, %s, %s offen sc1' % (o.sub(8, 4), vhs, self.WS, sh))
        a.wait(lg=r3)
        a('buffer_store_dwordx4 %s, %s, %s, %s offen offset:896 sc1' % (o.sub(12, 4), vhs, self.WS, sh))
        self.stamp('p3')
        v.release(RE, IM, Aa, Bb, Y, t0, t1, X, self.C1, self.S1, o, t, u, vtr, vuw, vur, vzw, vhw, vzr, vhr, vhs,
                  self.vz0, self.vz1, self.va, self.n, self.t16)
        s.release(sh, self.K7)
        v.release(vg0, vg1, cnt, self.ones, self.n16, self.g); s.release(sg, sm)

    def flag_store(self, soff, zero):
        a = self.a
        a('s_mov_b64 exec, 1')
        i = a('buffer_store_dword %s, %s, %s, %s offen sc1' % (zero, zero, self.WS, soff))
        a('s_mov_b64 exec, -1')
        return i

    def gemms(self):
        a, v, s = self.a, self.v, self.s
        cfg = self.cfg
        self.stage_read(1)
        zero = v.alloc(); t, u = v.alloc(), v.alloc()
        a('v_mov_b32 %s, 0' % zero)
        srf = s.alloc()
        a('s_lshl_b32 %s, %s, 4\ns_add_u32 %s, %s, %d' % (srf, self.sreg, srf, srf, FL_OFF + RFL))
        sA = s.alloc()
        a('s_lshl_b32 %s, %s, 2\ns_add_u32 %s, %s, %s\ns_mul_i32 %s, %s, 28672\ns_add_u32 %s, %s, %d'
          % (sA, self.srb, sA, sA, self.sw, sA, sA, sA, sA, Z2_OFF))
        vz0, vz1, vown = v.alloc(), v.alloc(), v.alloc()
        a('v_add_u32 %s, %d, %s\nv_add_u32 %s, %d, %s\nv_add_u32 %s, %s, %s' % (vz0, BIG, self.l16, vz1, BIG + 57344, self.l16, vown, self.sbig, self.l16))
        vd0, vd1, sring, sdn = v.alloc(), v.alloc(), s.alloc(), s.alloc()
        a('v_lshrrev_b32 %s, 3, %s\nv_mul_u32_u24 %s, 896, %s' % (t, self.l, t, t))
        a('v_bfe_u32 %s, %s, 4, 1\nv_lshlrev_b32 %s, 2, %s\nv_xor_b32 %s, %s, %s\nv_and_b32 %s, 7, %s' % (u, self.l, u, u, u, u, self.l, u, u))
        a('v_lshl_add_u32 %s, %s, 4, %s\nv_add_u32 %s, 7168, %s' % (vd0, u, t, vd1, vd0))
        a('s_mul_i32 %s, %s, 12288\ns_add_u32 %s, %s, %d' % (sring, self.sw, sring, sring, FFT))
        a('s_mul_i32 %s, %s, %d\ns_lshl_b32 s3, %s, 7\ns_add_u32 %s, %s, s3' % (sdn, self.sw, 32 * 896, self.scb, sdn, sdn))
        vdt = v.alloc(2)
        a('v_lshrrev_b32 %s, 5, %s\nv_lshlrev_b32 %s, 10, %s' % (t, self.l, t, t))
        a('v_bfe_u32 %s, %s, 2, 2\nv_lshl_add_u32 %s, %s, 7, %s' % (u, self.l, t, u, t))
        a('v_bfe_u32 %s, %s, 3, 1\ns_and_b32 s3, %s, 1\nv_xor_b32 %s, s3, %s\nv_lshl_add_u32 %s, %s, 6, %s' % (u, self.l, self.sw, u, u, t, u, t))
        a('v_and_b32 %s, 1, %s\nv_lshl_add_u32 %s, %s, 5, %s' % (u, self.l, t, u, t))
        a('v_bfe_u32 %s, %s, 4, 1\nv_lshl_add_u32 %s, %s, 4, %s' % (u, self.l, t, u, t))
        a('v_bfe_u32 %s, %s, 1, 1\nv_lshl_add_u32 %s, %s, 3, %s' % (u, self.l, t, u, t))
        a('v_add_u32 %s, %s, %s\nv_xor_b32 %s, 64, %s' % (vdt[0], sring, t, vdt[1], vdt[0]))
        sH, sHf = s.alloc(), s.alloc()
        a('s_mul_i32 %s, %s, 448\ns_mul_i32 s3, %s, 28\ns_add_u32 %s, %s, s3\ns_add_u32 %s, %s, %s\ns_lshl_b32 %s, %s, 10\ns_add_u32 %s, %s, %d'
          % (sH, self.srb, self.sw, sH, sH, sH, sH, self.sfs, sH, sH, sH, sH, HH_OFF))
        a('s_lshl_b32 %s, %s, 2\ns_add_u32 %s, %s, %s\ns_lshl_b32 %s, %s, 9\ns_lshl_b32 s3, %s, 4\ns_add_u32 %s, %s, s3\ns_add_u32 %s, %s, %d'
          % (sHf, self.srb, sHf, sHf, self.sw, sHf, sHf, self.sfs, sHf, sHf, sHf, sHf, FL_OFF + HFL))
        a('s_waitcnt vmcnt(0) lgkmcnt(0)')
        v.release(self.junk)
        self.stamp('drain3')
        lidle = a.label('L_idle')
        a('s_cmp_ge_u32 %s, 28\ns_cbranch_scc1 %s' % (self.si, lidle))

        def idle():
            a(lidle + ':')
            a('s_barrier')
            a('s_cmp_lg_u32 %s, 0\ns_cbranch_scc1 L_fin' % self.sw)
            self.flag_store(srf, zero)
            a('s_branch L_fin')
        self.tail.append(idle)

        CH = 4; NCH = 7
        def a_dma(c):
            a('s_add_u32 m0, %s, %d\ns_add_u32 s3, %s, %d' % (self.sbig, BIG + c * 4096, sA, c * 4096))
            for k in range(CH):
                i = a('buffer_load_dwordx4 %s, %s, s3 offen offset:%d sc1 lds' % (self.l16, self.WS, k * 1024))
            return i
        chk = v.alloc()
        vh = v.alloc(2); vpf, vpr, pf, pr = [v.alloc() for _ in range(4)]
        vt = v.alloc(16, 4)
        adma = {}
        l0 = a.label('L_a0')
        a(l0 + ':')
        for c in range(NCH): adma[c] = a_dma(c)

        def verify_read(c):
            a.wait(vm=adma[c])
            return [a('ds_read_b128 %s, %s offset:%d' % (vt.sub(4 * k, 4), vown, BIG + c * 4096 + k * 1024)) for k in range(CH)][-1]

        def verify_ops(c):
            lf, lo = a.label('L_afail'), a.label('L_aok')
            ops = []
            for k in range(CH):
                ops.append(lambda k=k: self.sentinel_max(chk, [vt[4 * k + e] for e in range(4)], k == 0))
            def fin():
                a('v_cmp_eq_u32 vcc, -1, %s\ns_cbranch_vccnz %s' % (chk, lf))
                a(lo + ':')
                a('s_barrier')
            ops.append(fin)
            def fail():
                a(lf + ':')
                self.spin_out(lo)
                if c == 0:
                    a.wait_vm0()
                    a('s_branch %s' % l0)
                    return
                a_dma(c)
                a.wait_vm0()
                for k in range(CH): a('ds_read_b128 %s, %s offset:%d' % (vt.sub(4 * k, 4), vown, BIG + c * 4096 + k * 1024))
                a.wait_lg0()
                self.sentinel_max(chk, [vt[e] for e in range(16)], True)
                a('v_cmp_eq_u32 vcc, -1, %s\ns_cbranch_vccnz %s\ns_branch %s' % (chk, lf, lo))
            self.tail.append(fail)
            return ops
        r = verify_read(0)
        a.wait(lg=r)
        for op in verify_ops(0): op()
        self.stamp('a0')
        lab = a.label('L_nohf')
        a('s_cmp_lg_u32 %s, 0\ns_cbranch_scc1 %s' % (self.sw, lab))
        self.flag_store(srf, zero)
        a.nvm -= 1
        a(lab + ':')

        accA, accB, zf = v.alloc(64, 4), v.alloc(64, 4), v.alloc(32, 4)
        zrd = {}
        def zread(sg, rt):
            ks = sg % 28
            off = rt * 28672 + ks * 1024
            base = vz0
            if rt >= 2: base, off = vz1, off - 57344
            zrd[sg, rt] = a('ds_read_b128 %s, %s offset:%d' % (zf.sub(16 * (sg % 2) + 4 * rt, 4), base, off))
        for rt in range(4): zread(0, rt)

        fill = {}
        def at(sg, rt, fn): fill.setdefault((sg, rt), []).append(fn)
        vr = {}
        for c in range(1, NCH):
            b = 4 * (c - 1)
            at(b, 0, lambda c=c: vr.__setitem__(c, verify_read(c)))
            ops = verify_ops(c)
            at(b + 1, 0, lambda c=c: a.wait(lg=vr[c]))
            for k in range(CH): at(b + 1, k, ops[k])
            at(b + 2, 3, ops[CH])
        s_tr = lambda n: max(2 * n + 2, 14 + n)
        ddma, dtr = {}, {}
        def d_dma(n):
            tt, fs = n // 14, n % 14
            if n >= 6: a.wait(lg=dtr[n - 6])
            a('s_add_u32 m0, %s, %d\ns_add_u32 s3, %s, %d' % (sring, (n % 6) * 2048, sdn, (128 * fs + 16 * tt) * 896))
            a('buffer_load_dwordx4 %s, %s, s3 offen lds' % (vd0, self.WD))
            a('s_add_u32 m0, m0, 1024')
            ddma[n] = a('buffer_load_dwordx4 %s, %s, s3 offen lds' % (vd1, self.WD))
        def d_tr(n, ct):
            if ct == 0: a.wait(vm=ddma[n])
            for e in range(2):
                b = 8 * n + 4 * ct + 2 * e
                dtr[n] = a('ds_read_b64_tr_b16 a[%d:%d], %s offset:%d' % (b, b + 1, vdt[ct], (n % 6) * 2048 + e * 512))
        late = []
        for n in range(28):
            sd = n if n < 6 else s_tr(n - 6) + 1
            at(sd, 2, lambda n=n: d_dma(n))
            for ct in range(2):
                if s_tr(n) < 56: at(s_tr(n), ct, lambda n=n, ct=ct: d_tr(n, ct))
                else: late.append(lambda n=n, ct=ct: d_tr(n, ct))
        hst = {}
        def epi_ops(acc, rt, tt):
            x = acc.sub(16 * rt, 16); ops = []
            for h in range(2):
                for r in range(4):
                    ops.append(lambda h=h, r=r: a('v_mul_f32 %s, %s, %s' % (x[8 * h + r], x[8 * h + r], x[8 * h + 4 + r])))
            for k in range(4):
                b = 8 * (k // 2) + 2 * (k % 2)
                ops.append(lambda k=k, b=b: a('v_cvt_pk_bf16_f32 %s, %s, %s' % (x[4 + k], x[b], x[b + 1])))
            def st():
                a('s_add_u32 s3, %s, %d' % (sH, rt * 112 * 1024 + tt * 14336))
                hst[tt, rt] = a('buffer_store_dwordx4 %s, %s, %s, s3 offen sc1' % (x.sub(4, 4), self.l16, self.WS))
            ops.append(st)
            return ops
        for rt in range(4):
            ops = epi_ops(accA, rt, 0)
            for k, op in enumerate(ops): at(29 + rt, min(k // 3, 3), op)
        def hflag0():
            a.wait(vm=hst[0, 3])
            self.flag_store(sHf, zero)
        at(cfg.get('hf0', 41), 3, hflag0)
        sHl, sPf, sPr = s.alloc(), s.alloc(), s.alloc()
        def g2setup():
            a('s_mul_i32 %s, %s, 224\ns_mul_i32 s3, %s, 28\ns_add_u32 %s, %s, s3\ns_lshl_b32 %s, %s, 10\ns_add_u32 %s, %s, %d'
              % (sHl, self.srb64, self.sw, sHl, sHl, sHl, sHl, sHl, sHl, HH_OFF))
            a('s_lshr_b32 s3, %s, 1\ns_mul_i32 s3, s3, 114688\nv_add_u32 %s, s3, %s' % (self.sw, vh[0], self.l16))
            a('s_sub_u32 s3, 114688, s3\nv_add_u32 %s, s3, %s' % (vh[1], self.l16))
        def g2setup2():
            a('s_lshr_b32 %s, %s, 1\ns_lshl_b32 %s, %s, 2\ns_add_u32 %s, %s, %s\ns_lshl_b32 %s, %s, 9\ns_add_u32 %s, %s, %d'
              % (sPf, self.srb64, sPf, sPf, sPf, sPf, self.sw, sPf, sPf, sPf, sPf, FL_OFF + HFL))
            a('s_lshl_b32 %s, %s, 7\ns_add_u32 %s, %s, %d' % (sPr, self.srb64, sPr, sPr, FL_OFF + RFL))
            a('v_min_u32 %s, 13, %s\nv_lshlrev_b32 %s, 4, %s' % (vpf, self.l, vpf, vpf))
            a('v_and_b32 %s, 7, %s\nv_lshlrev_b32 %s, 4, %s' % (vpr, self.l, vpr, vpr))
        at(34, 1, g2setup); at(35, 1, g2setup2)
        pl = {}
        def poll_issue():
            a('buffer_load_dword %s, %s, %s, %s offen sc1' % (pr, vpr, self.WS, sPr))
            pl[0] = a('buffer_load_dword %s, %s, %s, %s offen sc1' % (pf, vpf, self.WS, sPf))
        def poll_check0():
            lf, lo = a.label('L_hfail'), a.label('L_hok')
            a.wait(vm=pl[0])
            a('v_max_u32 %s, %s, %s\nv_cmp_eq_u32 vcc, -1, %s\ns_cbranch_vccnz %s' % (pf, pf, pr, pf, lf))
            a(lo + ':')
            def fail():
                a(lf + ':')
                self.spin_out(lo)
                poll_issue()
                a.wait_vm0()
                a('v_max_u32 %s, %s, %s\nv_cmp_eq_u32 vcc, -1, %s\ns_cbranch_vccnz %s\ns_branch %s' % (pf, pf, pr, pf, lf, lo))
            self.tail.append(fail)
        p0 = cfg.get('hp0', 47)
        at(p0, 3, poll_issue); at(p0 + 4, 3, poll_check0)
        v.release(t, u)
        early = v.alloc(4 * cfg.get('early', 13), 4)
        slots = [early.sub(4 * k, 4) for k in range(early.n // 4)] + [vt.sub(4 * k, 4) for k in range(4)]
        nearly = len(slots)
        slots += [zf.sub(4 * k, 4) for k in range(8)]
        hld, hslot = {}, {}
        def h_load(n, rt, slot):
            if (n % 4 == 0 and rt == 0) or h_load.force:
                a('s_add_u32 %s, %s, %d' % (h_load.s, sHl, (n // 4) * 4096)); h_load.force = False
            hslot[n, rt] = slot
            hld[n, rt] = a('buffer_load_dwordx4 %s, %s, %s, %s offen offset:%d sc1' % (slot, vh[rt], self.WS, h_load.s, (n % 4) * 1024))
        h_load.s = s.alloc(); h_load.force = True
        order = [(n, rt) for n in range(28) for rt in range(2)]
        gaps = [(sg, rt) for sg in range(p0 + 5, 56) for rt in range(4)]
        per = -(-nearly // len(gaps))
        for k in range(nearly):
            sg, rt = gaps[k // per]
            at(sg, rt, lambda k=k: h_load(order[k][0], order[k][1], slots[k]))

        for sg in range(56):
            acc = accA if sg < 28 else accB
            for rt in range(4):
                a.wait(lg=zrd[sg, rt])
                d = acc.sub(16 * rt, 16)
                a('v_mfma_f32_32x32x16_bf16 %s, a[%d:%d], %s, %s' % (d, 4 * sg, 4 * sg + 3, zf.sub(16 * (sg % 2) + 4 * rt, 4), d if sg % 28 else 0))
                if sg < 55: zread(sg + 1, rt)
                if (sg, rt) == (28, 0): self.stamp('pass1')
                if (sg, rt) == (p0 + 4, 3): self.stamp('prepoll')
                for fn in fill.get((sg, rt), []): fn()
        self.stamp('g1end')
        v.release(vz0, vz1, vown, vd0, vd1, chk)
        nxt = nearly
        for k in range(nearly, min(28, len(slots))):
            h_load(order[k][0], order[k][1], slots[k]); nxt = k + 1
        for fn in late: fn()
        acc = accA
        def g2_mfma(n, rt):
            a.wait(vm=hld[n, rt])
            if n == 27 and rt == 0: a.wait(lg=dtr[27])
            for ct in range(2):
                d = acc.sub(16 * (ct + 2 * rt), 16)
                a('v_mfma_f32_32x32x16_bf16 %s, a[%d:%d], %s, %s' % (d, 8 * n + 4 * ct, 8 * n + 4 * ct + 3, hslot[n, rt], d if n else 0))
        a.wait(lg=dtr[26])
        done = 0
        for rt in range(4):
            for k, op in enumerate(epi_ops(accB, rt, 1)):
                op()
                if k == 7:
                    g2_mfma(*order[done]); done += 1
        free = [accB.sub(16 * rt + 8, 4) for rt in range(4)] + [accB.sub(16 * rt + 12, 4) for rt in range(4)] + [accB.sub(16 * rt, 4) for rt in range(4)]
        while nxt < 28:
            h_load(order[nxt][0], order[nxt][1], free.pop(0)); nxt += 1
        f1 = cfg.get('hf1', 20)
        while done < f1:
            g2_mfma(*order[done]); free.append(hslot[order[done]]); done += 1
        a.wait(vm=hst[1, 3])
        a('s_add_u32 s3, %s, 256' % sHf)
        self.flag_store('s3', zero)
        vo, vr_ = v.alloc(), v.alloc(); so, sr = s.alloc(), s.alloc()
        hres = [free.pop(0), free.pop(0)]
        a('v_lshrrev_b32 %s, 5, %s\nv_lshlrev_b32 %s, 5, %s' % (vr_, self.l, vr_, vr_))
        a('v_mul_u32_u24 %s, 896, %s\nv_add_u32 %s, %s, %s' % (pf, self.p, pf, pf, vr_))
        a('v_and_b32 %s, 7, %s\nv_lshlrev_b32 %s, 5, %s\nv_lshrrev_b32 %s, 3, %s\nv_add_u32 %s, %s, %s' % (vo, self.l, vo, vo, pr, self.p, vo, vo, pr))
        a('v_mul_u32_u24 %s, 896, %s\nv_add_u32 %s, %s, %s\nv_mov_b32 %s, %s' % (vo, vo, vo, vo, vr_, vr_, pf))
        a('s_lshl_b32 %s, %s, 1\ns_and_b32 s3, %s, 1\ns_add_u32 %s, %s, s3\ns_lshl_b32 %s, %s, 6' % (so, self.scb, self.sw, so, so, so, so))
        a('s_lshl_b32 %s, %s, 1\ns_lshr_b32 s3, %s, 1\ns_add_u32 %s, %s, s3' % (sr, self.srb64, self.sw, sr, sr))
        a('s_and_b32 s3, %s, 7\ns_lshl_b32 s3, s3, 2\ns_lshr_b32 %s, %s, 3\ns_lshl_b32 %s, %s, 8\ns_add_u32 s3, s3, %s' % (sr, sPr, sr, sPr, sPr, sPr))
        a('s_mul_i32 s3, s3, 896\ns_mul_i32 %s, %s, %d\ns_add_u32 %s, %s, %s\ns_add_u32 %s, %s, %d\ns_add_u32 %s, %s, s3'
          % (sr, sr, 32 * 896, sr, sr, so, sr, sr, HR_OFF, so, so))
        a('buffer_load_dwordx4 %s, %s, %s, %s offen sc1' % (hres[0], vr_, self.WS, sr))
        hrl = a('buffer_load_dwordx4 %s, %s, %s, %s offen offset:16 sc1' % (hres[1], vr_, self.WS, sr))
        while done < 28:
            g2_mfma(*order[done]); free.append(hslot[order[done]]); done += 1
        for k in range(4):
            o = order[k]
            free.append(hslot[o])
        lp, lo = a.label('L_h1poll'), a.label('L_h1ok')
        a('s_add_u32 %s, %s, 256' % (sPf, sPf))
        a(lp + ':')
        a('buffer_load_dword %s, %s, %s, %s offen sc1' % (pf, vpf, self.WS, sPf))
        a.wait_vm0()
        a('v_cmp_eq_u32 vcc, -1, %s\ns_cbranch_vccz %s' % (pf, lo))
        self.spin_out(lo)
        a('s_branch %s' % lp)
        a(lo + ':')
        self.stamp('h1')
        free += [accB.sub(16 * rt + 4, 4) for rt in range(4)]
        order2 = [(n, 1) for n in range(14, 28)] + [(n, 0) for n in range(14, 28)]
        assert len(free) >= 28, len(free)
        last = None
        for n, rt in order2:
            h_load.force = last is None or last // 4 != n // 4
            last = n
            h_load(n, rt, free.pop(0))
        vrw = v.alloc(); vrr = [v.alloc() for _ in range(3)]
        a('v_add_u32 %s, %s, %s' % (vrw, sring, self.l16))
        for j in range(1, 4):
            a('s_xor_b32 s3, %s, %d\ns_mul_i32 s3, s3, 12288\ns_add_u32 s3, s3, %d\nv_add_u32 %s, s3, %s' % (self.sw, j, FFT + (j - 1) * 4096, vrr[j - 1], self.l16))
        a.wait(lg=dtr[27])
        def red_write(j, i):
            a('ds_write_b128 %s, %s offset:%d' % (vrw, acc.sub(16 * j + 4 * i, 4), (j - 1) * 4096 + i * 1024))
        wr = [(j, i) for j in (2, 3) for i in range(4)]
        for k, (n, rt) in enumerate(order2):
            a.wait(vm=hld[n, rt])
            for ct in ((1, 0) if rt == 0 else (0, 1)):
                d = acc.sub(16 * (ct + 2 * rt), 16)
                a('v_mfma_f32_32x32x16_bf16 %s, a[%d:%d], %s, %s' % (d, 8 * n + 4 * ct, 8 * n + 4 * ct + 3, hslot[n, rt], d))
            if k >= 17 and wr: red_write(*wr.pop(0))
        res = v.alloc(16) if False else early.sub(0, 16)
        for k in range(8):
            a('v_lshlrev_b32 %s, 16, %s\nv_and_b32 %s, 0xffff0000, %s' % (res[2 * k], hres[k // 4][k % 4], res[2 * k + 1], hres[k // 4][k % 4]))
        for i in range(4): red_write(1, i)
        for k in range(8):
            self.pk('add', res.sub(2 * k, 2), res.sub(2 * k, 2), acc.sub(2 * k, 2))
        a.wait_lg0()
        a('s_barrier')
        rd = {}
        for i in range(4):
            for j in range(1, 4):
                rd[j, i] = a('ds_read_b128 %s, %s offset:%d' % (acc.sub(16 * j + 4 * i, 4), vrr[j - 1], i * 1024))
        for i in range(4):
            for j in range(1, 4):
                a.wait(lg=rd[j, i])
                for e in range(2):
                    self.pk('add', res.sub(4 * i + 2 * e, 2), res.sub(4 * i + 2 * e, 2), acc.sub(16 * j + 4 * i + 2 * e, 2))
            for e in range(2):
                a('v_cvt_pk_bf16_f32 %s, %s, %s' % (acc[2 * i + e], res[4 * i + 2 * e], res[4 * i + 2 * e + 1]))
            if i % 2:
                a('buffer_store_dwordx4 %s, %s, %s, %s offen offset:%d' % (acc.sub(2 * i - 2, 4), vo, self.OUT, so, 8 * i - 8))

    def finish(self):
        a = self.a
        a('L_fin:')
        if self.stamps:
            a('s_waitcnt vmcnt(0) lgkmcnt(0)')
            self.stamp('done')
            a('s_waitcnt lgkmcnt(0)')
            a('s_lshl_b32 s3, s2, 2\ns_add_u32 s3, s3, %s\ns_lshl_b32 s3, s3, 8\ns_add_u32 s3, s3, %d' % (self.sw, ST_OFF))
            a('v_mov_b32 v1, 0\ns_mov_b64 exec, 1')
            if self.cfg.get('dbgst'):
                lab = a.label('L_nodbg')
                a('s_cmp_ge_u32 %s, 28\ns_cbranch_scc1 %s\ns_cmp_lg_u32 %s, 0\ns_cbranch_scc1 %s' % (self.si, lab, self.sw, lab))
                d = self.X
                a('s_load_dwordx2 %s, s[0:1], 64\ns_mov_b32 %s, 256\ns_waitcnt lgkmcnt(0)' % (d[0:2], d[2]))
                for k, (nm, r) in enumerate(self.stamps[:16]):
                    a('v_mov_b32 v2, %s' % r[0])
                    if k == 0: a('v_not_b32 v2, v2')
                    a('buffer_atomic_umax v2, v1, %s, 0 offen offset:%d sc1' % (d, 4 * k))
                    a('s_nop 1')
                a(lab + ':')
            for k, (nm, r) in enumerate(self.stamps):
                a('v_mov_b32 v2, %s' % r[0])
                a('buffer_store_dword v2, v1, %s, s3 offen offset:%d' % (self.WS, 4 * k))
        a('L_end:')
        a('s_endpgm')
        for fn in self.tail: fn()

    def build(self):
        self.s.free.discard(3)
        self.prologue(); self.p1(); self.p2(); self.p3(); self.gemms(); self.finish()
        nops = self.a.fix_hazards()
        errs = self.a.check_waits()
        return nops, errs


HEAD = '''; Kernarg layout (80 bytes, pointers only, base s[0:1]):
; @launch grid=(256,1,1) block=(256,1,1) lds=%d
.amdgcn_target "amdgcn-amd-amdhsa--gfx950"
.text
.globl %s
.p2align 8
.type %s,@function
%s:
'''
TAIL = '''
.fill 8192, 4, 0xbf800000
.section .rodata,"a"
.p2align 6
.amdhsa_kernel %s
  .amdhsa_next_free_vgpr 512
  .amdhsa_next_free_sgpr 102
  .amdhsa_accum_offset 256
  .amdhsa_group_segment_fixed_size 0
  .amdhsa_kernarg_size 80
  .amdhsa_user_sgpr_count 2
  .amdhsa_user_sgpr_kernarg_segment_ptr 1
  .amdhsa_system_sgpr_workgroup_id_x 1
.end_amdhsa_kernel
'''


def generate(cfg, path):
    g = Gen(cfg)
    nops, errs = g.build()
    for e in errs: print('WAIT-CHECK:', e)
    src = HEAD % (LDS_BYTES, KNAME, KNAME, KNAME) + g.a.text() + TAIL % KNAME
    if cfg.get('stamps'): src += '; cfg ' + ' '.join('%s=%s' % kv for kv in cfg.items()) + '\n'
    open(path, 'w').write(src)
    import os
    if g.stamps: open(path[:-2] + '.stamps', 'w').write(' '.join(x[0] for x in g.stamps))
    elif os.path.exists(path[:-2] + '.stamps'): os.remove(path[:-2] + '.stamps')
    n = sum(1 for x in g.a.ins if x.kind not in ('label', 'dir'))
    print('%s: %d instructions, %d hazard states, vgpr hi %d, sgpr hi %d, stamps %s' % (path, n, nops, g.v.hi, g.s.hi, [x[0] for x in g.stamps]))
    return g


if __name__ == '__main__':
    cfg = {}
    path = 'k.s'
    for arg in sys.argv[1:]:
        if '=' in arg:
            k, val = arg.split('='); cfg[k] = int(val) if val.lstrip('-').isdigit() else val
        else: path = arg
    generate(cfg, path)
```

```python
import math, struct, sys
from asmdsl import *

KNAME = 'sequential_preLN__spectral_gfnet__glu_gated_bilinear__prompt_kernel'
S, D, F = 2048, 448, 1792

Y1_OFF, Y2_OFF, Z2_OFF, HR_OFF, HH_OFF, FL_OFF, ST_OFF, WT_OFF = 0, 2 << 20, 4 << 20, 6 << 20, 8 << 20, 16 << 20, 17 << 20, 18 << 20
WS_BYTES = 20 << 20
YS = 8192
HFL = 0
RFL = 32768
CFL = 65536
EPO = 131072
OOB = 0x7f000000

BIG = 0
FFT = 114688
L_V, L_Y1G, L_T = FFT, FFT + 8192, FFT + 16384
L_Y2G, L_U, L_ZB, L_HB = FFT, FFT + 8192, FFT + 26112, FFT + 33280
L_W = FFT + 24576
UROW = 272
LDS_BYTES = 163840
SPIN = 1 << 16


def f2u(x):
    return struct.unpack('<I', struct.pack('<f', x))[0]


def hexf(x):
    return '0x%08x' % f2u(x)


class Gen:
    def __init__(self, cfg):
        self.cfg = cfg
        self.a = Asm()
        self.v = Regs('v', 1, 256)
        self.s = Regs('s', 3, 102)
        self.stamps = []

    def stamp(self, name):
        if not self.cfg.get('stamps') or name in self.cfg.get('skip', '').split(','):
            return
        r = self.s.alloc(2)
        self.stamps.append((name, r))
        self.a('%s %s' % ('s_memtime' if self.cfg.get('clk') else 's_memrealtime', r))

    def pk(self, op, d, x, y, z=None, neg=None, sel=None):
        srcs = [x, y] + ([z] if z is not None else [])
        n = len(srcs)
        sel = sel or [None] * n
        neg = neg or [0] * n
        lo = [1 if q == 'hi' else 0 for q in sel]
        hi = [0 if q == 'lo' else 1 for q in sel]
        m = ''
        if any(lo): m += ' op_sel:[%s]' % ','.join(map(str, lo))
        if not all(hi): m += ' op_sel_hi:[%s]' % ','.join(map(str, hi))
        if any(neg): m += ' neg_lo:[%s] neg_hi:[%s]' % (','.join(map(str, neg)), ','.join(map(str, neg)))
        return self.a('v_pk_%s_f32 %s, %s%s' % (op, d, ', '.join(map(str, srcs)), m))

    def cmul(self, re, im, c, sn, sign, t0, t1):
        self.pk('mul', t0, im, sn)
        self.pk('mul', t1, re, sn)
        self.pk('fma', re, re, c, t0, neg=[0, 0, 1 if sign > 0 else 0])
        self.pk('fma', im, im, c, t1, neg=[0, 0, 0 if sign > 0 else 1])

    def round_bf16(self, d, x):
        self.a('v_cvt_pk_bf16_f32 %s, 0, %s' % (d, x))

    def row_stats(self, s1, s2, t0, t1, mean, rs):
        a = self.a
        for n in (8, 4, 2, 1):
            a('v_add_f32_dpp %s, %s, %s row_ror:%d row_mask:0xf bank_mask:0xf' % (s1, s1, s1, n))
            a('v_add_f32_dpp %s, %s, %s row_ror:%d row_mask:0xf bank_mask:0xf' % (s2, s2, s2, n))
        a('v_mov_b32 %s, %s\nv_mov_b32 %s, %s' % (t0, s1, t1, s2))
        a('v_permlane16_swap_b32 %s, %s\nv_permlane16_swap_b32 %s, %s' % (s1, t0, s2, t1))
        a('v_add_f32 %s, %s, %s\nv_add_f32 %s, %s, %s' % (s1, s1, t0, s2, s2, t1))
        a('v_mul_f32 %s, %s, %s' % (s1, hexf(1.0 / D), s1))
        a('v_mul_f32 %s, %s, %s' % (s2, hexf(1.0 / D), s2))
        a('v_fma_f32 %s, -%s, %s, %s' % (s2, s1, s1, s2))
        a('v_max_f32 %s, 0, %s' % (s2, s2))
        self.round_bf16(s2, s2)
        a('v_add_f32 %s, %s, %s' % (s2, hexf(1e-5), s2))
        self.round_bf16(s2, s2)
        a('v_sqrt_f32 %s, %s' % (s2, s2))
        self.round_bf16(mean, s1)
        self.round_bf16(s2, s2)
        a('v_rcp_f32 %s, %s' % (rs, s2))

    def sentinel_max(self, acc, regs, first):
        regs = list(regs)
        if first:
            self.a('v_max3_u32 %s, %s, %s, %s' % (acc, regs[0], regs[1], regs[2])); regs = regs[3:]
        while len(regs) >= 2:
            self.a('v_max3_u32 %s, %s, %s, %s' % (acc, acc, regs[0], regs[1])); regs = regs[2:]
        if regs:
            self.a('v_max_u32 %s, %s, %s' % (acc, acc, regs[0]))

    def spin_out(self, lab):
        self.a('s_cmp_eq_u32 %s, 0\ns_cbranch_scc1 %s\ns_sub_u32 %s, %s, 1' % (self.spin, lab, self.spin, self.spin))

    def srd(self, slot, nbytes):
        r = self.s.alloc(4)
        self.a('s_load_dwordx2 %s, s[0:1], %d' % (r[0:2], slot * 8))
        self.a('s_mov_b32 %s, %d\ns_mov_b32 %s, 0x20000' % (r[2], nbytes, r[3]))
        return r

    def prologue(self):
        a, v, s = self.a, self.v, self.s
        cfg = self.cfg
        a('s_cmp_ge_u32 s2, 256\ns_cbranch_scc1 L_end')
        self.stamp('start')
        self.WS = self.srd(9, WS_BYTES)
        self.X = self.srd(0, S * D * 2)
        self.sx, self.si, self.sw, self.sreg = s.alloc(), s.alloc(), s.alloc(), s.alloc()
        self.l, self.n16, self.g, self.p = v.alloc(), v.alloc(), v.alloc(), v.alloc()
        self.l16, self.t16, self.ones = v.alloc(), v.alloc(), v.alloc(4)
        t = v.alloc(); self.junk = v.alloc()
        if cfg.get('scr'): a('s_lshr_b32 %s, s2, 5\ns_and_b32 %s, s2, 31' % (self.sx, self.si))
        else: a('s_and_b32 %s, s2, 7\ns_lshr_b32 %s, s2, 3' % (self.sx, self.si))
        if cfg.get('codepf', 1):
            pc = s.alloc(2)
            a('s_getpc_b64 %s' % pc)
            a('s_lshl_b32 s3, %s, 10' % self.si)
            a('v_and_b32 %s, 7, v0\nv_lshl_add_u32 %s, %s, 7, s3' % (t, t, t))
            a('global_load_dword %s, %s, %s' % (self.junk, t, pc), 'unused')
            s.release(pc)
        self.WR = self.srd(1, S * 225 * 2)
        self.WI = self.srd(2, S * 225 * 2)
        self.WG = self.srd(4, D * F * 2)
        self.WU = self.srd(5, D * F * 2)
        self.WD = self.srd(6, F * D * 2)
        self.OUT = self.srd(7, S * D * 2)
        a('v_lshrrev_b32 %s, 6, v0' % t)
        a('v_and_b32 %s, 63, v0' % self.l)
        a('v_readfirstlane_b32 %s, %s' % (self.sw, t))
        a('v_lshlrev_b32 %s, 4, v0' % self.t16)
        a('v_lshlrev_b32 %s, 4, %s' % (self.l16, self.l))
        a('s_lshl_b32 %s, %s, 5\ns_add_u32 %s, %s, %s' % (self.sreg, self.sx, self.sreg, self.sreg, self.si))
        for k in range(4):
            a('v_mov_b32 %s, -1' % self.ones[k])
        a('v_and_b32 %s, 31, %s' % (self.p, self.l))
        a('v_and_b32 %s, 15, %s' % (self.n16, self.l))
        a('v_lshrrev_b32 %s, 4, %s' % (self.g, self.l))
        vx = v.alloc(); sxo = s.alloc(); self.sY1, self.sY2, self.sWt = s.alloc(), s.alloc(), s.alloc()
        a('v_lshrrev_b32 %s, 5, %s' % (t, self.l))
        a('v_mul_u32_u24 %s, %d, %s' % (t, 32 * 896, t))
        a('v_lshl_add_u32 %s, %s, 2, %s' % (vx, self.p, t))
        a('s_lshl_b32 %s, %s, 2\ns_add_u32 %s, %s, %s\ns_lshl_b32 %s, %s, 6\ns_add_u32 %s, %s, %s\ns_mul_i32 %s, %s, 896'
          % (sxo, self.sx, sxo, sxo, self.sw, sxo, sxo, sxo, sxo, self.si, sxo, sxo))
        a('s_mul_i32 %s, %s, %d' % (self.sY1, self.sreg, YS))
        a('s_add_u32 %s, %s, %d\ns_add_u32 %s, %s, %d' % (self.sY2, self.sY1, Y2_OFF, self.sWt, self.sY1, WT_OFF))
        self.t16b = vt2 = v.alloc()
        a('v_add_u32 %s, 4096, %s' % (vt2, self.t16))
        self.n = v.alloc()
        a('s_lshl_b32 s3, %s, 4\nv_add_u32 %s, s3, %s' % (self.sw, self.n, self.n16))
        vwo = v.alloc(4); ssg, swb = s.alloc(), s.alloc()
        a('s_and_b32 %s, %s, 15\ns_lshr_b32 s3, %s, 6\ns_lshl_b32 s3, s3, 4\ns_add_u32 %s, %s, s3' % (swb, self.sreg, self.sreg, swb, swb))
        a('s_and_b32 s3, %s, 48\ns_lshl_b32 s3, s3, 4\ns_add_u32 %s, %s, s3' % (self.sreg, swb, swb))
        a('s_cmp_ge_u32 %s, 2\ns_cselect_b32 %s, -1, 1' % (self.sw, ssg))
        a('v_lshrrev_b32 %s, 5, %s\nv_lshl_add_u32 %s, %s, 6, %s\nv_mul_lo_u32 %s, %s, %s' % (t, self.l, t, t, swb, t, t, ssg))
        for n in range(4):
            o = vwo[n]
            a('s_mul_i32 s3, %s, %d' % (ssg, 128 * (n % 2) + 1024 * (n // 2)))
            a('v_add_u32 %s, s3, %s\nv_and_b32 %s, 2047, %s\nv_mul_u32_u24 %s, 450, %s' % (o, t, o, o, o, o))
            a('v_and_b32 %s, -4, %s\nv_lshl_add_u32 %s, %s, 4, %s' % (o, o, o, self.p, o))
        s.release(ssg, swb)
        self.consts_a()
        a('s_waitcnt lgkmcnt(0)')
        if cfg.get('wsoff'):
            a('s_add_u32 %s, %s, %d\ns_addc_u32 %s, %s, 0' % (self.WS[0], self.WS[0], cfg['wsoff'] << 20, self.WS[1], self.WS[1]))
        self.tagbase = s.alloc(2)
        a('s_add_u32 %s, %s, %d\ns_addc_u32 %s, %s, 0' % (self.tagbase[0], self.WS[0], FL_OFF, self.tagbase[1], self.WS[1]))
        self.stamp('karg')
        self.tag = s.alloc()
        a('s_load_dword %s, %s, %d' % (self.tag, self.tagbase, EPO))
        ops = {}
        def do_c():
            if cfg.get('noclr1'): a('s_mov_b32 %s, 0' % self.WS[2])
            for so in (self.sY1, self.sWt):
                a('buffer_store_dwordx4 %s, %s, %s, %s offen sc1' % (self.ones, self.t16, self.WS, so))
                ops['c'] = a('buffer_store_dwordx4 %s, %s, %s, %s offen sc1' % (self.ones, vt2, self.WS, so))
            if cfg.get('noclr1'): a('s_mov_b32 %s, %d' % (self.WS[2], WS_BYTES))
        self.xr = v.alloc(7)
        def do_x():
            nt = ' nt' if cfg.get('xnt', 1) else ''
            for d2 in range(7):
                self.xload = a('buffer_load_dword %s, %s, %s, %s offen offset:%d%s' % (self.xr[d2], vx, self.X, sxo, 128 * d2, nt))
        def do_w():
            nt = ' nt' if cfg.get('wnt', 0) else ''
            if cfg.get('now'): a('s_mov_b32 %s, 0' % self.WR[2])
            a('s_and_b32 s3, %s, 1\ns_cmp_eq_u32 s3, 0' % self.sw)
            a('s_cselect_b32 %s, %s, %s\ns_cselect_b32 %s, %s, %s' % (self.WR[0], self.WR[0], self.WI[0], self.WR[1], self.WR[1], self.WI[1]))
            a('s_lshl_b32 s3, %s, 12' % self.sw)
            for n in range(4):
                a('s_add_u32 m0, s3, %d' % (L_W + 1024 * n))
                self.wload = a('buffer_load_dwordx4 %s, %s, 0 offen%s lds' % (vwo[n], self.WR, nt))
        self.first_ops = dict(c=do_c, x=do_x, w=do_w)
        order = cfg.get('order', 'cxw')
        for ch in order.split('_')[0]: self.first_ops[ch]()
        self.late_ops = order.split('_')[1] if '_' in order else ''
        self.stamp('wiss')
        if cfg.get('tlb'):
            lab = a.label('L_notlb')
            a('s_cmp_lg_u32 %s, 3\ns_cbranch_scc1 %s' % (self.sw, lab))
            if cfg['tlb'] == 2: a('s_cmp_ge_u32 %s, 2\ns_cbranch_scc1 %s' % (self.si, lab))
            a('v_lshlrev_b32 %s, %d, %s' % (t, cfg.get('tlbsh', 19), self.l))
            n0 = a.nvm
            for r in (self.WS, self.OUT, self.WD, self.WG, self.WU):
                a('buffer_load_dword %s, %s, %s, 0 offen' % (self.junk, t, r), 'unused')
            a.nvm = n0
            a(lab + ':')
        u = v.alloc()
        self.srb, self.sfs, self.srb64, self.scb = s.alloc(), s.alloc(), s.alloc(), s.alloc()
        q7 = s.alloc()
        a('s_mul_i32 %s, %s, 37\ns_lshr_b32 %s, %s, 8' % (q7, self.si, q7, q7))
        a('s_mul_i32 %s, %s, 7\ns_sub_u32 %s, %s, %s' % (self.scb, q7, self.scb, self.si, self.scb))
        a('s_lshl_b32 %s, %s, 2\ns_add_u32 %s, %s, %s' % (self.srb64, self.sx, self.srb64, self.srb64, q7))
        a('s_lshr_b32 %s, %s, 1\ns_lshl_b32 %s, %s, 2\ns_add_u32 %s, %s, %s' % (self.srb, self.sx, self.srb, self.srb, self.srb, self.srb, q7))
        a('s_and_b32 %s, %s, 1\ns_mul_i32 %s, %s, 7\ns_add_u32 %s, %s, %s' % (self.sfs, self.sx, self.sfs, self.sfs, self.sfs, self.sfs, self.scb))
        s.release(q7)
        if cfg.get('gupf', 1):
            pf = s.alloc(4)
            a('s_and_b32 s3, %s, 1\ns_cmp_eq_u32 s3, 0' % self.sw)
            a('s_cselect_b32 %s, %s, %s\ns_cselect_b32 %s, %s, %s' % (pf[0], self.WG[0], self.WU[0], pf[1], self.WG[1], self.WU[1]))
            a('s_mov_b32 %s, %d\ns_mov_b32 %s, 0x20000' % (pf[2], D * F * 2, pf[3]))
            a('v_mul_u32_u24 %s, 3584, %s\nv_min_u32 %s, 13, %s\nv_lshl_add_u32 %s, %s, 7, %s' % (t, self.g, u, self.n16, t, u, t))
            a('s_lshl_b32 %s, %s, 1\ns_lshr_b32 s3, %s, 1\ns_add_u32 %s, %s, s3\ns_mul_i32 %s, %s, %d' % (sxo, self.si, self.sw, sxo, sxo, sxo, sxo, 7 * 3584))
            a('s_and_b32 s3, %s, 1\ns_mul_i32 s3, s3, 1792\ns_add_u32 %s, %s, s3\ns_add_u32 s3, %s, %d' % (self.sx, sxo, sxo, sxo, 4 * 3584))
            a('buffer_load_dword %s, %s, %s, %s offen' % (self.junk, t, pf, sxo), 'unused')
            a('buffer_load_dword %s, %s, %s, s3 offen' % (self.junk, t, pf), 'unused')
            s.release(pf)
        a('s_cmp_lt_u32 %s, %d' % (self.si, 0 if cfg.get('nostage') else 28))
        if cfg.get('nowd'): a('s_mov_b32 %s, 0' % self.WD[2])
        a('s_cselect_b32 %s, %s, 0\ns_cselect_b32 %s, %s, 0' % (self.WG[2], self.WG[2], self.WU[2], self.WU[2]))
        self.stamp('issued')
        self.vsg, self.vsu, self.sst, self.sbig = v.alloc(), v.alloc(), s.alloc(), s.alloc()
        a('v_lshrrev_b32 %s, 2, %s\nv_mul_u32_u24 %s, 3584, %s' % (t, self.l, t, t))
        a('v_and_b32 %s, 3, %s\nv_lshl_add_u32 %s, %s, 4, %s' % (self.vsg, self.l, self.vsg, self.vsg, t))
        a('v_xor_b32 %s, 32, %s' % (self.vsu, self.vsg))
        a('s_lshl_b32 %s, %s, 2\ns_add_u32 %s, %s, %s\ns_lshl_b32 %s, %s, 6' % (self.sst, self.sfs, self.sst, self.sst, self.sw, self.sst, self.sst))
        a('s_mul_i32 %s, %s, 28672' % (self.sbig, self.sw))
        self.consts_b()
        for ch in self.late_ops: self.first_ops[ch]()
        v.release(vwo, vx)
        a.wait(vm=ops['c'])
        a.wait_lg0()
        s.release(self.tagbase)
        a('s_mul_i32 %s, %s, 0x9e3779b1\ns_add_u32 %s, %s, 0x7f4a7c15' % (self.tag, self.tag, self.tag, self.tag))
        a('s_barrier')
        lab = a.label('L_noarr')
        a('s_cmp_lg_u32 %s, 0\ns_cbranch_scc1 %s' % (self.sw, lab))
        a('s_lshl_b32 s3, %s, 4\ns_add_u32 s3, s3, %d' % (self.sreg, FL_OFF + CFL))
        a('v_mov_b32 %s, %s\nv_lshlrev_b32 %s, 12, v0' % (t, self.tag, u))
        a('s_mov_b64 exec, 0xff')
        a('buffer_store_dword %s, %s, %s, s3 offen sc1' % (t, u, self.WS))
        a('s_mov_b64 exec, -1')
        a.nvm -= 1
        a(lab + ':')
        self.stamp('clr1')
        if cfg.get('xfirst'):
            a.wait(vm=self.xload)
            self.stamp('x0')
        if cfg.get('noclr'): a('s_mov_b32 %s, 0' % self.WS[2])
        a('buffer_store_dwordx4 %s, %s, %s, %s offen sc1' % (self.ones, self.t16, self.WS, self.sY2))
        a('buffer_store_dwordx4 %s, %s, %s, %s offen sc1' % (self.ones, vt2, self.WS, self.sY2))
        self.vz0, self.vz1, self.sZ = v.alloc(), v.alloc(), s.alloc()
        a('v_lshrrev_b32 %s, 3, v0\nv_lshlrev_b32 %s, 9, %s' % (t, t, t))
        a('v_and_b32 %s, 7, v0\nv_lshl_add_u32 %s, %s, 4, %s' % (self.vz0, self.vz0, self.vz0, t))
        a('v_add_u32 %s, 16384, %s' % (self.vz1, self.vz0))
        a('v_mov_b32 %s, %d' % (t, OOB))
        a('v_cmp_gt_u32 vcc, 192, v0')
        a('v_cndmask_b32 %s, %s, %s, vcc' % (self.vz1, t, self.vz1))
        a('s_lshr_b32 %s, %s, 2\ns_mul_i32 %s, %s, 28672' % (self.sZ, self.sreg, self.sZ, self.sZ))
        a('s_and_b32 %s, %s, 3\ns_lshl_b32 %s, %s, 7' % (sxo, self.si, sxo, sxo))
        a('s_add_u32 %s, %s, %s\ns_add_u32 %s, %s, %d' % (self.sZ, self.sZ, sxo, self.sZ, self.sZ, Z2_OFF))
        a('buffer_store_dwordx4 %s, %s, %s, %s offen sc1' % (self.ones, self.vz0, self.WS, self.sZ))
        a('buffer_store_dwordx4 %s, %s, %s, %s offen sc1' % (self.ones, self.vz1, self.WS, self.sZ))
        a('v_cmp_gt_u32 vcc, 16, v0')
        a('v_cndmask_b32 %s, %s, %s, vcc' % (u, t, self.t16))
        a('s_lshl_b32 %s, s2, 8\ns_add_u32 %s, %s, %d' % (sxo, sxo, sxo, FL_OFF))
        self.clr2 = a('buffer_store_dwordx4 %s, %s, %s, %s offen sc1' % (self.ones, u, self.WS, sxo))
        if cfg.get('noclr'): a('s_mov_b32 %s, %d' % (self.WS[2], WS_BYTES))
        self.stamp('c2iss')
        v.release(t, u)
        s.release(sxo)

    def stage_dma(self, k0, k1):
        a = self.a
        if self.cfg.get('nostage') == 2:
            self.stg = 0
            return
        for k in range(k0, k1):
            a('s_add_u32 m0, %s, %d' % (self.sbig, BIG + 2048 * k))
            a('buffer_load_dwordx4 %s, %s, %s offen lds' % (self.vsg, self.WG, self.sst))
            a('s_add_u32 m0, m0, 1024')
            self.stg = a('buffer_load_dwordx4 %s, %s, %s offen lds' % (self.vsu, self.WU, self.sst))
            a('s_add_u32 %s, %s, %d' % (self.sst, self.sst, 16 * 3584))

    def stage_read(self, rnd):
        a, v = self.a, self.v
        if rnd == 0:
            self.vtr = v.alloc(2)
            t, u = v.alloc(), v.alloc()
            a('v_bfe_u32 %s, %s, 1, 1\nv_mul_u32_u24 %s, 1056, %s' % (t, self.l, t, t))
            a('v_bfe_u32 %s, %s, 2, 2\nv_lshl_add_u32 %s, %s, 6, %s' % (u, self.l, t, u, t))
            a('v_lshrrev_b32 %s, 5, %s\nv_lshl_add_u32 %s, %s, 9, %s' % (u, self.l, t, u, t))
            a('v_and_b32 %s, 1, %s\nv_lshl_add_u32 %s, %s, 4, %s' % (u, self.l, t, u, t))
            a('v_bfe_u32 %s, %s, 4, 1\nv_lshl_add_u32 %s, %s, 3, %s' % (u, self.l, t, u, t))
            a('v_add_u32 %s, %s, %s' % (self.vtr[0], self.sbig, t))
            a('v_xor_b32 %s, 32, %s' % (self.vtr[1], self.vtr[0]))
            v.release(t, u)
        a.wait(vm=self.stg)
        for k in range(14):
            for t in range(2):
                for e in range(2):
                    b = (t * 28 + rnd * 14 + k) * 4 + 2 * e
                    a('ds_read_b64_tr_b16 a[%d:%d], %s offset:%d' % (b, b + 1, self.vtr[t], BIG + k * 2048 + e * 256))
        if rnd == 1:
            v.release(self.vtr, self.vsg, self.vsu)

    def consts_a(self):
        a, v, s = self.a, self.v, self.s
        self.F64r, self.F64i = v.alloc(16), v.alloc(16)
        self.C2, self.S2 = v.alloc(8), v.alloc(8)
        self.ct = fn, a0, ang, c, sn, msk, g4 = [v.alloc() for _ in range(7)]
        a('v_and_b32 %s, 1, %s\nv_mul_u32_u24 %s, 0x8000, %s\nv_lshl_or_b32 %s, %s, 16, %s' % (msk, self.l, msk, msk, msk, msk, msk))
        a('v_lshlrev_b32 %s, 2, %s\nv_cvt_f32_u32 %s, %s' % (g4, self.g, g4, g4))
        a('v_cvt_f32_u32 %s, %s\nv_mul_f32 %s, %s, %s\nv_mul_f32 %s, %s, %s' % (fn, self.n, fn, hexf(1 / 64.0), fn, a0, fn, g4))
        self.f64rows(range(self.cfg.get('ca', 4)))

    def f64rows(self, ks):
        a = self.a
        fn, a0, ang, c, sn, msk, g4 = self.ct
        for k in ks:
            q, r = k // 4, k % 4
            a('v_fmamk_f32 %s, %s, %s, %s' % (ang, fn, hexf(16 * q + r), a0))
            a('v_cos_f32 %s, %s\nv_sin_f32 %s, %s' % (c, ang, sn, ang))
            a('v_mul_f32 %s, %s, %s' % (ang, hexf(1 / 32.0), ang))
            a('v_cvt_pk_bf16_f32 %s, %s, %s' % (self.F64r[k], c, sn))
            a('v_cvt_pk_bf16_f32 %s, -%s, %s' % (self.F64i[k], sn, c))
            a('v_cos_f32 %s, %s\nv_sin_f32 %s, %s' % (self.C2[k], ang, self.S2[k], ang))
            a('v_xor_b32 %s, %s, %s\nv_xor_b32 %s, %s, %s' % (self.F64r[k + 8], msk, self.F64r[k], self.F64i[k + 8], msk, self.F64i[k]))

    def consts_b(self):
        a, v, s = self.a, self.v, self.s
        fn, a0, ang, c, sn, msk, g4 = self.ct
        self.f64rows(range(self.cfg.get('ca', 4), 8))
        self.F32r, self.F32i = v.alloc(16), v.alloc(16)
        self.C1, self.S1 = v.alloc(6), v.alloc(6)
        a('v_lshlrev_b32 %s, 1, %s\nv_cvt_f32_u32 %s, %s\nv_add_f32 %s, 1.0, %s' % (fn, self.p, fn, fn, a0, fn))
        for j in range(1, 4):
            for e, src in enumerate((fn, a0)):
                a('v_mul_f32 %s, %s, %s' % (ang, hexf(j / 448.0), src))
                a('v_cos_f32 %s, %s\nv_sin_f32 %s, %s' % (self.C1[2 * j - 2 + e], ang, self.S1[2 * j - 2 + e], ang))
        a('v_cvt_f32_u32 %s, %s\nv_mul_f32 %s, %s, %s\nv_mul_f32 %s, %s, %s' % (fn, self.n16, fn, hexf(1 / 32.0), fn, a0, fn, g4))
        for r in range(4):
            a('v_fmamk_f32 %s, %s, %s, %s' % (ang, fn, hexf(r), a0))
            a('v_cos_f32 %s, %s\nv_sin_f32 %s, %s' % (c, ang, sn, ang))
            a('v_cvt_pk_bf16_f32 %s, %s, %s' % (self.F32r[r], c, sn))
            a('v_cvt_pk_bf16_f32 %s, -%s, %s' % (self.F32i[r], sn, c))
            for M in (self.F32r, self.F32i):
                a('v_xor_b32 %s, %s, %s' % (M[4 + r], msk, M[r]))
                for q in range(2):
                    if r % 2: a('v_xor_b32 %s, 0x80008000, %s' % (M[8 + 4 * q + r], M[4 * q + r]))
                    else: a('v_mov_b32 %s, %s' % (M[8 + 4 * q + r], M[4 * q + r]))
        v.release(*self.ct)
        self.K7 = s.alloc(6, 2)
        for k in range(1, 4):
            a('s_mov_b32 %s, %s' % (self.K7[2 * k - 2], hexf(math.cos(2 * math.pi * k / 7))))
            a('s_mov_b32 %s, %s' % (self.K7[2 * k - 1], hexf(math.sin(2 * math.pi * k / 7))))

    def k7(self, m):
        m %= 7
        return (self.K7.sub(2 * m - 2, 2), 1) if m <= 3 else (self.K7.sub(2 * (7 - m) - 2, 2), -1)

    def p1(self):
        a, v, s = self.a, self.v, self.s
        vw0, vw1, vr0, vr1, t, u = [v.alloc() for _ in range(6)]
        a('v_lshrrev_b32 %s, 5, %s\ns_lshl_b32 s3, %s, 1\nv_add_u32 %s, s3, %s' % (t, self.l, self.sw, t, t))
        self.va = v.alloc()
        a('v_mov_b32 %s, %s' % (self.va, t))
        a('v_bfe_u32 %s, %s, 1, 2\nv_xor_b32 %s, %s, %s' % (u, self.p, t, t, u))
        a('v_bfe_u32 %s, %s, 3, 1\nv_mul_u32_u24 %s, 12, %s\nv_xor_b32 %s, %s, %s' % (u, self.p, u, u, t, t, u))
        a('v_lshlrev_b32 %s, 4, %s' % (t, t))
        a('v_lshrrev_b32 %s, 1, %s\nv_lshl_add_u32 %s, %s, 8, %s' % (u, self.p, t, u, t))
        a('v_and_b32 %s, 1, %s\nv_lshl_add_u32 %s, %s, 3, %s' % (u, self.p, t, u, t))
        a('v_add_u32 %s, %d, %s\nv_xor_b32 %s, 128, %s' % (vw0, L_V, t, vw1, vw0))
        a('v_xor_b32 %s, %s, %s\nv_lshlrev_b32 %s, 4, %s\nv_lshl_add_u32 %s, %s, 8, %s' % (t, self.n16, self.g, t, t, t, self.g, t))
        a('v_add_u32 %s, %d, %s\nv_xor_b32 %s, 192, %s' % (vr0, L_V, t, vr1, vr0))
        vst = v.alloc()
        a('v_lshlrev_b32 %s, 4, %s\nv_lshl_add_u32 %s, %s, 6, %s' % (t, self.g, t, self.n16, t))
        a('s_lshl_b32 s3, %s, 10\nv_add_u32 %s, s3, %s' % (self.sw, vst, t))
        a.wait(vm=self.xload)
        self.stamp('x')
        self.Xf = X = v.alloc(14)
        P = lambda R_, k: R_.sub(2 * k, 2)
        for d2 in range(7):
            a('v_lshlrev_b32 %s, 16, %s\nv_and_b32 %s, 0xffff0000, %s' % (X[2 * d2], self.xr[d2], X[2 * d2 + 1], self.xr[d2]))
        v.release(self.xr)
        T, U, RE, IM = v.alloc(6), v.alloc(6), v.alloc(8), v.alloc(6)
        sq, t0, t1 = v.alloc(2), v.alloc(2), v.alloc(2)
        for k in range(1, 4):
            self.pk('add', P(T, k - 1), P(X, k), P(X, 7 - k))
        self.pk('mul', sq, P(X, 0), P(X, 0))
        self.pk('add', P(RE, 0), P(X, 0), P(T, 0))
        for d2 in range(1, 4): self.pk('fma', sq, P(X, d2), P(X, d2), sq)
        self.pk('add', t0, P(T, 1), P(T, 2))
        for d2 in range(4, 7): self.pk('fma', sq, P(X, d2), P(X, d2), sq)
        self.pk('add', P(RE, 0), P(RE, 0), t0)
        s1, s2, mean, rs = [v.alloc() for _ in range(4)]
        a('v_add_f32 %s, %s, %s' % (s2, sq[0], sq[1]))
        a('v_add_f32 %s, %s, %s' % (s1, RE[0], RE[1]))
        for k in range(1, 4):
            self.pk('add', P(U, k - 1), P(X, k), P(X, 7 - k), neg=[0, 1])
        self.row_stats(s1, s2, t, u, mean, rs)
        for j in range(1, 4):
            for k in range(1, 4):
                c, sg = self.k7(j * k)
                self.pk('fma', P(RE, j), P(T, k - 1), c, P(X, 0) if k == 1 else P(RE, j), sel=[None, 'lo', None])
                if k == 1: self.pk('mul', P(IM, j - 1), P(U, 0), c, sel=[None, 'hi'], neg=[0, 1 if sg > 0 else 0])
                else: self.pk('fma', P(IM, j - 1), P(U, k - 1), c, P(IM, j - 1), sel=[None, 'hi', None], neg=[0, 1 if sg > 0 else 0, 0])
        for j in range(1, 4):
            self.cmul(P(RE, j), P(IM, j - 1), P(self.C1, j - 1), P(self.S1, j - 1), -1, t0, t1)
        a('v_mul_f32 %s, %s, %s' % (mean, hexf(-7.0), mean))
        a('v_mul_f32 %s, %s, %s\nv_mov_b32 %s, %s' % (t0[0], hexf(2.0 / (S * D)), rs, t0[1], mean))
        a('v_mul_f32 %s, %s, %s' % (t1[0], hexf(1.0 / (S * D)), rs))
        self.pk('add', P(RE, 0), P(RE, 0), t0, sel=[None, 'hi'])
        for j in range(4):
            self.pk('mul', P(RE, j), P(RE, j), t0 if j else t1, sel=[None, 'lo'])
            if j: self.pk('mul', P(IM, j - 1), P(IM, j - 1), t0, sel=[None, 'lo'])
        for j in range(4):
            o = P(T, j) if j < 3 else P(U, 0)
            for e in range(2):
                a('v_cvt_pk_bf16_f32 %s, %s, %s' % (o[e], RE[2 * j + e], IM[2 * j - 2 + e] if j else 0))
            a('ds_write_b64 %s, %s offset:%d' % (vw1 if j & 1 else vw0, o, (j >> 1) * 4096))
        a.wait_lg0()
        a('s_barrier')
        v.release(T, U, RE, IM, sq, t0, t1, s1, s2, mean, rs, vw0, vw1)
        A = v.alloc(32, 4); acc = v.alloc(16, 4); o = v.alloc(8, 4)
        rd = {}
        for Pp in range(2):
            for q in range(4):
                rd[Pp, q] = a('ds_read_b128 %s, %s offset:%d' % (A.sub(16 * Pp + 4 * q, 4), vr1 if q & 1 else vr0, Pp * 4096 + q * 1024))
        for Pp in range(2):
            for q in range(4):
                a.wait(lg=rd[Pp, q])
                for c, M in enumerate((self.F64r, self.F64i)):
                    d = acc.sub(8 * Pp + 4 * c, 4)
                    a('v_mfma_f32_16x16x32_bf16 %s, %s, %s, %s' % (d, A.sub(16 * Pp + 4 * q, 4), M.sub(4 * q, 4), d if q else 0))
        a('v_add_u32 %s, 4096, %s' % (t, vst))
        for Pp in range(2):
            for r in range(4):
                a('v_cvt_pk_bf16_f32 %s, %s, %s' % (o[4 * Pp + r], acc[8 * Pp + r], acc[8 * Pp + 4 + r]))
            self.y1st = a('buffer_store_dwordx4 %s, %s, %s, %s offen sc1' % (o.sub(4 * Pp, 4), t if Pp else vst, self.WS, self.sY1))
        self.stamp('p1')
        v.release(A, acc, o, vr0, vr1, vst, t, u)

    def p2(self):
        a, v, s = self.a, self.v, self.s
        cnt, t, u = v.alloc(), v.alloc(), v.alloc()
        scf = s.alloc()
        a('s_lshl_b32 %s, %s, 12\ns_add_u32 %s, %s, %d' % (scf, self.sx, scf, scf, FL_OFF + CFL))
        cl = a('buffer_load_dword %s, %s, %s, %s offen sc1' % (cnt, self.t16, self.WS, scf))
        wq = v.alloc(8, 4); vj, vm_ = v.alloc(), v.alloc()
        a('v_lshrrev_b32 %s, 2, v0\nv_mul_u32_u24 %s, 7, %s\nv_and_b32 %s, 3, v0\nv_add_u32 %s, %s, %s' % (vj, vj, vj, t, vj, vj, t))
        a('v_sub_u32 %s, %d, %s\nv_cmp_lt_u32 vcc, 224, %s' % (t, 448 + 4096, vj, vj))
        a('v_mov_b32 %s, 0x80000000' % vm_)
        a('v_cndmask_b32 %s, %s, %s, vcc\nv_cndmask_b32 %s, 0, %s, vcc' % (vj, vj, t, vm_, vm_))
        a('s_and_b32 s3, %s, 1\ns_lshl_b32 s3, s3, 1\ns_add_u32 s3, s3, %d\nv_lshl_add_u32 %s, %s, 1, s3' % (self.sreg, L_W, vj, vj))
        a.wait(vm=self.clr2)
        self.stamp('clr2')
        a('s_barrier')
        wh = v.alloc(8)
        for k in range(8):
            a('ds_read_u16 %s, %s offset:%d' % (wq[k], vj, 512 * k))
            a('ds_read_u16_d16_hi %s, %s offset:%d' % (wh[k], vj, 4096 + 512 * k))
        a.wait_lg0()
        for k in range(8): a('v_and_b32 %s, 0xffff0000, %s' % (wh[k], wh[k]))
        v.release(wh)
        for h in range(2):
            for k in range(4 * h, 4 * h + 4): a('v_bitop3_b32 %s, %s, %s, %s bitop3:0x56' % (wq[k], wq[k], wh[k], vm_))
            wst = a('buffer_store_dwordx4 %s, %s, %s, %s offen sc1' % (wq.sub(4 * h, 4), self.t16b if h else self.t16, self.WS, self.sWt))
        v.release(vm_, self.t16b)
        na = self.cfg.get('na', 4)
        self.stage_dma(0, na)
        swg = s.alloc()
        a('v_mul_u32_u24 %s, %d, v0' % (vj, YS))
        a('s_lshl_b32 %s, %s, 4\ns_add_u32 %s, %s, %d' % (swg, self.sreg, swg, swg, WT_OFF))
        vg0, vg1, sg = v.alloc(), v.alloc(), s.alloc()
        a('v_lshrrev_b32 %s, 1, %s\nv_lshl_add_u32 %s, %s, 5, %s\nv_mul_u32_u24 %s, %d, %s' % (t, self.g, t, t, self.n16, t, YS, t))
        a('v_and_b32 %s, 1, %s\nv_lshl_add_u32 %s, %s, 4, %s' % (vg0, self.g, vg0, vg0, t))
        a('v_add_u32 %s, %d, %s' % (vg1, 16 * YS, vg0))
        a('s_lshr_b32 %s, %s, 2\ns_lshl_b32 %s, %s, 6' % (sg, self.sreg, sg, sg))
        a('s_and_b32 s3, %s, 2\ns_lshl_b32 s3, s3, 11\ns_add_u32 %s, %s, s3' % (self.sreg, sg, sg))
        a('s_and_b32 s3, %s, 1\ns_lshl_b32 s3, s3, 5\ns_add_u32 %s, %s, s3' % (self.sreg, sg, sg))
        a('s_mul_i32 s3, %s, %d\ns_add_u32 %s, %s, s3' % (self.sw, 64 * YS, sg, sg))
        sm = s.alloc()
        a('s_lshl_b32 %s, %s, 10\ns_add_u32 %s, %s, %d' % (sm, self.sw, sm, sm, L_Y1G))
        vlr, vtw, vst = v.alloc(), v.alloc(), v.alloc()
        a('v_add_u32 %s, %d, %s' % (vlr, L_Y1G, self.l16))
        a('v_lshrrev_b32 %s, 2, %s\nv_lshlrev_b32 %s, 8, %s\nv_lshl_add_u32 %s, %s, 6, %s' % (t, self.n16, t, t, t, self.g, t))
        a('v_and_b32 %s, 3, %s\nv_lshl_add_u32 %s, %s, 2, %s' % (vtw, self.l, t, vtw, t))
        a('s_lshl_b32 s3, %s, 10\ns_add_u32 s3, s3, %d\nv_add_u32 %s, s3, %s' % (self.sw, L_T, vtw, t))
        a('v_lshrrev_b32 %s, 1, %s\nv_lshlrev_b32 %s, 10, %s\nv_lshl_add_u32 %s, %s, 5, %s' % (t, self.g, t, t, t, self.n16, t))
        a('v_and_b32 %s, 1, %s\nv_lshl_add_u32 %s, %s, 4, %s' % (vst, self.g, t, vst, t))
        a('s_lshl_b32 s3, %s, 11\nv_add_u32 %s, s3, %s' % (self.sw, vst, t))
        self.spin = s.alloc()
        a('s_mov_b32 %s, %d' % (self.spin, SPIN))
        a.wait(vm=cl)
        self.stamp('cnt')
        l0, l1 = a.label('L_clr'), a.label('L_clrok')
        a(l0 + ':')
        a('v_cmp_ne_u32 vcc, %s, %s\ns_cbranch_vccz %s' % (self.tag, cnt, l1))
        self.spin_out(l1)
        a('s_sleep 4')
        a('buffer_load_dword %s, %s, %s, %s offen sc1' % (cnt, self.t16, self.WS, scf))
        a.nvm -= 1
        a.wait_vm0()
        a('s_branch %s' % l0)
        a(l1 + ':')
        self.stamp('drain1')

        def gather():
            a('s_mov_b32 m0, %s' % sm)
            a('buffer_load_dwordx4 %s, %s, %s offen sc1 lds' % (vg0, self.WS, sg))
            a('s_add_u32 m0, %s, 4096' % sm)
            return a('buffer_load_dwordx4 %s, %s, %s offen sc1 lds' % (vg1, self.WS, sg))
        gl = gather()
        a('s_mov_b32 %s, %d' % (self.spin, SPIN))

        def wgather():
            a('buffer_load_dwordx4 %s, %s, %s, %s offen sc1' % (wq.sub(0, 4), vj, self.WS, swg))
            a('s_add_u32 s3, %s, 4096' % swg)
            return a('buffer_load_dwordx4 %s, %s, %s, s3 offen sc1' % (wq.sub(4, 4), vj, self.WS))
        a.wait(vm=wst)
        wl = wgather()
        self.stage_dma(na, 14)
        a.wait(vm=gl)
        lr, lf, lo = a.label('L_p2'), a.label('L_p2fail'), a.label('L_p2ok')
        a(lr + ':')
        a('s_barrier')
        A = v.alloc(32, 4); D1 = v.alloc(16, 4); B = v.alloc(8, 4); t0, t1 = v.alloc(2), v.alloc(2)
        rd = {}
        for tt in range(2):
            for q in range(4):
                rd[tt, q] = a('ds_read_b128 %s, %s offset:%d' % (A.sub(16 * tt + 4 * q, 4), vlr, tt * 4096 + q * 1024))
        for tt in range(2):
            for q in range(4):
                a.wait(lg=rd[tt, q])
                f = A.sub(16 * tt + 4 * q, 4)
                for c, M in enumerate((self.F64r, self.F64i)):
                    d = D1.sub(8 * tt + 4 * c, 4)
                    a('v_mfma_f32_16x16x32_bf16 %s, %s, %s, %s' % (d, f, M.sub(4 * q, 4), d if q else 0))
                self.sentinel_max(cnt, [f[k] for k in range(4)], tt == 0 and q == 0)
        a('v_cmp_eq_u32 vcc, -1, %s\ns_cbranch_vccnz %s' % (cnt, lf))
        a(lo + ':')
        self.stamp('g1')
        self.tail = getattr(self, 'tail', [])

        def fail2():
            a(lf + ':')
            self.spin_out(lo)
            a('s_barrier')
            gather()
            a.wait_vm0()
            a('s_branch %s' % lr)
        self.tail.append(fail2)

        def twiddle(Dr, Di, C, Sn, sign, swap):
            for tt in range(2):
                for h in range(2):
                    k = 4 * tt + 2 * h
                    re, im = Dr(tt).sub(2 * h, 2), Di(tt).sub(2 * h, 2)
                    self.cmul(re, im, C.sub(k, 2), Sn.sub(k, 2), sign, t0, t1)
                    for e in range(2):
                        x, y = (im[e], re[e]) if swap else (re[e], im[e])
                        a('v_cvt_pk_bf16_f32 %s, %s, %s' % (B[k + e], x, y))

        def f32stage(Dd):
            for tt in range(2):
                for c, M in enumerate((self.F32r, self.F32i)):
                    d = Dd.sub(8 * tt + 4 * c, 4)
                    for q in range(2):
                        a('v_mfma_f32_16x16x32_bf16 %s, %s, %s, %s' % (d, M.sub(8 * tt + 4 * q, 4), B.sub(4 * q, 4), d if q else 0))
        R0 = lambda Dd: (lambda tt: Dd.sub(8 * tt, 4))
        R1 = lambda Dd: (lambda tt: Dd.sub(8 * tt + 4, 4))
        D2 = A.sub(0, 16)
        twiddle(R0(D1), R1(D1), self.C2, self.S2, -1, False)
        f32stage(D2)
        lwf, lwo = a.label('L_wfail'), a.label('L_wok')
        a.wait(vm=wl)
        self.sentinel_max(cnt, [wq[k] for k in range(8)], True)
        a('v_cmp_eq_u32 vcc, -1, %s\ns_cbranch_vccnz %s' % (cnt, lwf))
        a(lwo + ':')

        def failw():
            a(lwf + ':')
            self.spin_out(lwo)
            wgather()
            a.wait_vm0()
            self.sentinel_max(cnt, [wq[k] for k in range(8)], True)
            a('v_cmp_eq_u32 vcc, -1, %s\ns_cbranch_vccnz %s\ns_branch %s' % (cnt, lwf, lwo))
        self.tail.append(failw)
        Wr, Wi = A.sub(16, 8), A.sub(24, 8)
        for k in range(8):
            a('v_lshlrev_b32 %s, 16, %s\nv_and_b32 %s, 0xffff0000, %s' % (Wr[k], wq[k], Wi[k], wq[k]))
        twiddle(R0(D2), R1(D2), Wr, Wi, +1, True)
        f32stage(D1)
        twiddle(R1(D1), R0(D1), self.C2, self.S2, +1, True)
        for tt in range(2):
            for r in range(4):
                a('ds_write_b32 %s, %s offset:%d' % (vtw, B[4 * tt + r], tt * 4096 + r * 16))
        a.wait_lg0()
        a('s_barrier')
        for tt in range(2):
            for q in range(4):
                rd[tt, q] = a('ds_read_b128 %s, %s offset:%d' % (A.sub(16 * tt + 4 * q, 4), vlr, L_T - L_Y1G + tt * 4096 + q * 1024))
        for tt in range(2):
            for q in range(4):
                a.wait(lg=rd[tt, q])
                for c, M in enumerate((self.F64r, self.F64i)):
                    d = D1.sub(8 * tt + 4 * c, 4)
                    a('v_mfma_f32_16x16x32_bf16 %s, %s, %s, %s' % (d, M.sub(4 * q, 4), A.sub(16 * tt + 4 * q, 4), d if q else 0))
        for tt in range(2):
            im, re = D1.sub(8 * tt, 4), D1.sub(8 * tt + 4, 4)
            o = B.sub(4 * tt, 4)
            a('v_cvt_pk_bf16_f32 %s, %s, %s\nv_cvt_pk_bf16_f32 %s, %s, %s' % (o[0], re[0], re[1], o[1], re[2], re[3]))
            a('v_cvt_pk_bf16_f32 %s, %s, %s\nv_cvt_pk_bf16_f32 %s, %s, %s' % (o[2], im[0], im[1], o[3], im[2], im[3]))
            self.y2st = a('buffer_store_dwordx4 %s, %s, %s, %s offen offset:%d sc1' % (o, vst, self.WS, self.sY2, 512 * tt))
        self.stamp('p2')
        v.release(A, D1, B, t0, t1, vlr, vtw, vst, t, u, wq, vj, self.F32r, self.F32i, self.C2, self.S2)
        v.release(vg0, vg1, cnt); s.release(sg, sm, swg, scf)

    def p3(self):
        a, v, s = self.a, self.v, self.s
        self.stage_read(0)
        t, u, cnt = v.alloc(), v.alloc(), v.alloc()
        vg0, vg1, sg, sm = v.alloc(), v.alloc(), s.alloc(), s.alloc()
        a('v_bfe_u32 %s, %s, 3, 2\nv_lshlrev_b32 %s, 4, %s' % (t, self.l, t, t))
        a('v_lshrrev_b32 %s, 5, %s\nv_lshl_add_u32 %s, %s, 3, %s' % (u, self.l, t, u, t))
        a('v_bfe_u32 %s, %s, 2, 1\nv_lshl_add_u32 %s, %s, 2, %s' % (u, self.l, t, u, t))
        a('v_bfe_u32 %s, %s, 1, 1\nv_add_u32 %s, %s, %s\nv_mul_u32_u24 %s, %d, %s' % (u, self.l, t, t, u, t, YS, t))
        a('v_and_b32 %s, 1, %s\nv_lshl_add_u32 %s, %s, 4, %s' % (u, self.l, vg0, u, t))
        a('v_add_u32 %s, %d, %s' % (vg1, 2 * YS, vg0))
        a('s_mul_i32 %s, %s, %d\ns_lshl_b32 s3, %s, 5\ns_add_u32 %s, %s, s3\ns_add_u32 %s, %s, %d'
          % (sg, self.sw, 64 * YS, self.sreg, sg, sg, sg, sg, Y2_OFF))
        a('s_lshl_b32 %s, %s, 10\ns_add_u32 %s, %s, %d' % (sm, self.sw, sm, sm, L_Y2G))
        vtr, vuw, vur, vzw, vhw, vzr, vhr, vhs = [v.alloc() for _ in range(8)]
        a('v_lshlrev_b32 %s, 7, %s\nv_bfe_u32 %s, %s, 3, 1\nv_lshl_add_u32 %s, %s, 6, %s' % (t, self.g, u, self.l, t, u, t))
        a('v_and_b32 %s, 3, %s\nv_lshl_add_u32 %s, %s, 4, %s' % (u, self.l, t, u, t))
        a('v_bfe_u32 %s, %s, 2, 1\nv_xor_b32 %s, 1, %s\nv_lshl_add_u32 %s, %s, 3, %s' % (u, self.l, u, u, t, u, t))
        a('v_add_u32 %s, %d, %s' % (vtr, L_Y2G, t))
        a('v_lshrrev_b32 %s, 3, %s\nv_lshlrev_b32 %s, 3, %s\nv_add_u32 %s, %s, %s\nv_mul_u32_u24 %s, %d, %s'
          % (t, self.n16, t, t, t, t, self.n16, t, UROW, t))
        a('v_lshl_add_u32 %s, %s, 4, %s\ns_lshl_b32 s3, %s, 6\ns_add_u32 s3, s3, %d\nv_add_u32 %s, s3, %s' % (t, self.g, t, self.sw, L_U, vuw, t))
        a('v_mul_u32_u24 %s, %d, %s\nv_lshl_add_u32 %s, %s, 3, %s\nv_add_u32 %s, %d, %s' % (t, UROW, self.va, t, self.p, t, vur, L_U, t))
        a('v_lshrrev_b32 %s, 2, %s\nv_xor_b32 %s, %s, %s\nv_lshlrev_b32 %s, 4, %s\nv_lshl_add_u32 %s, %s, 7, %s'
          % (t, self.p, u, t, self.va, u, u, t, t, u))
        a('v_and_b32 %s, 3, %s\nv_lshl_add_u32 %s, %s, 2, %s\nv_add_u32 %s, %d, %s' % (u, self.p, t, u, t, vzw, L_ZB, t))
        a('v_mul_u32_u24 %s, 896, %s\nv_lshl_add_u32 %s, %s, 2, %s\nv_add_u32 %s, %d, %s' % (t, self.va, t, self.p, t, vhw, L_HB, t))
        a('v_lshrrev_b32 %s, 3, v0\nv_xor_b32 %s, %s, v0\nv_and_b32 %s, 7, %s\nv_lshlrev_b32 %s, 4, %s\nv_lshl_add_u32 %s, %s, 7, %s'
          % (t, u, t, u, u, u, u, t, t, u))
        a('v_add_u32 %s, %d, %s' % (vzr, L_ZB, t))
        a('s_mul_i32 s3, %s, 1792\ns_add_u32 s3, s3, %d\nv_add_u32 %s, s3, %s' % (self.sw, L_HB, vhr, self.l16))
        a('v_mov_b32 %s, %d\nv_cmp_gt_u32 vcc, 56, %s\nv_cndmask_b32 %s, %s, %s, vcc' % (t, OOB, self.l, vhs, t, self.l16))
        sh = s.alloc()
        a('s_lshl_b32 %s, %s, 2\ns_add_u32 %s, %s, %s\ns_mul_i32 %s, %s, 1792\ns_add_u32 %s, %s, %d'
          % (sh, self.sreg, sh, sh, self.sw, sh, sh, sh, sh, HR_OFF))
        nb = self.cfg.get('nb', 4)
        a.wait_lg0()
        self.stage_dma(0, nb)
        a.wait(vm=self.y2st)
        self.stamp('drain2')

        def gather():
            a('s_mov_b32 m0, %s' % sm)
            a('buffer_load_dwordx4 %s, %s, %s offen sc1 lds' % (vg0, self.WS, sg))
            a('s_add_u32 m0, %s, 4096' % sm)
            return a('buffer_load_dwordx4 %s, %s, %s offen sc1 lds' % (vg1, self.WS, sg))
        gl = gather()
        a('s_mov_b32 %s, %d' % (self.spin, SPIN))
        self.stage_dma(nb, 14)
        if self.cfg.get('wdpf', 1):
            a('s_lshl_b32 s3, %s, 2\ns_add_u32 s3, s3, %s\ns_mul_i32 s3, s3, %d\nv_lshlrev_b32 %s, 3, %s' % (self.si, self.sw, 98 * 128, t, self.l16))
            a('buffer_load_dword %s, %s, %s, s3 offen' % (self.junk, t, self.WD), 'unused')
            a('s_add_u32 s3, s3, %d' % (34 * 128))
            a('buffer_load_dword %s, %s, %s, s3 offen' % (self.junk, t, self.WD), 'unused')
        a.wait(vm=gl)
        lr, lf, lo = a.label('L_p3'), a.label('L_p3fail'), a.label('L_p3ok')
        a(lr + ':')
        a('s_barrier')
        A = v.alloc(32, 4); acc = v.alloc(16, 4)
        rd = {}
        for Pp in range(2):
            for q in range(4):
                for e in range(2):
                    rd[Pp, q] = a('ds_read_b64_tr_b16 %s, %s offset:%d' % (A.sub(16 * Pp + 4 * q + 2 * e, 2), vtr, (Pp * 4 + q) * 1024 + e * 512))
        for Pp in range(2):
            for q in range(4):
                a.wait(lg=rd[Pp, q])
                f = A.sub(16 * Pp + 4 * q, 4)
                for c, M in enumerate((self.F64r, self.F64i)):
                    d = acc.sub(8 * Pp + 4 * c, 4)
                    a('v_mfma_f32_16x16x32_bf16 %s, %s, %s, %s' % (d, M.sub(4 * q, 4), f, d if q else 0))
                self.sentinel_max(cnt, [f[k] for k in range(4)], Pp == 0 and q == 0)
        a('v_cmp_eq_u32 vcc, -1, %s\ns_cbranch_vccnz %s' % (cnt, lf))
        a(lo + ':')
        self.stamp('g2')

        def fail3():
            a(lf + ':')
            self.spin_out(lo)
            a('s_barrier')
            gather()
            a.wait_vm0()
            a('s_branch %s' % lr)
        self.tail.append(fail3)
        lab = a.label('L_noepo')
        a('s_or_b32 s3, s2, %s\ns_cmp_lg_u32 s3, 0\ns_cbranch_scc1 %s' % (self.sw, lab))
        a('v_mov_b32 %s, %s\nv_mov_b32 %s, %d' % (t, self.tag, u, FL_OFF + EPO))
        a('s_mov_b64 exec, 1')
        a('buffer_store_dword %s, %s, %s, 0 offen sc1' % (t, u, self.WS))
        a('s_mov_b64 exec, -1')
        a.nvm -= 1
        a(lab + ':')
        for Pp in range(2):
            for c in range(2):
                a('ds_write_b128 %s, %s offset:%d' % (vuw, acc.sub(8 * Pp + 4 * (1 - c), 4), (Pp * 32 + c * 8) * UROW))
        a.wait_lg0()
        a('s_barrier')
        v.release(A, acc, self.F64r, self.F64i)
        P = lambda R_, k: R_.sub(2 * k, 2)
        RE, IM, Aa, Bb, Y = v.alloc(8), v.alloc(6), v.alloc(6), v.alloc(6), v.alloc(14)
        t0, t1 = v.alloc(2), v.alloc(2)
        rd = {}
        for j in (1, 2, 3, 0):
            rd[j] = a('ds_read_b64 %s, %s offset:%d' % (P(RE, j), vur, j * 16 * UROW))
            if j: rd[j] = a('ds_read_b64 %s, %s offset:%d' % (P(IM, j - 1), vur, (j * 16 + 8) * UROW))
        for j in range(1, 4):
            a.wait(lg=rd[j])
            self.cmul(P(RE, j), P(IM, j - 1), P(self.C1, j - 1), P(self.S1, j - 1), +1, t0, t1)
        a.wait(lg=rd[0])
        X = self.Xf
        for d in range(1, 4):
            for j in range(1, 4):
                c, sg_ = self.k7(j * d)
                self.pk('fma', P(Aa, d - 1), P(RE, j), c, P(RE, 0) if j == 1 else P(Aa, d - 1), sel=[None, 'lo', None])
                if j == 1: self.pk('mul', P(Bb, d - 1), P(IM, 0), c, sel=[None, 'hi'], neg=[0, 0 if sg_ > 0 else 1])
                else: self.pk('fma', P(Bb, d - 1), P(IM, j - 1), c, P(Bb, d - 1), sel=[None, 'hi', None], neg=[0, 0 if sg_ > 0 else 1, 0])
        self.pk('add', t0, P(RE, 0), P(RE, 1))
        self.pk('add', t1, P(RE, 2), P(RE, 3))
        self.pk('add', t0, t0, P(X, 0))
        self.pk('add', P(Y, 0), t0, t1)
        for d in range(1, 4):
            self.pk('add', t0, P(Aa, d - 1), P(X, d))
            self.pk('add', t1, P(Aa, d - 1), P(X, 7 - d))
            self.pk('add', P(Y, d), t0, P(Bb, d - 1), neg=[0, 1])
            self.pk('add', P(Y, 7 - d), t1, P(Bb, d - 1))
        sq, sm_ = P(Aa, 0), P(Aa, 1)
        self.pk('mul', sq, P(Y, 0), P(Y, 0))
        self.pk('add', sm_, P(Y, 0), P(Y, 1))
        for d in range(1, 7):
            self.pk('fma', sq, P(Y, d), P(Y, d), sq)
            if d > 1: self.pk('add', sm_, sm_, P(Y, d))
        s1, s2, mean = Bb[0], Bb[1], Bb[2]
        a('v_add_f32 %s, %s, %s\nv_add_f32 %s, %s, %s' % (s1, sm_[0], sm_[1], s2, sq[0], sq[1]))
        for d in range(7):
            a('v_cvt_pk_bf16_f32 %s, %s, %s' % (X[d], Y[2 * d], Y[2 * d + 1]))
            a('ds_write_b32 %s, %s offset:%d' % (vhw, X[d], d * 128))
        self.row_stats(s1, s2, t, u, mean, t0[0])
        a('v_mul_f32 %s, -%s, %s' % (t0[1], mean, t0[0]))
        for d in range(7):
            self.pk('fma', P(Y, d), P(Y, d), t0, t0, sel=[None, 'lo', 'hi'])
            a('v_cvt_pk_bf16_f32 %s, %s, %s' % (X[7 + d], Y[2 * d], Y[2 * d + 1]))
            a('ds_write_b32 %s, %s offset:%d' % (vzw, X[7 + d], d * 1024))
        a.wait_lg0()
        a('s_barrier')
        o = v.alloc(16, 4)
        r0 = a('ds_read_b128 %s, %s' % (o.sub(0, 4), vzr))
        r1 = a('ds_read_b128 %s, %s offset:4096' % (o.sub(4, 4), vzr))
        r2 = a('ds_read_b128 %s, %s' % (o.sub(8, 4), vhr))
        r3 = a('ds_read_b128 %s, %s offset:896' % (o.sub(12, 4), vhr))
        a.wait(lg=r0)
        a('buffer_store_dwordx4 %s, %s, %s, %s offen sc1' % (o.sub(0, 4), self.vz0, self.WS, self.sZ))
        a.wait(lg=r1)
        a('buffer_store_dwordx4 %s, %s, %s, %s offen sc1' % (o.sub(4, 4), self.vz1, self.WS, self.sZ))
        a.wait(lg=r2)
        a('buffer_store_dwordx4 %s, %s, %s, %s offen sc1' % (o.sub(8, 4), vhs, self.WS, sh))
        a.wait(lg=r3)
        a('buffer_store_dwordx4 %s, %s, %s, %s offen offset:896 sc1' % (o.sub(12, 4), vhs, self.WS, sh))
        self.stamp('p3')
        v.release(RE, IM, Aa, Bb, Y, t0, t1, X, self.C1, self.S1, o, t, u, vtr, vuw, vur, vzw, vhw, vzr, vhr, vhs,
                  self.vz0, self.vz1, self.va, self.n, self.t16)
        s.release(sh, self.K7)
        v.release(vg0, vg1, cnt, self.ones, self.n16, self.g); s.release(sg, sm)

    def flag_store(self, soff, zero):
        a = self.a
        a('s_mov_b64 exec, 1')
        i = a('buffer_store_dword %s, %s, %s, %s offen sc1' % (zero, zero, self.WS, soff))
        a('s_mov_b64 exec, -1')
        return i

    def gemms(self):
        a, v, s = self.a, self.v, self.s
        cfg = self.cfg
        self.stage_read(1)
        zero = v.alloc(); t, u = v.alloc(), v.alloc()
        a('v_mov_b32 %s, 0' % zero)
        srf = s.alloc()
        a('s_lshl_b32 %s, %s, 4\ns_add_u32 %s, %s, %d' % (srf, self.sreg, srf, srf, FL_OFF + RFL))
        sA = s.alloc()
        a('s_lshl_b32 %s, %s, 2\ns_add_u32 %s, %s, %s\ns_mul_i32 %s, %s, 28672\ns_add_u32 %s, %s, %d'
          % (sA, self.srb, sA, sA, self.sw, sA, sA, sA, sA, Z2_OFF))
        vz0, vz1, vown = v.alloc(), v.alloc(), v.alloc()
        a('v_add_u32 %s, %d, %s\nv_add_u32 %s, %d, %s\nv_add_u32 %s, %s, %s' % (vz0, BIG, self.l16, vz1, BIG + 57344, self.l16, vown, self.sbig, self.l16))
        vd0, vd1, sring, sdn = v.alloc(), v.alloc(), s.alloc(), s.alloc()
        a('v_lshrrev_b32 %s, 3, %s\nv_mul_u32_u24 %s, 896, %s' % (t, self.l, t, t))
        a('v_bfe_u32 %s, %s, 4, 1\nv_lshlrev_b32 %s, 2, %s\nv_xor_b32 %s, %s, %s\nv_and_b32 %s, 7, %s' % (u, self.l, u, u, u, u, self.l, u, u))
        a('v_lshl_add_u32 %s, %s, 4, %s\nv_add_u32 %s, 7168, %s' % (vd0, u, t, vd1, vd0))
        a('s_mul_i32 %s, %s, 12288\ns_add_u32 %s, %s, %d' % (sring, self.sw, sring, sring, FFT))
        a('s_mul_i32 %s, %s, %d\ns_lshl_b32 s3, %s, 7\ns_add_u32 %s, %s, s3' % (sdn, self.sw, 32 * 896, self.scb, sdn, sdn))
        vdt = v.alloc(2)
        a('v_lshrrev_b32 %s, 5, %s\nv_lshlrev_b32 %s, 10, %s' % (t, self.l, t, t))
        a('v_bfe_u32 %s, %s, 2, 2\nv_lshl_add_u32 %s, %s, 7, %s' % (u, self.l, t, u, t))
        a('v_bfe_u32 %s, %s, 3, 1\ns_and_b32 s3, %s, 1\nv_xor_b32 %s, s3, %s\nv_lshl_add_u32 %s, %s, 6, %s' % (u, self.l, self.sw, u, u, t, u, t))
        a('v_and_b32 %s, 1, %s\nv_lshl_add_u32 %s, %s, 5, %s' % (u, self.l, t, u, t))
        a('v_bfe_u32 %s, %s, 4, 1\nv_lshl_add_u32 %s, %s, 4, %s' % (u, self.l, t, u, t))
        a('v_bfe_u32 %s, %s, 1, 1\nv_lshl_add_u32 %s, %s, 3, %s' % (u, self.l, t, u, t))
        a('v_add_u32 %s, %s, %s\nv_xor_b32 %s, 64, %s' % (vdt[0], sring, t, vdt[1], vdt[0]))
        sH, sHf = s.alloc(), s.alloc()
        a('s_mul_i32 %s, %s, 448\ns_mul_i32 s3, %s, 28\ns_add_u32 %s, %s, s3\ns_add_u32 %s, %s, %s\ns_lshl_b32 %s, %s, 10\ns_add_u32 %s, %s, %d'
          % (sH, self.srb, self.sw, sH, sH, sH, sH, self.sfs, sH, sH, sH, sH, HH_OFF))
        a('s_lshl_b32 %s, %s, 2\ns_add_u32 %s, %s, %s\ns_lshl_b32 %s, %s, 9\ns_lshl_b32 s3, %s, 4\ns_add_u32 %s, %s, s3\ns_add_u32 %s, %s, %d'
          % (sHf, self.srb, sHf, sHf, self.sw, sHf, sHf, self.sfs, sHf, sHf, sHf, sHf, FL_OFF + HFL))
        a('s_waitcnt vmcnt(0) lgkmcnt(0)')
        v.release(self.junk)
        self.stamp('drain3')
        lidle = a.label('L_idle')
        a('s_cmp_ge_u32 %s, 28\ns_cbranch_scc1 %s' % (self.si, lidle))

        def idle():
            a(lidle + ':')
            a('s_barrier')
            a('s_cmp_lg_u32 %s, 0\ns_cbranch_scc1 L_fin' % self.sw)
            self.flag_store(srf, zero)
            a('s_branch L_fin')
        self.tail.append(idle)

        CH = 4; NCH = 7
        def a_dma(c):
            a('s_add_u32 m0, %s, %d\ns_add_u32 s3, %s, %d' % (self.sbig, BIG + c * 4096, sA, c * 4096))
            for k in range(CH):
                i = a('buffer_load_dwordx4 %s, %s, s3 offen offset:%d sc1 lds' % (self.l16, self.WS, k * 1024))
            return i
        chk = v.alloc()
        vh = v.alloc(2); vpf, vpr, pf, pr = [v.alloc() for _ in range(4)]
        vt = v.alloc(16, 4)
        adma = {}
        l0 = a.label('L_a0')
        a(l0 + ':')
        for c in range(NCH): adma[c] = a_dma(c)

        def verify_read(c):
            a.wait(vm=adma[c])
            return [a('ds_read_b128 %s, %s offset:%d' % (vt.sub(4 * k, 4), vown, BIG + c * 4096 + k * 1024)) for k in range(CH)][-1]

        def verify_ops(c):
            lf, lo = a.label('L_afail'), a.label('L_aok')
            ops = []
            for k in range(CH):
                ops.append(lambda k=k: self.sentinel_max(chk, [vt[4 * k + e] for e in range(4)], k == 0))
            def fin():
                a('v_cmp_eq_u32 vcc, -1, %s\ns_cbranch_vccnz %s' % (chk, lf))
                a(lo + ':')
                a('s_barrier')
            ops.append(fin)
            def fail():
                a(lf + ':')
                self.spin_out(lo)
                if c == 0:
                    a.wait_vm0()
                    a('s_branch %s' % l0)
                    return
                a_dma(c)
                a.wait_vm0()
                for k in range(CH): a('ds_read_b128 %s, %s offset:%d' % (vt.sub(4 * k, 4), vown, BIG + c * 4096 + k * 1024))
                a.wait_lg0()
                self.sentinel_max(chk, [vt[e] for e in range(16)], True)
                a('v_cmp_eq_u32 vcc, -1, %s\ns_cbranch_vccnz %s\ns_branch %s' % (chk, lf, lo))
            self.tail.append(fail)
            return ops
        r = verify_read(0)
        a.wait(lg=r)
        for op in verify_ops(0): op()
        self.stamp('a0')
        lab = a.label('L_nohf')
        a('s_cmp_lg_u32 %s, 0\ns_cbranch_scc1 %s' % (self.sw, lab))
        self.flag_store(srf, zero)
        a.nvm -= 1
        a(lab + ':')

        accA, accB, zf = v.alloc(64, 4), v.alloc(64, 4), v.alloc(32, 4)
        zrd = {}
        def zread(sg, rt):
            ks = sg % 28
            off = rt * 28672 + ks * 1024
            base = vz0
            if rt >= 2: base, off = vz1, off - 57344
            zrd[sg, rt] = a('ds_read_b128 %s, %s offset:%d' % (zf.sub(16 * (sg % 2) + 4 * rt, 4), base, off))
        for rt in range(4): zread(0, rt)

        fill = {}
        def at(sg, rt, fn): fill.setdefault((sg, rt), []).append(fn)
        vr = {}
        for c in range(1, NCH):
            b = 4 * (c - 1)
            at(b, 0, lambda c=c: vr.__setitem__(c, verify_read(c)))
            ops = verify_ops(c)
            at(b + 1, 0, lambda c=c: a.wait(lg=vr[c]))
            for k in range(CH): at(b + 1, k, ops[k])
            at(b + 2, 3, ops[CH])
        s_tr = lambda n: max(2 * n + 2, 14 + n)
        ddma, dtr = {}, {}
        def d_dma(n):
            tt, fs = n // 14, n % 14
            if n >= 6: a.wait(lg=dtr[n - 6])
            a('s_add_u32 m0, %s, %d\ns_add_u32 s3, %s, %d' % (sring, (n % 6) * 2048, sdn, (128 * fs + 16 * tt) * 896))
            a('buffer_load_dwordx4 %s, %s, s3 offen lds' % (vd0, self.WD))
            a('s_add_u32 m0, m0, 1024')
            ddma[n] = a('buffer_load_dwordx4 %s, %s, s3 offen lds' % (vd1, self.WD))
        def d_tr(n, ct):
            if ct == 0: a.wait(vm=ddma[n])
            for e in range(2):
                b = 8 * n + 4 * ct + 2 * e
                dtr[n] = a('ds_read_b64_tr_b16 a[%d:%d], %s offset:%d' % (b, b + 1, vdt[ct], (n % 6) * 2048 + e * 512))
        late = []
        for n in range(28):
            sd = n if n < 6 else s_tr(n - 6) + 1
            at(sd, 2, lambda n=n: d_dma(n))
            for ct in range(2):
                if s_tr(n) < 56: at(s_tr(n), ct, lambda n=n, ct=ct: d_tr(n, ct))
                else: late.append(lambda n=n, ct=ct: d_tr(n, ct))
        hst = {}
        def epi_ops(acc, rt, tt):
            x = acc.sub(16 * rt, 16); ops = []
            for h in range(2):
                for r in range(4):
                    ops.append(lambda h=h, r=r: a('v_mul_f32 %s, %s, %s' % (x[8 * h + r], x[8 * h + r], x[8 * h + 4 + r])))
            for k in range(4):
                b = 8 * (k // 2) + 2 * (k % 2)
                ops.append(lambda k=k, b=b: a('v_cvt_pk_bf16_f32 %s, %s, %s' % (x[4 + k], x[b], x[b + 1])))
            def st():
                a('s_add_u32 s3, %s, %d' % (sH, rt * 112 * 1024 + tt * 14336))
                hst[tt, rt] = a('buffer_store_dwordx4 %s, %s, %s, s3 offen sc1' % (x.sub(4, 4), self.l16, self.WS))
            ops.append(st)
            return ops
        for rt in range(4):
            ops = epi_ops(accA, rt, 0)
            for k, op in enumerate(ops): at(29 + rt, min(k // 3, 3), op)
        def hflag0():
            a.wait(vm=hst[0, 3])
            self.flag_store(sHf, zero)
        at(cfg.get('hf0', 41), 3, hflag0)
        sHl, sPf, sPr = s.alloc(), s.alloc(), s.alloc()
        def g2setup():
            a('s_mul_i32 %s, %s, 224\ns_mul_i32 s3, %s, 28\ns_add_u32 %s, %s, s3\ns_lshl_b32 %s, %s, 10\ns_add_u32 %s, %s, %d'
              % (sHl, self.srb64, self.sw, sHl, sHl, sHl, sHl, sHl, sHl, HH_OFF))
            a('s_lshr_b32 s3, %s, 1\ns_mul_i32 s3, s3, 114688\nv_add_u32 %s, s3, %s' % (self.sw, vh[0], self.l16))
            a('s_sub_u32 s3, 114688, s3\nv_add_u32 %s, s3, %s' % (vh[1], self.l16))
        def g2setup2():
            a('s_lshr_b32 %s, %s, 1\ns_lshl_b32 %s, %s, 2\ns_add_u32 %s, %s, %s\ns_lshl_b32 %s, %s, 9\ns_add_u32 %s, %s, %d'
              % (sPf, self.srb64, sPf, sPf, sPf, sPf, self.sw, sPf, sPf, sPf, sPf, FL_OFF + HFL))
            a('s_lshl_b32 %s, %s, 7\ns_add_u32 %s, %s, %d' % (sPr, self.srb64, sPr, sPr, FL_OFF + RFL))
            a('v_min_u32 %s, 13, %s\nv_lshlrev_b32 %s, 4, %s' % (vpf, self.l, vpf, vpf))
            a('v_and_b32 %s, 7, %s\nv_lshlrev_b32 %s, 4, %s' % (vpr, self.l, vpr, vpr))
        at(34, 1, g2setup); at(35, 1, g2setup2)
        pl = {}
        def poll_issue():
            a('buffer_load_dword %s, %s, %s, %s offen sc1' % (pr, vpr, self.WS, sPr))
            pl[0] = a('buffer_load_dword %s, %s, %s, %s offen sc1' % (pf, vpf, self.WS, sPf))
        def poll_check0():
            lf, lo = a.label('L_hfail'), a.label('L_hok')
            a.wait(vm=pl[0])
            a('v_max_u32 %s, %s, %s\nv_cmp_eq_u32 vcc, -1, %s\ns_cbranch_vccnz %s' % (pf, pf, pr, pf, lf))
            a(lo + ':')
            def fail():
                a(lf + ':')
                self.spin_out(lo)
                poll_issue()
                a.wait_vm0()
                a('v_max_u32 %s, %s, %s\nv_cmp_eq_u32 vcc, -1, %s\ns_cbranch_vccnz %s\ns_branch %s' % (pf, pf, pr, pf, lf, lo))
            self.tail.append(fail)
        p0 = cfg.get('hp0', 47)
        at(p0, 3, poll_issue); at(p0 + 4, 3, poll_check0)
        v.release(t, u)
        early = v.alloc(4 * cfg.get('early', 13), 4)
        slots = [early.sub(4 * k, 4) for k in range(early.n // 4)] + [vt.sub(4 * k, 4) for k in range(4)]
        nearly = len(slots)
        slots += [zf.sub(4 * k, 4) for k in range(8)]
        hld, hslot = {}, {}
        def h_load(n, rt, slot):
            if (n % 4 == 0 and rt == 0) or h_load.force:
                a('s_add_u32 %s, %s, %d' % (h_load.s, sHl, (n // 4) * 4096)); h_load.force = False
            hslot[n, rt] = slot
            hld[n, rt] = a('buffer_load_dwordx4 %s, %s, %s, %s offen offset:%d sc1' % (slot, vh[rt], self.WS, h_load.s, (n % 4) * 1024))
        h_load.s = s.alloc(); h_load.force = True
        order = [(n, rt) for n in range(28) for rt in range(2)]
        gaps = [(sg, rt) for sg in range(p0 + 5, 56) for rt in range(4)]
        per = -(-nearly // len(gaps))
        for k in range(nearly):
            sg, rt = gaps[k // per]
            at(sg, rt, lambda k=k: h_load(order[k][0], order[k][1], slots[k]))

        for sg in range(56):
            acc = accA if sg < 28 else accB
            for rt in range(4):
                a.wait(lg=zrd[sg, rt])
                d = acc.sub(16 * rt, 16)
                a('v_mfma_f32_32x32x16_bf16 %s, a[%d:%d], %s, %s' % (d, 4 * sg, 4 * sg + 3, zf.sub(16 * (sg % 2) + 4 * rt, 4), d if sg % 28 else 0))
                if sg < 55: zread(sg + 1, rt)
                if (sg, rt) == (28, 0): self.stamp('pass1')
                if (sg, rt) == (p0 + 4, 3): self.stamp('prepoll')
                for fn in fill.get((sg, rt), []): fn()
        self.stamp('g1end')
        v.release(vz0, vz1, vown, vd0, vd1, chk)
        nxt = nearly
        for k in range(nearly, min(28, len(slots))):
            h_load(order[k][0], order[k][1], slots[k]); nxt = k + 1
        for fn in late: fn()
        acc = accA
        def g2_mfma(n, rt):
            a.wait(vm=hld[n, rt])
            if n == 27 and rt == 0: a.wait(lg=dtr[27])
            for ct in range(2):
                d = acc.sub(16 * (ct + 2 * rt), 16)
                a('v_mfma_f32_32x32x16_bf16 %s, a[%d:%d], %s, %s' % (d, 8 * n + 4 * ct, 8 * n + 4 * ct + 3, hslot[n, rt], d if n else 0))
        a.wait(lg=dtr[26])
        done = 0
        for rt in range(4):
            for k, op in enumerate(epi_ops(accB, rt, 1)):
                op()
                if k == 7:
                    g2_mfma(*order[done]); done += 1
        free = [accB.sub(16 * rt + 8, 4) for rt in range(4)] + [accB.sub(16 * rt + 12, 4) for rt in range(4)] + [accB.sub(16 * rt, 4) for rt in range(4)]
        while nxt < 28:
            h_load(order[nxt][0], order[nxt][1], free.pop(0)); nxt += 1
        f1 = cfg.get('hf1', 20)
        while done < f1:
            g2_mfma(*order[done]); free.append(hslot[order[done]]); done += 1
        a.wait(vm=hst[1, 3])
        a('s_add_u32 s3, %s, 256' % sHf)
        self.flag_store('s3', zero)
        vo, vr_ = v.alloc(), v.alloc(); so, sr = s.alloc(), s.alloc()
        hres = [free.pop(0), free.pop(0)]
        a('v_lshrrev_b32 %s, 5, %s\nv_lshlrev_b32 %s, 5, %s' % (vr_, self.l, vr_, vr_))
        a('v_mul_u32_u24 %s, 896, %s\nv_add_u32 %s, %s, %s' % (pf, self.p, pf, pf, vr_))
        a('v_and_b32 %s, 7, %s\nv_lshlrev_b32 %s, 5, %s\nv_lshrrev_b32 %s, 3, %s\nv_add_u32 %s, %s, %s' % (vo, self.l, vo, vo, pr, self.p, vo, vo, pr))
        a('v_mul_u32_u24 %s, 896, %s\nv_add_u32 %s, %s, %s\nv_mov_b32 %s, %s' % (vo, vo, vo, vo, vr_, vr_, pf))
        a('s_lshl_b32 %s, %s, 1\ns_and_b32 s3, %s, 1\ns_add_u32 %s, %s, s3\ns_lshl_b32 %s, %s, 6' % (so, self.scb, self.sw, so, so, so, so))
        a('s_lshl_b32 %s, %s, 1\ns_lshr_b32 s3, %s, 1\ns_add_u32 %s, %s, s3' % (sr, self.srb64, self.sw, sr, sr))
        a('s_and_b32 s3, %s, 7\ns_lshl_b32 s3, s3, 2\ns_lshr_b32 %s, %s, 3\ns_lshl_b32 %s, %s, 8\ns_add_u32 s3, s3, %s' % (sr, sPr, sr, sPr, sPr, sPr))
        a('s_mul_i32 s3, s3, 896\ns_mul_i32 %s, %s, %d\ns_add_u32 %s, %s, %s\ns_add_u32 %s, %s, %d\ns_add_u32 %s, %s, s3'
          % (sr, sr, 32 * 896, sr, sr, so, sr, sr, HR_OFF, so, so))
        a('buffer_load_dwordx4 %s, %s, %s, %s offen sc1' % (hres[0], vr_, self.WS, sr))
        hrl = a('buffer_load_dwordx4 %s, %s, %s, %s offen offset:16 sc1' % (hres[1], vr_, self.WS, sr))
        while done < 28:
            g2_mfma(*order[done]); free.append(hslot[order[done]]); done += 1
        for k in range(4):
            o = order[k]
            free.append(hslot[o])
        lp, lo = a.label('L_h1poll'), a.label('L_h1ok')
        a('s_add_u32 %s, %s, 256' % (sPf, sPf))
        a(lp + ':')
        a('buffer_load_dword %s, %s, %s, %s offen sc1' % (pf, vpf, self.WS, sPf))
        a.wait_vm0()
        a('v_cmp_eq_u32 vcc, -1, %s\ns_cbranch_vccz %s' % (pf, lo))
        self.spin_out(lo)
        a('s_branch %s' % lp)
        a(lo + ':')
        self.stamp('h1')
        free += [accB.sub(16 * rt + 4, 4) for rt in range(4)]
        order2 = [(n, 1) for n in range(14, 28)] + [(n, 0) for n in range(14, 28)]
        assert len(free) >= 28, len(free)
        last = None
        for n, rt in order2:
            h_load.force = last is None or last // 4 != n // 4
            last = n
            h_load(n, rt, free.pop(0))
        vrw = v.alloc(); vrr = [v.alloc() for _ in range(3)]
        a('v_add_u32 %s, %s, %s' % (vrw, sring, self.l16))
        for j in range(1, 4):
            a('s_xor_b32 s3, %s, %d\ns_mul_i32 s3, s3, 12288\ns_add_u32 s3, s3, %d\nv_add_u32 %s, s3, %s' % (self.sw, j, FFT + (j - 1) * 4096, vrr[j - 1], self.l16))
        a.wait(lg=dtr[27])
        def red_write(j, i):
            a('ds_write_b128 %s, %s offset:%d' % (vrw, acc.sub(16 * j + 4 * i, 4), (j - 1) * 4096 + i * 1024))
        wr = [(j, i) for j in (2, 3) for i in range(4)]
        for k, (n, rt) in enumerate(order2):
            a.wait(vm=hld[n, rt])
            for ct in ((1, 0) if rt == 0 else (0, 1)):
                d = acc.sub(16 * (ct + 2 * rt), 16)
                a('v_mfma_f32_32x32x16_bf16 %s, a[%d:%d], %s, %s' % (d, 8 * n + 4 * ct, 8 * n + 4 * ct + 3, hslot[n, rt], d))
            if k >= 17 and wr: red_write(*wr.pop(0))
        res = v.alloc(16) if False else early.sub(0, 16)
        for k in range(8):
            a('v_lshlrev_b32 %s, 16, %s\nv_and_b32 %s, 0xffff0000, %s' % (res[2 * k], hres[k // 4][k % 4], res[2 * k + 1], hres[k // 4][k % 4]))
        for i in range(4): red_write(1, i)
        for k in range(8):
            self.pk('add', res.sub(2 * k, 2), res.sub(2 * k, 2), acc.sub(2 * k, 2))
        a.wait_lg0()
        a('s_barrier')
        rd = {}
        for i in range(4):
            for j in range(1, 4):
                rd[j, i] = a('ds_read_b128 %s, %s offset:%d' % (acc.sub(16 * j + 4 * i, 4), vrr[j - 1], i * 1024))
        for i in range(4):
            for j in range(1, 4):
                a.wait(lg=rd[j, i])
                for e in range(2):
                    self.pk('add', res.sub(4 * i + 2 * e, 2), res.sub(4 * i + 2 * e, 2), acc.sub(16 * j + 4 * i + 2 * e, 2))
            for e in range(2):
                a('v_cvt_pk_bf16_f32 %s, %s, %s' % (acc[2 * i + e], res[4 * i + 2 * e], res[4 * i + 2 * e + 1]))
            if i % 2:
                a('buffer_store_dwordx4 %s, %s, %s, %s offen offset:%d' % (acc.sub(2 * i - 2, 4), vo, self.OUT, so, 8 * i - 8))

    def finish(self):
        a = self.a
        a('L_fin:')
        if self.stamps:
            a('s_waitcnt vmcnt(0) lgkmcnt(0)')
            self.stamp('done')
            a('s_waitcnt lgkmcnt(0)')
            a('s_lshl_b32 s3, s2, 2\ns_add_u32 s3, s3, %s\ns_lshl_b32 s3, s3, 8\ns_add_u32 s3, s3, %d' % (self.sw, ST_OFF))
            a('v_mov_b32 v1, 0\ns_mov_b64 exec, 1')
            if self.cfg.get('dbgst'):
                lab = a.label('L_nodbg')
                a('s_cmp_ge_u32 %s, 28\ns_cbranch_scc1 %s\ns_cmp_lg_u32 %s, 0\ns_cbranch_scc1 %s' % (self.si, lab, self.sw, lab))
                d = self.X
                a('s_load_dwordx2 %s, s[0:1], 64\ns_mov_b32 %s, 256\ns_waitcnt lgkmcnt(0)' % (d[0:2], d[2]))
                for k, (nm, r) in enumerate(self.stamps[:16]):
                    a('v_mov_b32 v2, %s' % r[0])
                    if k == 0: a('v_not_b32 v2, v2')
                    a('buffer_atomic_umax v2, v1, %s, 0 offen offset:%d sc1' % (d, 4 * k))
                    a('s_nop 1')
                a(lab + ':')
            for k, (nm, r) in enumerate(self.stamps):
                a('v_mov_b32 v2, %s' % r[0])
                a('buffer_store_dword v2, v1, %s, s3 offen offset:%d' % (self.WS, 4 * k))
        a('L_end:')
        a('s_endpgm')
        for fn in self.tail: fn()

    def build(self):
        self.s.free.discard(3)
        self.prologue(); self.p1(); self.p2(); self.p3(); self.gemms(); self.finish()
        nops = self.a.fix_hazards()
        errs = self.a.check_waits()
        return nops, errs


HEAD = '''; Kernarg layout (80 bytes, pointers only, base s[0:1]):
; @launch grid=(256,1,1) block=(256,1,1) lds=%d
.amdgcn_target "amdgcn-amd-amdhsa--gfx950"
.text
.globl %s
.p2align 8
.type %s,@function
%s:
'''
TAIL = '''
.fill 8192, 4, 0xbf800000
.section .rodata,"a"
.p2align 6
.amdhsa_kernel %s
  .amdhsa_next_free_vgpr 512
  .amdhsa_next_free_sgpr 102
  .amdhsa_accum_offset 256
  .amdhsa_group_segment_fixed_size 0
  .amdhsa_kernarg_size 80
  .amdhsa_user_sgpr_count 2
  .amdhsa_user_sgpr_kernarg_segment_ptr 1
  .amdhsa_system_sgpr_workgroup_id_x 1
.end_amdhsa_kernel
'''


def generate(cfg, path):
    g = Gen(cfg)
    nops, errs = g.build()
    for e in errs: print('WAIT-CHECK:', e)
    src = HEAD % (LDS_BYTES, KNAME, KNAME, KNAME) + g.a.text() + TAIL % KNAME
    if cfg.get('stamps'): src += '; cfg ' + ' '.join('%s=%s' % kv for kv in cfg.items()) + '\n'
    open(path, 'w').write(src)
    import os
    if g.stamps: open(path[:-2] + '.stamps', 'w').write(' '.join(x[0] for x in g.stamps))
    elif os.path.exists(path[:-2] + '.stamps'): os.remove(path[:-2] + '.stamps')
    n = sum(1 for x in g.a.ins if x.kind not in ('label', 'dir'))
    print('%s: %d instructions, %d hazard states, vgpr hi %d, sgpr hi %d, stamps %s' % (path, n, nops, g.v.hi, g.s.hi, [x[0] for x in g.stamps]))
    return g


if __name__ == '__main__':
    cfg = {}
    path = 'k.s'
    for arg in sys.argv[1:]:
        if '=' in arg:
            k, val = arg.split('='); cfg[k] = int(val) if val.lstrip('-').isdigit() else val
        else: path = arg
    generate(cfg, path)
```

```python
import math, struct, sys
from asmdsl import *

KNAME = 'sequential_preLN__spectral_gfnet__glu_gated_bilinear__prompt_kernel'
S, D, F = 2048, 448, 1792

Y1_OFF, Y2_OFF, Z2_OFF, HR_OFF, HH_OFF, FL_OFF, ST_OFF, WT_OFF = 0, 2 << 20, 4 << 20, 6 << 20, 8 << 20, 16 << 20, 17 << 20, 18 << 20
WS_BYTES = 20 << 20
YS = 8192
HFL = 0
RFL = 32768
CFL = 65536
EPO = 131072
OOB = 0x7f000000

BIG = 0
FFT = 114688
L_V, L_Y1G, L_T = FFT, FFT + 8192, FFT + 16384
L_Y2G, L_U, L_ZB, L_HB = FFT, FFT + 8192, FFT + 26112, FFT + 33280
L_W = FFT + 24576
UROW = 272
LDS_BYTES = 163840
SPIN = 1 << 16


def f2u(x):
    return struct.unpack('<I', struct.pack('<f', x))[0]


def hexf(x):
    return '0x%08x' % f2u(x)


class Gen:
    def __init__(self, cfg):
        self.cfg = cfg
        self.a = Asm()
        self.v = Regs('v', 1, 256)
        self.s = Regs('s', 3, 102)
        self.stamps = []

    def stamp(self, name):
        if not self.cfg.get('stamps') or name in self.cfg.get('skip', '').split(','):
            return
        r = self.s.alloc(2)
        self.stamps.append((name, r))
        self.a('%s %s' % ('s_memtime' if self.cfg.get('clk') else 's_memrealtime', r))

    def pk(self, op, d, x, y, z=None, neg=None, sel=None):
        srcs = [x, y] + ([z] if z is not None else [])
        n = len(srcs)
        sel = sel or [None] * n
        neg = neg or [0] * n
        lo = [1 if q == 'hi' else 0 for q in sel]
        hi = [0 if q == 'lo' else 1 for q in sel]
        m = ''
        if any(lo): m += ' op_sel:[%s]' % ','.join(map(str, lo))
        if not all(hi): m += ' op_sel_hi:[%s]' % ','.join(map(str, hi))
        if any(neg): m += ' neg_lo:[%s] neg_hi:[%s]' % (','.join(map(str, neg)), ','.join(map(str, neg)))
        return self.a('v_pk_%s_f32 %s, %s%s' % (op, d, ', '.join(map(str, srcs)), m))

    def cmul(self, re, im, c, sn, sign, t0, t1):
        self.pk('mul', t0, im, sn)
        self.pk('mul', t1, re, sn)
        self.pk('fma', re, re, c, t0, neg=[0, 0, 1 if sign > 0 else 0])
        self.pk('fma', im, im, c, t1, neg=[0, 0, 0 if sign > 0 else 1])

    def round_bf16(self, d, x):
        self.a('v_cvt_pk_bf16_f32 %s, 0, %s' % (d, x))

    def row_stats(self, s1, s2, t0, t1, mean, rs):
        a = self.a
        for n in (8, 4, 2, 1):
            a('v_add_f32_dpp %s, %s, %s row_ror:%d row_mask:0xf bank_mask:0xf' % (s1, s1, s1, n))
            a('v_add_f32_dpp %s, %s, %s row_ror:%d row_mask:0xf bank_mask:0xf' % (s2, s2, s2, n))
        a('v_mov_b32 %s, %s\nv_mov_b32 %s, %s' % (t0, s1, t1, s2))
        a('v_permlane16_swap_b32 %s, %s\nv_permlane16_swap_b32 %s, %s' % (s1, t0, s2, t1))
        a('v_add_f32 %s, %s, %s\nv_add_f32 %s, %s, %s' % (s1, s1, t0, s2, s2, t1))
        a('v_mul_f32 %s, %s, %s' % (s1, hexf(1.0 / D), s1))
        a('v_mul_f32 %s, %s, %s' % (s2, hexf(1.0 / D), s2))
        a('v_fma_f32 %s, -%s, %s, %s' % (s2, s1, s1, s2))
        a('v_max_f32 %s, 0, %s' % (s2, s2))
        self.round_bf16(s2, s2)
        a('v_add_f32 %s, %s, %s' % (s2, hexf(1e-5), s2))
        self.round_bf16(s2, s2)
        a('v_sqrt_f32 %s, %s' % (s2, s2))
        self.round_bf16(mean, s1)
        self.round_bf16(s2, s2)
        a('v_rcp_f32 %s, %s' % (rs, s2))

    def sentinel_max(self, acc, regs, first):
        regs = list(regs)
        if first:
            self.a('v_max3_u32 %s, %s, %s, %s' % (acc, regs[0], regs[1], regs[2])); regs = regs[3:]
        while len(regs) >= 2:
            self.a('v_max3_u32 %s, %s, %s, %s' % (acc, acc, regs[0], regs[1])); regs = regs[2:]
        if regs:
            self.a('v_max_u32 %s, %s, %s' % (acc, acc, regs[0]))

    def spin_out(self, lab):
        self.a('s_cmp_eq_u32 %s, 0\ns_cbranch_scc1 %s\ns_sub_u32 %s, %s, 1' % (self.spin, lab, self.spin, self.spin))

    def srd(self, slot, nbytes):
        r = self.s.alloc(4)
        self.a('s_load_dwordx2 %s, s[0:1], %d' % (r[0:2], slot * 8))
        self.a('s_mov_b32 %s, %d\ns_mov_b32 %s, 0x20000' % (r[2], nbytes, r[3]))
        return r

    def prologue(self):
        a, v, s = self.a, self.v, self.s
        cfg = self.cfg
        a('s_cmp_ge_u32 s2, 256\ns_cbranch_scc1 L_end')
        self.stamp('start')
        if cfg.get('burn0'): self.burn(cfg['burn0'])
        self.WS = self.srd(9, WS_BYTES)
        self.X = self.srd(0, S * D * 2)
        self.sx, self.si, self.sw, self.sreg = s.alloc(), s.alloc(), s.alloc(), s.alloc()
        self.l, self.n16, self.g, self.p = v.alloc(), v.alloc(), v.alloc(), v.alloc()
        self.l16, self.t16, self.ones = v.alloc(), v.alloc(), v.alloc(4)
        t = v.alloc(); self.junk = v.alloc()
        if cfg.get('scr'): a('s_lshr_b32 %s, s2, 5\ns_and_b32 %s, s2, 31' % (self.sx, self.si))
        else: a('s_and_b32 %s, s2, 7\ns_lshr_b32 %s, s2, 3' % (self.sx, self.si))
        if cfg.get('codepf', 1):
            pc = s.alloc(2)
            a('s_getpc_b64 %s' % pc)
            a('s_lshl_b32 s3, %s, 10' % self.si)
            a('v_and_b32 %s, 7, v0\nv_lshl_add_u32 %s, %s, 7, s3' % (t, t, t))
            a('global_load_dword %s, %s, %s' % (self.junk, t, pc), 'unused')
            s.release(pc)
        self.WR = self.srd(1, S * 225 * 2)
        self.WI = self.srd(2, S * 225 * 2)
        self.WG = self.srd(4, D * F * 2)
        self.WU = self.srd(5, D * F * 2)
        self.WD = self.srd(6, F * D * 2)
        self.OUT = self.srd(7, S * D * 2)
        a('v_lshrrev_b32 %s, 6, v0' % t)
        a('v_and_b32 %s, 63, v0' % self.l)
        a('v_readfirstlane_b32 %s, %s' % (self.sw, t))
        a('v_lshlrev_b32 %s, 4, v0' % self.t16)
        a('v_lshlrev_b32 %s, 4, %s' % (self.l16, self.l))
        a('s_lshl_b32 %s, %s, 5\ns_add_u32 %s, %s, %s' % (self.sreg, self.sx, self.sreg, self.sreg, self.si))
        for k in range(4):
            a('v_mov_b32 %s, -1' % self.ones[k])
        a('v_and_b32 %s, 31, %s' % (self.p, self.l))
        a('v_and_b32 %s, 15, %s' % (self.n16, self.l))
        a('v_lshrrev_b32 %s, 4, %s' % (self.g, self.l))
        vx = v.alloc(); sxo = s.alloc(); self.sY1, self.sY2, self.sWt = s.alloc(), s.alloc(), s.alloc()
        a('v_lshrrev_b32 %s, 5, %s' % (t, self.l))
        a('v_mul_u32_u24 %s, %d, %s' % (t, 32 * 896, t))
        a('v_lshl_add_u32 %s, %s, 2, %s' % (vx, self.p, t))
        a('s_lshl_b32 %s, %s, 2\ns_add_u32 %s, %s, %s\ns_lshl_b32 %s, %s, 6\ns_add_u32 %s, %s, %s\ns_mul_i32 %s, %s, 896'
          % (sxo, self.sx, sxo, sxo, self.sw, sxo, sxo, sxo, sxo, self.si, sxo, sxo))
        a('s_mul_i32 %s, %s, %d' % (self.sY1, self.sreg, YS))
        a('s_add_u32 %s, %s, %d\ns_add_u32 %s, %s, %d' % (self.sY2, self.sY1, Y2_OFF, self.sWt, self.sY1, WT_OFF))
        self.t16b = vt2 = v.alloc()
        a('v_add_u32 %s, 4096, %s' % (vt2, self.t16))
        self.n = v.alloc()
        a('s_lshl_b32 s3, %s, 4\nv_add_u32 %s, s3, %s' % (self.sw, self.n, self.n16))
        vwo = v.alloc(4); ssg, swb = s.alloc(), s.alloc()
        a('s_and_b32 %s, %s, 15\ns_lshr_b32 s3, %s, 6\ns_lshl_b32 s3, s3, 4\ns_add_u32 %s, %s, s3' % (swb, self.sreg, self.sreg, swb, swb))
        a('s_and_b32 s3, %s, 48\ns_lshl_b32 s3, s3, 4\ns_add_u32 %s, %s, s3' % (self.sreg, swb, swb))
        a('s_cmp_ge_u32 %s, 2\ns_cselect_b32 %s, -1, 1' % (self.sw, ssg))
        a('v_lshrrev_b32 %s, 5, %s\nv_lshl_add_u32 %s, %s, 6, %s\nv_mul_lo_u32 %s, %s, %s' % (t, self.l, t, t, swb, t, t, ssg))
        for n in range(4):
            o = vwo[n]
            a('s_mul_i32 s3, %s, %d' % (ssg, 128 * (n % 2) + 1024 * (n // 2)))
            a('v_add_u32 %s, s3, %s\nv_and_b32 %s, 2047, %s\nv_mul_u32_u24 %s, 450, %s' % (o, t, o, o, o, o))
            a('v_and_b32 %s, -4, %s\nv_lshl_add_u32 %s, %s, 4, %s' % (o, o, o, self.p, o))
        s.release(ssg, swb)
        self.consts_a()
        a('s_waitcnt lgkmcnt(0)')
        if cfg.get('wsoff'):
            a('s_add_u32 %s, %s, %d\ns_addc_u32 %s, %s, 0' % (self.WS[0], self.WS[0], cfg['wsoff'] << 20, self.WS[1], self.WS[1]))
        self.tagbase = s.alloc(2)
        a('s_add_u32 %s, %s, %d\ns_addc_u32 %s, %s, 0' % (self.tagbase[0], self.WS[0], FL_OFF, self.tagbase[1], self.WS[1]))
        self.stamp('karg')
        self.tag = s.alloc()
        a('s_load_dword %s, %s, %d' % (self.tag, self.tagbase, EPO))
        ops = {}
        def do_c():
            if cfg.get('noclr1'): a('s_mov_b32 %s, 0' % self.WS[2])
            for so in (self.sY1, self.sWt):
                a('buffer_store_dwordx4 %s, %s, %s, %s offen sc1' % (self.ones, self.t16, self.WS, so))
                ops['c'] = a('buffer_store_dwordx4 %s, %s, %s, %s offen sc1' % (self.ones, vt2, self.WS, so))
            if cfg.get('noclr1'): a('s_mov_b32 %s, %d' % (self.WS[2], WS_BYTES))
        self.xr = v.alloc(7)
        def do_x():
            nt = ' nt' if cfg.get('xnt', 1) else ''
            for d2 in range(7):
                self.xload = a('buffer_load_dword %s, %s, %s, %s offen offset:%d%s' % (self.xr[d2], vx, self.X, sxo, 128 * d2, nt))
        def do_w():
            nt = ' nt' if cfg.get('wnt', 0) else ''
            if cfg.get('now'): a('s_mov_b32 %s, 0' % self.WR[2])
            a('s_and_b32 s3, %s, 1\ns_cmp_eq_u32 s3, 0' % self.sw)
            a('s_cselect_b32 %s, %s, %s\ns_cselect_b32 %s, %s, %s' % (self.WR[0], self.WR[0], self.WI[0], self.WR[1], self.WR[1], self.WI[1]))
            a('s_lshl_b32 s3, %s, 12' % self.sw)
            for n in range(4):
                a('s_add_u32 m0, s3, %d' % (L_W + 1024 * n))
                self.wload = a('buffer_load_dwordx4 %s, %s, 0 offen%s lds' % (vwo[n], self.WR, nt))
        self.first_ops = dict(c=do_c, x=do_x, w=do_w)
        order = cfg.get('order', 'cxw')
        for ch in order.split('_')[0]: self.first_ops[ch]()
        self.late_ops = order.split('_')[1] if '_' in order else ''
        self.stamp('wiss')
        if cfg.get('tlb'):
            lab = a.label('L_notlb')
            a('s_cmp_lg_u32 %s, 3\ns_cbranch_scc1 %s' % (self.sw, lab))
            if cfg['tlb'] == 2: a('s_cmp_ge_u32 %s, 2\ns_cbranch_scc1 %s' % (self.si, lab))
            a('v_lshlrev_b32 %s, %d, %s' % (t, cfg.get('tlbsh', 19), self.l))
            n0 = a.nvm
            for r in (self.WS, self.OUT, self.WD, self.WG, self.WU):
                a('buffer_load_dword %s, %s, %s, 0 offen' % (self.junk, t, r), 'unused')
            a.nvm = n0
            a(lab + ':')
        u = v.alloc()
        self.srb, self.sfs, self.srb64, self.scb = s.alloc(), s.alloc(), s.alloc(), s.alloc()
        q7 = s.alloc()
        a('s_mul_i32 %s, %s, 37\ns_lshr_b32 %s, %s, 8' % (q7, self.si, q7, q7))
        a('s_mul_i32 %s, %s, 7\ns_sub_u32 %s, %s, %s' % (self.scb, q7, self.scb, self.si, self.scb))
        a('s_lshl_b32 %s, %s, 2\ns_add_u32 %s, %s, %s' % (self.srb64, self.sx, self.srb64, self.srb64, q7))
        a('s_lshr_b32 %s, %s, 1\ns_lshl_b32 %s, %s, 2\ns_add_u32 %s, %s, %s' % (self.srb, self.sx, self.srb, self.srb, self.srb, self.srb, q7))
        a('s_and_b32 %s, %s, 1\ns_mul_i32 %s, %s, 7\ns_add_u32 %s, %s, %s' % (self.sfs, self.sx, self.sfs, self.sfs, self.sfs, self.sfs, self.scb))
        s.release(q7)
        if cfg.get('gupf', 1):
            pf = s.alloc(4)
            a('s_and_b32 s3, %s, 1\ns_cmp_eq_u32 s3, 0' % self.sw)
            a('s_cselect_b32 %s, %s, %s\ns_cselect_b32 %s, %s, %s' % (pf[0], self.WG[0], self.WU[0], pf[1], self.WG[1], self.WU[1]))
            a('s_mov_b32 %s, %d\ns_mov_b32 %s, 0x20000' % (pf[2], D * F * 2, pf[3]))
            a('v_mul_u32_u24 %s, 3584, %s\nv_min_u32 %s, 13, %s\nv_lshl_add_u32 %s, %s, 7, %s' % (t, self.g, u, self.n16, t, u, t))
            a('s_lshl_b32 %s, %s, 1\ns_lshr_b32 s3, %s, 1\ns_add_u32 %s, %s, s3\ns_mul_i32 %s, %s, %d' % (sxo, self.si, self.sw, sxo, sxo, sxo, sxo, 7 * 3584))
            a('s_and_b32 s3, %s, 1\ns_mul_i32 s3, s3, 1792\ns_add_u32 %s, %s, s3\ns_add_u32 s3, %s, %d' % (self.sx, sxo, sxo, sxo, 4 * 3584))
            a('buffer_load_dword %s, %s, %s, %s offen' % (self.junk, t, pf, sxo), 'unused')
            a('buffer_load_dword %s, %s, %s, s3 offen' % (self.junk, t, pf), 'unused')
            s.release(pf)
        a('s_cmp_lt_u32 %s, %d' % (self.si, 0 if cfg.get('nostage') else 28))
        if cfg.get('nowd'): a('s_mov_b32 %s, 0' % self.WD[2])
        a('s_cselect_b32 %s, %s, 0\ns_cselect_b32 %s, %s, 0' % (self.WG[2], self.WG[2], self.WU[2], self.WU[2]))
        self.stamp('issued')
        self.vsg, self.vsu, self.sst, self.sbig = v.alloc(), v.alloc(), s.alloc(), s.alloc()
        a('v_lshrrev_b32 %s, 2, %s\nv_mul_u32_u24 %s, 3584, %s' % (t, self.l, t, t))
        a('v_and_b32 %s, 3, %s\nv_lshl_add_u32 %s, %s, 4, %s' % (self.vsg, self.l, self.vsg, self.vsg, t))
        a('v_xor_b32 %s, 32, %s' % (self.vsu, self.vsg))
        a('s_lshl_b32 %s, %s, 2\ns_add_u32 %s, %s, %s\ns_lshl_b32 %s, %s, 6' % (self.sst, self.sfs, self.sst, self.sst, self.sw, self.sst, self.sst))
        a('s_mul_i32 %s, %s, 28672' % (self.sbig, self.sw))
        self.consts_b()
        for ch in self.late_ops: self.first_ops[ch]()
        v.release(vwo, vx)
        a.wait(vm=ops['c'])
        a.wait_lg0()
        s.release(self.tagbase)
        a('s_mul_i32 %s, %s, 0x9e3779b1\ns_add_u32 %s, %s, 0x7f4a7c15' % (self.tag, self.tag, self.tag, self.tag))
        a('s_barrier')
        lab = a.label('L_noarr')
        a('s_cmp_lg_u32 %s, 0\ns_cbranch_scc1 %s' % (self.sw, lab))
        a('s_lshl_b32 s3, %s, 4\ns_add_u32 s3, s3, %d' % (self.sreg, FL_OFF + CFL))
        a('v_mov_b32 %s, %s\nv_lshlrev_b32 %s, 12, v0' % (t, self.tag, u))
        a('s_mov_b64 exec, 0xff')
        a('buffer_store_dword %s, %s, %s, s3 offen sc1' % (t, u, self.WS))
        a('s_mov_b64 exec, -1')
        a.nvm -= 1
        a(lab + ':')
        self.stamp('clr1')
        if cfg.get('xfirst'):
            a.wait(vm=self.xload)
            self.stamp('x0')
        if cfg.get('noclr'): a('s_mov_b32 %s, 0' % self.WS[2])
        a('buffer_store_dwordx4 %s, %s, %s, %s offen sc1' % (self.ones, self.t16, self.WS, self.sY2))
        a('buffer_store_dwordx4 %s, %s, %s, %s offen sc1' % (self.ones, vt2, self.WS, self.sY2))
        self.vz0, self.vz1, self.sZ = v.alloc(), v.alloc(), s.alloc()
        a('v_lshrrev_b32 %s, 3, v0\nv_lshlrev_b32 %s, 9, %s' % (t, t, t))
        a('v_and_b32 %s, 7, v0\nv_lshl_add_u32 %s, %s, 4, %s' % (self.vz0, self.vz0, self.vz0, t))
        a('v_add_u32 %s, 16384, %s' % (self.vz1, self.vz0))
        a('v_mov_b32 %s, %d' % (t, OOB))
        a('v_cmp_gt_u32 vcc, 192, v0')
        a('v_cndmask_b32 %s, %s, %s, vcc' % (self.vz1, t, self.vz1))
        a('s_lshr_b32 %s, %s, 2\ns_mul_i32 %s, %s, 28672' % (self.sZ, self.sreg, self.sZ, self.sZ))
        a('s_and_b32 %s, %s, 3\ns_lshl_b32 %s, %s, 7' % (sxo, self.si, sxo, sxo))
        a('s_add_u32 %s, %s, %s\ns_add_u32 %s, %s, %d' % (self.sZ, self.sZ, sxo, self.sZ, self.sZ, Z2_OFF))
        a('buffer_store_dwordx4 %s, %s, %s, %s offen sc1' % (self.ones, self.vz0, self.WS, self.sZ))
        a('buffer_store_dwordx4 %s, %s, %s, %s offen sc1' % (self.ones, self.vz1, self.WS, self.sZ))
        a('v_cmp_gt_u32 vcc, 16, v0')
        a('v_cndmask_b32 %s, %s, %s, vcc' % (u, t, self.t16))
        a('s_lshl_b32 %s, s2, 8\ns_add_u32 %s, %s, %d' % (sxo, sxo, sxo, FL_OFF))
        self.clr2 = a('buffer_store_dwordx4 %s, %s, %s, %s offen sc1' % (self.ones, u, self.WS, sxo))
        if cfg.get('noclr'): a('s_mov_b32 %s, %d' % (self.WS[2], WS_BYTES))
        self.stamp('c2iss')
        v.release(t, u)
        s.release(sxo)

    def stage_dma(self, k0, k1):
        a = self.a
        if self.cfg.get('nostage') == 2:
            self.stg = 0
            return
        for k in range(k0, k1):
            a('s_add_u32 m0, %s, %d' % (self.sbig, BIG + 2048 * k))
            a('buffer_load_dwordx4 %s, %s, %s offen lds' % (self.vsg, self.WG, self.sst))
            a('s_add_u32 m0, m0, 1024')
            self.stg = a('buffer_load_dwordx4 %s, %s, %s offen lds' % (self.vsu, self.WU, self.sst))
            a('s_add_u32 %s, %s, %d' % (self.sst, self.sst, 16 * 3584))

    def stage_read(self, rnd):
        a, v = self.a, self.v
        if rnd == 0:
            self.vtr = v.alloc(2)
            t, u = v.alloc(), v.alloc()
            a('v_bfe_u32 %s, %s, 1, 1\nv_mul_u32_u24 %s, 1056, %s' % (t, self.l, t, t))
            a('v_bfe_u32 %s, %s, 2, 2\nv_lshl_add_u32 %s, %s, 6, %s' % (u, self.l, t, u, t))
            a('v_lshrrev_b32 %s, 5, %s\nv_lshl_add_u32 %s, %s, 9, %s' % (u, self.l, t, u, t))
            a('v_and_b32 %s, 1, %s\nv_lshl_add_u32 %s, %s, 4, %s' % (u, self.l, t, u, t))
            a('v_bfe_u32 %s, %s, 4, 1\nv_lshl_add_u32 %s, %s, 3, %s' % (u, self.l, t, u, t))
            a('v_add_u32 %s, %s, %s' % (self.vtr[0], self.sbig, t))
            a('v_xor_b32 %s, 32, %s' % (self.vtr[1], self.vtr[0]))
            v.release(t, u)
        a.wait(vm=self.stg)
        for k in range(14):
            for t in range(2):
                for e in range(2):
                    b = (t * 28 + rnd * 14 + k) * 4 + 2 * e
                    a('ds_read_b64_tr_b16 a[%d:%d], %s offset:%d' % (b, b + 1, self.vtr[t], BIG + k * 2048 + e * 256))
        if rnd == 1:
            v.release(self.vtr, self.vsg, self.vsu)

    def consts_a(self):
        a, v, s = self.a, self.v, self.s
        self.F64r, self.F64i = v.alloc(16), v.alloc(16)
        self.C2, self.S2 = v.alloc(8), v.alloc(8)
        self.ct = fn, a0, ang, c, sn, msk, g4 = [v.alloc() for _ in range(7)]
        a('v_and_b32 %s, 1, %s\nv_mul_u32_u24 %s, 0x8000, %s\nv_lshl_or_b32 %s, %s, 16, %s' % (msk, self.l, msk, msk, msk, msk, msk))
        a('v_lshlrev_b32 %s, 2, %s\nv_cvt_f32_u32 %s, %s' % (g4, self.g, g4, g4))
        a('v_cvt_f32_u32 %s, %s\nv_mul_f32 %s, %s, %s\nv_mul_f32 %s, %s, %s' % (fn, self.n, fn, hexf(1 / 64.0), fn, a0, fn, g4))
        self.f64rows(range(self.cfg.get('ca', 4)))

    def f64rows(self, ks):
        a = self.a
        fn, a0, ang, c, sn, msk, g4 = self.ct
        for k in ks:
            q, r = k // 4, k % 4
            a('v_fmamk_f32 %s, %s, %s, %s' % (ang, fn, hexf(16 * q + r), a0))
            a('v_cos_f32 %s, %s\nv_sin_f32 %s, %s' % (c, ang, sn, ang))
            a('v_mul_f32 %s, %s, %s' % (ang, hexf(1 / 32.0), ang))
            a('v_cvt_pk_bf16_f32 %s, %s, %s' % (self.F64r[k], c, sn))
            a('v_cvt_pk_bf16_f32 %s, -%s, %s' % (self.F64i[k], sn, c))
            a('v_cos_f32 %s, %s\nv_sin_f32 %s, %s' % (self.C2[k], ang, self.S2[k], ang))
            a('v_xor_b32 %s, %s, %s\nv_xor_b32 %s, %s, %s' % (self.F64r[k + 8], msk, self.F64r[k], self.F64i[k + 8], msk, self.F64i[k]))

    def consts_b(self):
        a, v, s = self.a, self.v, self.s
        fn, a0, ang, c, sn, msk, g4 = self.ct
        self.f64rows(range(self.cfg.get('ca', 4), 8))
        self.F32r, self.F32i = v.alloc(16), v.alloc(16)
        self.C1, self.S1 = v.alloc(6), v.alloc(6)
        a('v_lshlrev_b32 %s, 1, %s\nv_cvt_f32_u32 %s, %s\nv_add_f32 %s, 1.0, %s' % (fn, self.p, fn, fn, a0, fn))
        for j in range(1, 4):
            for e, src in enumerate((fn, a0)):
                a('v_mul_f32 %s, %s, %s' % (ang, hexf(j / 448.0), src))
                a('v_cos_f32 %s, %s\nv_sin_f32 %s, %s' % (self.C1[2 * j - 2 + e], ang, self.S1[2 * j - 2 + e], ang))
        a('v_cvt_f32_u32 %s, %s\nv_mul_f32 %s, %s, %s\nv_mul_f32 %s, %s, %s' % (fn, self.n16, fn, hexf(1 / 32.0), fn, a0, fn, g4))
        for r in range(4):
            a('v_fmamk_f32 %s, %s, %s, %s' % (ang, fn, hexf(r), a0))
            a('v_cos_f32 %s, %s\nv_sin_f32 %s, %s' % (c, ang, sn, ang))
            a('v_cvt_pk_bf16_f32 %s, %s, %s' % (self.F32r[r], c, sn))
            a('v_cvt_pk_bf16_f32 %s, -%s, %s' % (self.F32i[r], sn, c))
            for M in (self.F32r, self.F32i):
                a('v_xor_b32 %s, %s, %s' % (M[4 + r], msk, M[r]))
                for q in range(2):
                    if r % 2: a('v_xor_b32 %s, 0x80008000, %s' % (M[8 + 4 * q + r], M[4 * q + r]))
                    else: a('v_mov_b32 %s, %s' % (M[8 + 4 * q + r], M[4 * q + r]))
        v.release(*self.ct)
        self.K7 = s.alloc(6, 2)
        for k in range(1, 4):
            a('s_mov_b32 %s, %s' % (self.K7[2 * k - 2], hexf(math.cos(2 * math.pi * k / 7))))
            a('s_mov_b32 %s, %s' % (self.K7[2 * k - 1], hexf(math.sin(2 * math.pi * k / 7))))

    def k7(self, m):
        m %= 7
        return (self.K7.sub(2 * m - 2, 2), 1) if m <= 3 else (self.K7.sub(2 * (7 - m) - 2, 2), -1)

    def p1(self):
        a, v, s = self.a, self.v, self.s
        vw0, vw1, vr0, vr1, t, u = [v.alloc() for _ in range(6)]
        a('v_lshrrev_b32 %s, 5, %s\ns_lshl_b32 s3, %s, 1\nv_add_u32 %s, s3, %s' % (t, self.l, self.sw, t, t))
        self.va = v.alloc()
        a('v_mov_b32 %s, %s' % (self.va, t))
        a('v_bfe_u32 %s, %s, 1, 2\nv_xor_b32 %s, %s, %s' % (u, self.p, t, t, u))
        a('v_bfe_u32 %s, %s, 3, 1\nv_mul_u32_u24 %s, 12, %s\nv_xor_b32 %s, %s, %s' % (u, self.p, u, u, t, t, u))
        a('v_lshlrev_b32 %s, 4, %s' % (t, t))
        a('v_lshrrev_b32 %s, 1, %s\nv_lshl_add_u32 %s, %s, 8, %s' % (u, self.p, t, u, t))
        a('v_and_b32 %s, 1, %s\nv_lshl_add_u32 %s, %s, 3, %s' % (u, self.p, t, u, t))
        a('v_add_u32 %s, %d, %s\nv_xor_b32 %s, 128, %s' % (vw0, L_V, t, vw1, vw0))
        a('v_xor_b32 %s, %s, %s\nv_lshlrev_b32 %s, 4, %s\nv_lshl_add_u32 %s, %s, 8, %s' % (t, self.n16, self.g, t, t, t, self.g, t))
        a('v_add_u32 %s, %d, %s\nv_xor_b32 %s, 192, %s' % (vr0, L_V, t, vr1, vr0))
        vst = v.alloc()
        a('v_lshlrev_b32 %s, 4, %s\nv_lshl_add_u32 %s, %s, 6, %s' % (t, self.g, t, self.n16, t))
        a('s_lshl_b32 s3, %s, 10\nv_add_u32 %s, s3, %s' % (self.sw, vst, t))
        a.wait(vm=self.xload)
        self.stamp('x')
        self.Xf = X = v.alloc(14)
        P = lambda R_, k: R_.sub(2 * k, 2)
        for d2 in range(7):
            a('v_lshlrev_b32 %s, 16, %s\nv_and_b32 %s, 0xffff0000, %s' % (X[2 * d2], self.xr[d2], X[2 * d2 + 1], self.xr[d2]))
        v.release(self.xr)
        T, U, RE, IM = v.alloc(6), v.alloc(6), v.alloc(8), v.alloc(6)
        sq, t0, t1 = v.alloc(2), v.alloc(2), v.alloc(2)
        for k in range(1, 4):
            self.pk('add', P(T, k - 1), P(X, k), P(X, 7 - k))
        self.pk('mul', sq, P(X, 0), P(X, 0))
        self.pk('add', P(RE, 0), P(X, 0), P(T, 0))
        for d2 in range(1, 4): self.pk('fma', sq, P(X, d2), P(X, d2), sq)
        self.pk('add', t0, P(T, 1), P(T, 2))
        for d2 in range(4, 7): self.pk('fma', sq, P(X, d2), P(X, d2), sq)
        self.pk('add', P(RE, 0), P(RE, 0), t0)
        s1, s2, mean, rs = [v.alloc() for _ in range(4)]
        a('v_add_f32 %s, %s, %s' % (s2, sq[0], sq[1]))
        a('v_add_f32 %s, %s, %s' % (s1, RE[0], RE[1]))
        for k in range(1, 4):
            self.pk('add', P(U, k - 1), P(X, k), P(X, 7 - k), neg=[0, 1])
        self.row_stats(s1, s2, t, u, mean, rs)
        for j in range(1, 4):
            for k in range(1, 4):
                c, sg = self.k7(j * k)
                self.pk('fma', P(RE, j), P(T, k - 1), c, P(X, 0) if k == 1 else P(RE, j), sel=[None, 'lo', None])
                if k == 1: self.pk('mul', P(IM, j - 1), P(U, 0), c, sel=[None, 'hi'], neg=[0, 1 if sg > 0 else 0])
                else: self.pk('fma', P(IM, j - 1), P(U, k - 1), c, P(IM, j - 1), sel=[None, 'hi', None], neg=[0, 1 if sg > 0 else 0, 0])
        for j in range(1, 4):
            self.cmul(P(RE, j), P(IM, j - 1), P(self.C1, j - 1), P(self.S1, j - 1), -1, t0, t1)
        a('v_mul_f32 %s, %s, %s' % (mean, hexf(-7.0), mean))
        a('v_mul_f32 %s, %s, %s\nv_mov_b32 %s, %s' % (t0[0], hexf(2.0 / (S * D)), rs, t0[1], mean))
        a('v_mul_f32 %s, %s, %s' % (t1[0], hexf(1.0 / (S * D)), rs))
        self.pk('add', P(RE, 0), P(RE, 0), t0, sel=[None, 'hi'])
        for j in range(4):
            self.pk('mul', P(RE, j), P(RE, j), t0 if j else t1, sel=[None, 'lo'])
            if j: self.pk('mul', P(IM, j - 1), P(IM, j - 1), t0, sel=[None, 'lo'])
        for j in range(4):
            o = P(T, j) if j < 3 else P(U, 0)
            for e in range(2):
                a('v_cvt_pk_bf16_f32 %s, %s, %s' % (o[e], RE[2 * j + e], IM[2 * j - 2 + e] if j else 0))
            a('ds_write_b64 %s, %s offset:%d' % (vw1 if j & 1 else vw0, o, (j >> 1) * 4096))
        a.wait_lg0()
        a('s_barrier')
        v.release(T, U, RE, IM, sq, t0, t1, s1, s2, mean, rs, vw0, vw1)
        A = v.alloc(32, 4); acc = v.alloc(16, 4); o = v.alloc(8, 4)
        rd = {}
        for Pp in range(2):
            for q in range(4):
                rd[Pp, q] = a('ds_read_b128 %s, %s offset:%d' % (A.sub(16 * Pp + 4 * q, 4), vr1 if q & 1 else vr0, Pp * 4096 + q * 1024))
        for Pp in range(2):
            for q in range(4):
                a.wait(lg=rd[Pp, q])
                for c, M in enumerate((self.F64r, self.F64i)):
                    d = acc.sub(8 * Pp + 4 * c, 4)
                    a('v_mfma_f32_16x16x32_bf16 %s, %s, %s, %s' % (d, A.sub(16 * Pp + 4 * q, 4), M.sub(4 * q, 4), d if q else 0))
        a('v_add_u32 %s, 4096, %s' % (t, vst))
        for Pp in range(2):
            for r in range(4):
                a('v_cvt_pk_bf16_f32 %s, %s, %s' % (o[4 * Pp + r], acc[8 * Pp + r], acc[8 * Pp + 4 + r]))
            self.y1st = a('buffer_store_dwordx4 %s, %s, %s, %s offen sc1' % (o.sub(4 * Pp, 4), t if Pp else vst, self.WS, self.sY1))
        self.stamp('p1')
        v.release(A, acc, o, vr0, vr1, vst, t, u)

    def p2(self):
        a, v, s = self.a, self.v, self.s
        cnt, t, u = v.alloc(), v.alloc(), v.alloc()
        scf = s.alloc()
        a('s_lshl_b32 %s, %s, 12\ns_add_u32 %s, %s, %d' % (scf, self.sx, scf, scf, FL_OFF + CFL))
        cl = a('buffer_load_dword %s, %s, %s, %s offen sc1' % (cnt, self.t16, self.WS, scf))
        wq = v.alloc(8, 4); vj, vm_ = v.alloc(), v.alloc()
        a('v_lshrrev_b32 %s, 2, v0\nv_mul_u32_u24 %s, 7, %s\nv_and_b32 %s, 3, v0\nv_add_u32 %s, %s, %s' % (vj, vj, vj, t, vj, vj, t))
        a('v_sub_u32 %s, %d, %s\nv_cmp_lt_u32 vcc, 224, %s' % (t, 448 + 4096, vj, vj))
        a('v_mov_b32 %s, 0x80000000' % vm_)
        a('v_cndmask_b32 %s, %s, %s, vcc\nv_cndmask_b32 %s, 0, %s, vcc' % (vj, vj, t, vm_, vm_))
        a('s_and_b32 s3, %s, 1\ns_lshl_b32 s3, s3, 1\ns_add_u32 s3, s3, %d\nv_lshl_add_u32 %s, %s, 1, s3' % (self.sreg, L_W, vj, vj))
        a.wait(vm=self.clr2)
        self.stamp('clr2')
        a('s_barrier')
        wh = v.alloc(8)
        for k in range(8):
            a('ds_read_u16 %s, %s offset:%d' % (wq[k], vj, 512 * k))
            a('ds_read_u16_d16_hi %s, %s offset:%d' % (wh[k], vj, 4096 + 512 * k))
        a.wait_lg0()
        for k in range(8): a('v_and_b32 %s, 0xffff0000, %s' % (wh[k], wh[k]))
        v.release(wh)
        for h in range(2):
            for k in range(4 * h, 4 * h + 4): a('v_bitop3_b32 %s, %s, %s, %s bitop3:0x56' % (wq[k], wq[k], wh[k], vm_))
            wst = a('buffer_store_dwordx4 %s, %s, %s, %s offen sc1' % (wq.sub(4 * h, 4), self.t16b if h else self.t16, self.WS, self.sWt))
        v.release(vm_, self.t16b)
        na = self.cfg.get('na', 4)
        self.stage_dma(0, na)
        swg = s.alloc()
        a('v_mul_u32_u24 %s, %d, v0' % (vj, YS))
        a('s_lshl_b32 %s, %s, 4\ns_add_u32 %s, %s, %d' % (swg, self.sreg, swg, swg, WT_OFF))
        vg0, vg1, sg = v.alloc(), v.alloc(), s.alloc()
        a('v_lshrrev_b32 %s, 1, %s\nv_lshl_add_u32 %s, %s, 5, %s\nv_mul_u32_u24 %s, %d, %s' % (t, self.g, t, t, self.n16, t, YS, t))
        a('v_and_b32 %s, 1, %s\nv_lshl_add_u32 %s, %s, 4, %s' % (vg0, self.g, vg0, vg0, t))
        a('v_add_u32 %s, %d, %s' % (vg1, 16 * YS, vg0))
        a('s_lshr_b32 %s, %s, 2\ns_lshl_b32 %s, %s, 6' % (sg, self.sreg, sg, sg))
        a('s_and_b32 s3, %s, 2\ns_lshl_b32 s3, s3, 11\ns_add_u32 %s, %s, s3' % (self.sreg, sg, sg))
        a('s_and_b32 s3, %s, 1\ns_lshl_b32 s3, s3, 5\ns_add_u32 %s, %s, s3' % (self.sreg, sg, sg))
        a('s_mul_i32 s3, %s, %d\ns_add_u32 %s, %s, s3' % (self.sw, 64 * YS, sg, sg))
        sm = s.alloc()
        a('s_lshl_b32 %s, %s, 10\ns_add_u32 %s, %s, %d' % (sm, self.sw, sm, sm, L_Y1G))
        vlr, vtw, vst = v.alloc(), v.alloc(), v.alloc()
        a('v_add_u32 %s, %d, %s' % (vlr, L_Y1G, self.l16))
        a('v_lshrrev_b32 %s, 2, %s\nv_lshlrev_b32 %s, 8, %s\nv_lshl_add_u32 %s, %s, 6, %s' % (t, self.n16, t, t, t, self.g, t))
        a('v_and_b32 %s, 3, %s\nv_lshl_add_u32 %s, %s, 2, %s' % (vtw, self.l, t, vtw, t))
        a('s_lshl_b32 s3, %s, 10\ns_add_u32 s3, s3, %d\nv_add_u32 %s, s3, %s' % (self.sw, L_T, vtw, t))
        a('v_lshrrev_b32 %s, 1, %s\nv_lshlrev_b32 %s, 10, %s\nv_lshl_add_u32 %s, %s, 5, %s' % (t, self.g, t, t, t, self.n16, t))
        a('v_and_b32 %s, 1, %s\nv_lshl_add_u32 %s, %s, 4, %s' % (vst, self.g, t, vst, t))
        a('s_lshl_b32 s3, %s, 11\nv_add_u32 %s, s3, %s' % (self.sw, vst, t))
        self.spin = s.alloc()
        a('s_mov_b32 %s, %d' % (self.spin, SPIN))
        a.wait(vm=cl)
        self.stamp('cnt')
        l0, l1 = a.label('L_clr'), a.label('L_clrok')
        a(l0 + ':')
        a('v_cmp_ne_u32 vcc, %s, %s\ns_cbranch_vccz %s' % (self.tag, cnt, l1))
        self.spin_out(l1)
        a('s_sleep 4')
        a('buffer_load_dword %s, %s, %s, %s offen sc1' % (cnt, self.t16, self.WS, scf))
        a.nvm -= 1
        a.wait_vm0()
        a('s_branch %s' % l0)
        a(l1 + ':')
        self.stamp('drain1')

        def gather():
            a('s_mov_b32 m0, %s' % sm)
            a('buffer_load_dwordx4 %s, %s, %s offen sc1 lds' % (vg0, self.WS, sg))
            a('s_add_u32 m0, %s, 4096' % sm)
            return a('buffer_load_dwordx4 %s, %s, %s offen sc1 lds' % (vg1, self.WS, sg))
        gl = gather()
        a('s_mov_b32 %s, %d' % (self.spin, SPIN))

        def wgather():
            a('buffer_load_dwordx4 %s, %s, %s, %s offen sc1' % (wq.sub(0, 4), vj, self.WS, swg))
            a('s_add_u32 s3, %s, 4096' % swg)
            return a('buffer_load_dwordx4 %s, %s, %s, s3 offen sc1' % (wq.sub(4, 4), vj, self.WS))
        a.wait(vm=wst)
        wl = wgather()
        self.stage_dma(na, 14)
        a.wait(vm=gl)
        lr, lf, lo = a.label('L_p2'), a.label('L_p2fail'), a.label('L_p2ok')
        a(lr + ':')
        a('s_barrier')
        A = v.alloc(32, 4); D1 = v.alloc(16, 4); B = v.alloc(8, 4); t0, t1 = v.alloc(2), v.alloc(2)
        rd = {}
        for tt in range(2):
            for q in range(4):
                rd[tt, q] = a('ds_read_b128 %s, %s offset:%d' % (A.sub(16 * tt + 4 * q, 4), vlr, tt * 4096 + q * 1024))
        for tt in range(2):
            for q in range(4):
                a.wait(lg=rd[tt, q])
                f = A.sub(16 * tt + 4 * q, 4)
                for c, M in enumerate((self.F64r, self.F64i)):
                    d = D1.sub(8 * tt + 4 * c, 4)
                    a('v_mfma_f32_16x16x32_bf16 %s, %s, %s, %s' % (d, f, M.sub(4 * q, 4), d if q else 0))
                self.sentinel_max(cnt, [f[k] for k in range(4)], tt == 0 and q == 0)
        a('v_cmp_eq_u32 vcc, -1, %s\ns_cbranch_vccnz %s' % (cnt, lf))
        a(lo + ':')
        self.stamp('g1')
        self.tail = getattr(self, 'tail', [])

        def fail2():
            a(lf + ':')
            self.spin_out(lo)
            a('s_barrier')
            gather()
            a.wait_vm0()
            a('s_branch %s' % lr)
        self.tail.append(fail2)

        def twiddle(Dr, Di, C, Sn, sign, swap):
            for tt in range(2):
                for h in range(2):
                    k = 4 * tt + 2 * h
                    re, im = Dr(tt).sub(2 * h, 2), Di(tt).sub(2 * h, 2)
                    self.cmul(re, im, C.sub(k, 2), Sn.sub(k, 2), sign, t0, t1)
                    for e in range(2):
                        x, y = (im[e], re[e]) if swap else (re[e], im[e])
                        a('v_cvt_pk_bf16_f32 %s, %s, %s' % (B[k + e], x, y))

        def f32stage(Dd):
            for tt in range(2):
                for c, M in enumerate((self.F32r, self.F32i)):
                    d = Dd.sub(8 * tt + 4 * c, 4)
                    for q in range(2):
                        a('v_mfma_f32_16x16x32_bf16 %s, %s, %s, %s' % (d, M.sub(8 * tt + 4 * q, 4), B.sub(4 * q, 4), d if q else 0))
        R0 = lambda Dd: (lambda tt: Dd.sub(8 * tt, 4))
        R1 = lambda Dd: (lambda tt: Dd.sub(8 * tt + 4, 4))
        D2 = A.sub(0, 16)
        twiddle(R0(D1), R1(D1), self.C2, self.S2, -1, False)
        f32stage(D2)
        lwf, lwo = a.label('L_wfail'), a.label('L_wok')
        a.wait(vm=wl)
        self.sentinel_max(cnt, [wq[k] for k in range(8)], True)
        a('v_cmp_eq_u32 vcc, -1, %s\ns_cbranch_vccnz %s' % (cnt, lwf))
        a(lwo + ':')

        def failw():
            a(lwf + ':')
            self.spin_out(lwo)
            wgather()
            a.wait_vm0()
            self.sentinel_max(cnt, [wq[k] for k in range(8)], True)
            a('v_cmp_eq_u32 vcc, -1, %s\ns_cbranch_vccnz %s\ns_branch %s' % (cnt, lwf, lwo))
        self.tail.append(failw)
        Wr, Wi = A.sub(16, 8), A.sub(24, 8)
        for k in range(8):
            a('v_lshlrev_b32 %s, 16, %s\nv_and_b32 %s, 0xffff0000, %s' % (Wr[k], wq[k], Wi[k], wq[k]))
        twiddle(R0(D2), R1(D2), Wr, Wi, +1, True)
        f32stage(D1)
        twiddle(R1(D1), R0(D1), self.C2, self.S2, +1, True)
        for tt in range(2):
            for r in range(4):
                a('ds_write_b32 %s, %s offset:%d' % (vtw, B[4 * tt + r], tt * 4096 + r * 16))
        a.wait_lg0()
        a('s_barrier')
        for tt in range(2):
            for q in range(4):
                rd[tt, q] = a('ds_read_b128 %s, %s offset:%d' % (A.sub(16 * tt + 4 * q, 4), vlr, L_T - L_Y1G + tt * 4096 + q * 1024))
        for tt in range(2):
            for q in range(4):
                a.wait(lg=rd[tt, q])
                for c, M in enumerate((self.F64r, self.F64i)):
                    d = D1.sub(8 * tt + 4 * c, 4)
                    a('v_mfma_f32_16x16x32_bf16 %s, %s, %s, %s' % (d, M.sub(4 * q, 4), A.sub(16 * tt + 4 * q, 4), d if q else 0))
        for tt in range(2):
            im, re = D1.sub(8 * tt, 4), D1.sub(8 * tt + 4, 4)
            o = B.sub(4 * tt, 4)
            a('v_cvt_pk_bf16_f32 %s, %s, %s\nv_cvt_pk_bf16_f32 %s, %s, %s' % (o[0], re[0], re[1], o[1], re[2], re[3]))
            a('v_cvt_pk_bf16_f32 %s, %s, %s\nv_cvt_pk_bf16_f32 %s, %s, %s' % (o[2], im[0], im[1], o[3], im[2], im[3]))
            self.y2st = a('buffer_store_dwordx4 %s, %s, %s, %s offen offset:%d sc1' % (o, vst, self.WS, self.sY2, 512 * tt))
        self.stamp('p2')
        v.release(A, D1, B, t0, t1, vlr, vtw, vst, t, u, wq, vj, self.F32r, self.F32i, self.C2, self.S2)
        v.release(vg0, vg1, cnt); s.release(sg, sm, swg, scf)

    def p3(self):
        a, v, s = self.a, self.v, self.s
        self.stage_read(0)
        t, u, cnt = v.alloc(), v.alloc(), v.alloc()
        vg0, vg1, sg, sm = v.alloc(), v.alloc(), s.alloc(), s.alloc()
        a('v_bfe_u32 %s, %s, 3, 2\nv_lshlrev_b32 %s, 4, %s' % (t, self.l, t, t))
        a('v_lshrrev_b32 %s, 5, %s\nv_lshl_add_u32 %s, %s, 3, %s' % (u, self.l, t, u, t))
        a('v_bfe_u32 %s, %s, 2, 1\nv_lshl_add_u32 %s, %s, 2, %s' % (u, self.l, t, u, t))
        a('v_bfe_u32 %s, %s, 1, 1\nv_add_u32 %s, %s, %s\nv_mul_u32_u24 %s, %d, %s' % (u, self.l, t, t, u, t, YS, t))
        a('v_and_b32 %s, 1, %s\nv_lshl_add_u32 %s, %s, 4, %s' % (u, self.l, vg0, u, t))
        a('v_add_u32 %s, %d, %s' % (vg1, 2 * YS, vg0))
        a('s_mul_i32 %s, %s, %d\ns_lshl_b32 s3, %s, 5\ns_add_u32 %s, %s, s3\ns_add_u32 %s, %s, %d'
          % (sg, self.sw, 64 * YS, self.sreg, sg, sg, sg, sg, Y2_OFF))
        a('s_lshl_b32 %s, %s, 10\ns_add_u32 %s, %s, %d' % (sm, self.sw, sm, sm, L_Y2G))
        vtr, vuw, vur, vzw, vhw, vzr, vhr, vhs = [v.alloc() for _ in range(8)]
        a('v_lshlrev_b32 %s, 7, %s\nv_bfe_u32 %s, %s, 3, 1\nv_lshl_add_u32 %s, %s, 6, %s' % (t, self.g, u, self.l, t, u, t))
        a('v_and_b32 %s, 3, %s\nv_lshl_add_u32 %s, %s, 4, %s' % (u, self.l, t, u, t))
        a('v_bfe_u32 %s, %s, 2, 1\nv_xor_b32 %s, 1, %s\nv_lshl_add_u32 %s, %s, 3, %s' % (u, self.l, u, u, t, u, t))
        a('v_add_u32 %s, %d, %s' % (vtr, L_Y2G, t))
        a('v_lshrrev_b32 %s, 3, %s\nv_lshlrev_b32 %s, 3, %s\nv_add_u32 %s, %s, %s\nv_mul_u32_u24 %s, %d, %s'
          % (t, self.n16, t, t, t, t, self.n16, t, UROW, t))
        a('v_lshl_add_u32 %s, %s, 4, %s\ns_lshl_b32 s3, %s, 6\ns_add_u32 s3, s3, %d\nv_add_u32 %s, s3, %s' % (t, self.g, t, self.sw, L_U, vuw, t))
        a('v_mul_u32_u24 %s, %d, %s\nv_lshl_add_u32 %s, %s, 3, %s\nv_add_u32 %s, %d, %s' % (t, UROW, self.va, t, self.p, t, vur, L_U, t))
        a('v_lshrrev_b32 %s, 2, %s\nv_xor_b32 %s, %s, %s\nv_lshlrev_b32 %s, 4, %s\nv_lshl_add_u32 %s, %s, 7, %s'
          % (t, self.p, u, t, self.va, u, u, t, t, u))
        a('v_and_b32 %s, 3, %s\nv_lshl_add_u32 %s, %s, 2, %s\nv_add_u32 %s, %d, %s' % (u, self.p, t, u, t, vzw, L_ZB, t))
        a('v_mul_u32_u24 %s, 896, %s\nv_lshl_add_u32 %s, %s, 2, %s\nv_add_u32 %s, %d, %s' % (t, self.va, t, self.p, t, vhw, L_HB, t))
        a('v_lshrrev_b32 %s, 3, v0\nv_xor_b32 %s, %s, v0\nv_and_b32 %s, 7, %s\nv_lshlrev_b32 %s, 4, %s\nv_lshl_add_u32 %s, %s, 7, %s'
          % (t, u, t, u, u, u, u, t, t, u))
        a('v_add_u32 %s, %d, %s' % (vzr, L_ZB, t))
        a('s_mul_i32 s3, %s, 1792\ns_add_u32 s3, s3, %d\nv_add_u32 %s, s3, %s' % (self.sw, L_HB, vhr, self.l16))
        a('v_mov_b32 %s, %d\nv_cmp_gt_u32 vcc, 56, %s\nv_cndmask_b32 %s, %s, %s, vcc' % (t, OOB, self.l, vhs, t, self.l16))
        sh = s.alloc()
        a('s_lshl_b32 %s, %s, 2\ns_add_u32 %s, %s, %s\ns_mul_i32 %s, %s, 1792\ns_add_u32 %s, %s, %d'
          % (sh, self.sreg, sh, sh, self.sw, sh, sh, sh, sh, HR_OFF))
        nb = self.cfg.get('nb', 4)
        a.wait_lg0()
        self.stage_dma(0, nb)
        a.wait(vm=self.y2st)
        self.stamp('drain2')

        def gather():
            a('s_mov_b32 m0, %s' % sm)
            a('buffer_load_dwordx4 %s, %s, %s offen sc1 lds' % (vg0, self.WS, sg))
            a('s_add_u32 m0, %s, 4096' % sm)
            return a('buffer_load_dwordx4 %s, %s, %s offen sc1 lds' % (vg1, self.WS, sg))
        gl = gather()
        a('s_mov_b32 %s, %d' % (self.spin, SPIN))
        self.stage_dma(nb, 14)
        if self.cfg.get('wdpf', 1):
            a('s_lshl_b32 s3, %s, 2\ns_add_u32 s3, s3, %s\ns_mul_i32 s3, s3, %d\nv_lshlrev_b32 %s, 3, %s' % (self.si, self.sw, 98 * 128, t, self.l16))
            a('buffer_load_dword %s, %s, %s, s3 offen' % (self.junk, t, self.WD), 'unused')
            a('s_add_u32 s3, s3, %d' % (34 * 128))
            a('buffer_load_dword %s, %s, %s, s3 offen' % (self.junk, t, self.WD), 'unused')
        a.wait(vm=gl)
        lr, lf, lo = a.label('L_p3'), a.label('L_p3fail'), a.label('L_p3ok')
        a(lr + ':')
        a('s_barrier')
        A = v.alloc(32, 4); acc = v.alloc(16, 4)
        rd = {}
        for Pp in range(2):
            for q in range(4):
                for e in range(2):
                    rd[Pp, q] = a('ds_read_b64_tr_b16 %s, %s offset:%d' % (A.sub(16 * Pp + 4 * q + 2 * e, 2), vtr, (Pp * 4 + q) * 1024 + e * 512))
        for Pp in range(2):
            for q in range(4):
                a.wait(lg=rd[Pp, q])
                f = A.sub(16 * Pp + 4 * q, 4)
                for c, M in enumerate((self.F64r, self.F64i)):
                    d = acc.sub(8 * Pp + 4 * c, 4)
                    a('v_mfma_f32_16x16x32_bf16 %s, %s, %s, %s' % (d, M.sub(4 * q, 4), f, d if q else 0))
                self.sentinel_max(cnt, [f[k] for k in range(4)], Pp == 0 and q == 0)
        a('v_cmp_eq_u32 vcc, -1, %s\ns_cbranch_vccnz %s' % (cnt, lf))
        a(lo + ':')
        self.stamp('g2')

        def fail3():
            a(lf + ':')
            self.spin_out(lo)
            a('s_barrier')
            gather()
            a.wait_vm0()
            a('s_branch %s' % lr)
        self.tail.append(fail3)
        lab = a.label('L_noepo')
        a('s_or_b32 s3, s2, %s\ns_cmp_lg_u32 s3, 0\ns_cbranch_scc1 %s' % (self.sw, lab))
        a('v_mov_b32 %s, %s\nv_mov_b32 %s, %d' % (t, self.tag, u, FL_OFF + EPO))
        a('s_mov_b64 exec, 1')
        a('buffer_store_dword %s, %s, %s, 0 offen sc1' % (t, u, self.WS))
        a('s_mov_b64 exec, -1')
        a.nvm -= 1
        a(lab + ':')
        for Pp in range(2):
            for c in range(2):
                a('ds_write_b128 %s, %s offset:%d' % (vuw, acc.sub(8 * Pp + 4 * (1 - c), 4), (Pp * 32 + c * 8) * UROW))
        a.wait_lg0()
        a('s_barrier')
        v.release(A, acc, self.F64r, self.F64i)
        P = lambda R_, k: R_.sub(2 * k, 2)
        RE, IM, Aa, Bb, Y = v.alloc(8), v.alloc(6), v.alloc(6), v.alloc(6), v.alloc(14)
        t0, t1 = v.alloc(2), v.alloc(2)
        rd = {}
        for j in (1, 2, 3, 0):
            rd[j] = a('ds_read_b64 %s, %s offset:%d' % (P(RE, j), vur, j * 16 * UROW))
            if j: rd[j] = a('ds_read_b64 %s, %s offset:%d' % (P(IM, j - 1), vur, (j * 16 + 8) * UROW))
        for j in range(1, 4):
            a.wait(lg=rd[j])
            self.cmul(P(RE, j), P(IM, j - 1), P(self.C1, j - 1), P(self.S1, j - 1), +1, t0, t1)
        a.wait(lg=rd[0])
        X = self.Xf
        for d in range(1, 4):
            for j in range(1, 4):
                c, sg_ = self.k7(j * d)
                self.pk('fma', P(Aa, d - 1), P(RE, j), c, P(RE, 0) if j == 1 else P(Aa, d - 1), sel=[None, 'lo', None])
                if j == 1: self.pk('mul', P(Bb, d - 1), P(IM, 0), c, sel=[None, 'hi'], neg=[0, 0 if sg_ > 0 else 1])
                else: self.pk('fma', P(Bb, d - 1), P(IM, j - 1), c, P(Bb, d - 1), sel=[None, 'hi', None], neg=[0, 0 if sg_ > 0 else 1, 0])
        self.pk('add', t0, P(RE, 0), P(RE, 1))
        self.pk('add', t1, P(RE, 2), P(RE, 3))
        self.pk('add', t0, t0, P(X, 0))
        self.pk('add', P(Y, 0), t0, t1)
        for d in range(1, 4):
            self.pk('add', t0, P(Aa, d - 1), P(X, d))
            self.pk('add', t1, P(Aa, d - 1), P(X, 7 - d))
            self.pk('add', P(Y, d), t0, P(Bb, d - 1), neg=[0, 1])
            self.pk('add', P(Y, 7 - d), t1, P(Bb, d - 1))
        sq, sm_ = P(Aa, 0), P(Aa, 1)
        self.pk('mul', sq, P(Y, 0), P(Y, 0))
        self.pk('add', sm_, P(Y, 0), P(Y, 1))
        for d in range(1, 7):
            self.pk('fma', sq, P(Y, d), P(Y, d), sq)
            if d > 1: self.pk('add', sm_, sm_, P(Y, d))
        s1, s2, mean = Bb[0], Bb[1], Bb[2]
        a('v_add_f32 %s, %s, %s\nv_add_f32 %s, %s, %s' % (s1, sm_[0], sm_[1], s2, sq[0], sq[1]))
        for d in range(7):
            a('v_cvt_pk_bf16_f32 %s, %s, %s' % (X[d], Y[2 * d], Y[2 * d + 1]))
            a('ds_write_b32 %s, %s offset:%d' % (vhw, X[d], d * 128))
        self.row_stats(s1, s2, t, u, mean, t0[0])
        a('v_mul_f32 %s, -%s, %s' % (t0[1], mean, t0[0]))
        for d in range(7):
            self.pk('fma', P(Y, d), P(Y, d), t0, t0, sel=[None, 'lo', 'hi'])
            a('v_cvt_pk_bf16_f32 %s, %s, %s' % (X[7 + d], Y[2 * d], Y[2 * d + 1]))
            a('ds_write_b32 %s, %s offset:%d' % (vzw, X[7 + d], d * 1024))
        a.wait_lg0()
        a('s_barrier')
        o = v.alloc(16, 4)
        r0 = a('ds_read_b128 %s, %s' % (o.sub(0, 4), vzr))
        r1 = a('ds_read_b128 %s, %s offset:4096' % (o.sub(4, 4), vzr))
        r2 = a('ds_read_b128 %s, %s' % (o.sub(8, 4), vhr))
        r3 = a('ds_read_b128 %s, %s offset:896' % (o.sub(12, 4), vhr))
        a.wait(lg=r0)
        a('buffer_store_dwordx4 %s, %s, %s, %s offen sc1' % (o.sub(0, 4), self.vz0, self.WS, self.sZ))
        a.wait(lg=r1)
        a('buffer_store_dwordx4 %s, %s, %s, %s offen sc1' % (o.sub(4, 4), self.vz1, self.WS, self.sZ))
        a.wait(lg=r2)
        a('buffer_store_dwordx4 %s, %s, %s, %s offen sc1' % (o.sub(8, 4), vhs, self.WS, sh))
        a.wait(lg=r3)
        a('buffer_store_dwordx4 %s, %s, %s, %s offen offset:896 sc1' % (o.sub(12, 4), vhs, self.WS, sh))
        self.stamp('p3')
        v.release(RE, IM, Aa, Bb, Y, t0, t1, X, self.C1, self.S1, o, t, u, vtr, vuw, vur, vzw, vhw, vzr, vhr, vhs,
                  self.vz0, self.vz1, self.va, self.n, self.t16)
        s.release(sh, self.K7)
        v.release(vg0, vg1, cnt, self.ones, self.n16, self.g); s.release(sg, sm)

    def flag_store(self, soff, zero):
        a = self.a
        a('s_mov_b64 exec, 1')
        i = a('buffer_store_dword %s, %s, %s, %s offen sc1' % (zero, zero, self.WS, soff))
        a('s_mov_b64 exec, -1')
        return i

    def gemms(self):
        a, v, s = self.a, self.v, self.s
        cfg = self.cfg
        self.stage_read(1)
        zero = v.alloc(); t, u = v.alloc(), v.alloc()
        a('v_mov_b32 %s, 0' % zero)
        srf = s.alloc()
        a('s_lshl_b32 %s, %s, 4\ns_add_u32 %s, %s, %d' % (srf, self.sreg, srf, srf, FL_OFF + RFL))
        sA = s.alloc()
        a('s_lshl_b32 %s, %s, 2\ns_add_u32 %s, %s, %s\ns_mul_i32 %s, %s, 28672\ns_add_u32 %s, %s, %d'
          % (sA, self.srb, sA, sA, self.sw, sA, sA, sA, sA, Z2_OFF))
        vz0, vz1, vown = v.alloc(), v.alloc(), v.alloc()
        a('v_add_u32 %s, %d, %s\nv_add_u32 %s, %d, %s\nv_add_u32 %s, %s, %s' % (vz0, BIG, self.l16, vz1, BIG + 57344, self.l16, vown, self.sbig, self.l16))
        vd0, vd1, sring, sdn = v.alloc(), v.alloc(), s.alloc(), s.alloc()
        a('v_lshrrev_b32 %s, 3, %s\nv_mul_u32_u24 %s, 896, %s' % (t, self.l, t, t))
        a('v_bfe_u32 %s, %s, 4, 1\nv_lshlrev_b32 %s, 2, %s\nv_xor_b32 %s, %s, %s\nv_and_b32 %s, 7, %s' % (u, self.l, u, u, u, u, self.l, u, u))
        a('v_lshl_add_u32 %s, %s, 4, %s\nv_add_u32 %s, 7168, %s' % (vd0, u, t, vd1, vd0))
        a('s_mul_i32 %s, %s, 12288\ns_add_u32 %s, %s, %d' % (sring, self.sw, sring, sring, FFT))
        a('s_mul_i32 %s, %s, %d\ns_lshl_b32 s3, %s, 7\ns_add_u32 %s, %s, s3' % (sdn, self.sw, 32 * 896, self.scb, sdn, sdn))
        vdt = v.alloc(2)
        a('v_lshrrev_b32 %s, 5, %s\nv_lshlrev_b32 %s, 10, %s' % (t, self.l, t, t))
        a('v_bfe_u32 %s, %s, 2, 2\nv_lshl_add_u32 %s, %s, 7, %s' % (u, self.l, t, u, t))
        a('v_bfe_u32 %s, %s, 3, 1\ns_and_b32 s3, %s, 1\nv_xor_b32 %s, s3, %s\nv_lshl_add_u32 %s, %s, 6, %s' % (u, self.l, self.sw, u, u, t, u, t))
        a('v_and_b32 %s, 1, %s\nv_lshl_add_u32 %s, %s, 5, %s' % (u, self.l, t, u, t))
        a('v_bfe_u32 %s, %s, 4, 1\nv_lshl_add_u32 %s, %s, 4, %s' % (u, self.l, t, u, t))
        a('v_bfe_u32 %s, %s, 1, 1\nv_lshl_add_u32 %s, %s, 3, %s' % (u, self.l, t, u, t))
        a('v_add_u32 %s, %s, %s\nv_xor_b32 %s, 64, %s' % (vdt[0], sring, t, vdt[1], vdt[0]))
        sH, sHf = s.alloc(), s.alloc()
        a('s_mul_i32 %s, %s, 448\ns_mul_i32 s3, %s, 28\ns_add_u32 %s, %s, s3\ns_add_u32 %s, %s, %s\ns_lshl_b32 %s, %s, 10\ns_add_u32 %s, %s, %d'
          % (sH, self.srb, self.sw, sH, sH, sH, sH, self.sfs, sH, sH, sH, sH, HH_OFF))
        a('s_lshl_b32 %s, %s, 2\ns_add_u32 %s, %s, %s\ns_lshl_b32 %s, %s, 9\ns_lshl_b32 s3, %s, 4\ns_add_u32 %s, %s, s3\ns_add_u32 %s, %s, %d'
          % (sHf, self.srb, sHf, sHf, self.sw, sHf, sHf, self.sfs, sHf, sHf, sHf, sHf, FL_OFF + HFL))
        a('s_waitcnt vmcnt(0) lgkmcnt(0)')
        v.release(self.junk)
        self.stamp('drain3')
        lidle = a.label('L_idle')
        a('s_cmp_ge_u32 %s, 28\ns_cbranch_scc1 %s' % (self.si, lidle))

        def idle():
            a(lidle + ':')
            a('s_barrier')
            a('s_cmp_lg_u32 %s, 0\ns_cbranch_scc1 L_fin' % self.sw)
            self.flag_store(srf, zero)
            a('s_branch L_fin')
        self.tail.append(idle)

        CH = 4; NCH = 7
        def a_dma(c):
            a('s_add_u32 m0, %s, %d\ns_add_u32 s3, %s, %d' % (self.sbig, BIG + c * 4096, sA, c * 4096))
            for k in range(CH):
                i = a('buffer_load_dwordx4 %s, %s, s3 offen offset:%d sc1 lds' % (self.l16, self.WS, k * 1024))
            return i
        chk = v.alloc()
        vh = v.alloc(2); vpf, vpr, pf, pr = [v.alloc() for _ in range(4)]
        vt = v.alloc(16, 4)
        adma = {}
        l0 = a.label('L_a0')
        a(l0 + ':')
        for c in range(NCH): adma[c] = a_dma(c)

        def verify_read(c):
            a.wait(vm=adma[c])
            return [a('ds_read_b128 %s, %s offset:%d' % (vt.sub(4 * k, 4), vown, BIG + c * 4096 + k * 1024)) for k in range(CH)][-1]

        def verify_ops(c):
            lf, lo = a.label('L_afail'), a.label('L_aok')
            ops = []
            for k in range(CH):
                ops.append(lambda k=k: self.sentinel_max(chk, [vt[4 * k + e] for e in range(4)], k == 0))
            def fin():
                a('v_cmp_eq_u32 vcc, -1, %s\ns_cbranch_vccnz %s' % (chk, lf))
                a(lo + ':')
                a('s_barrier')
            ops.append(fin)
            def fail():
                a(lf + ':')
                self.spin_out(lo)
                if c == 0:
                    a.wait_vm0()
                    a('s_branch %s' % l0)
                    return
                a_dma(c)
                a.wait_vm0()
                for k in range(CH): a('ds_read_b128 %s, %s offset:%d' % (vt.sub(4 * k, 4), vown, BIG + c * 4096 + k * 1024))
                a.wait_lg0()
                self.sentinel_max(chk, [vt[e] for e in range(16)], True)
                a('v_cmp_eq_u32 vcc, -1, %s\ns_cbranch_vccnz %s\ns_branch %s' % (chk, lf, lo))
            self.tail.append(fail)
            return ops
        r = verify_read(0)
        a.wait(lg=r)
        for op in verify_ops(0): op()
        self.stamp('a0')
        lab = a.label('L_nohf')
        a('s_cmp_lg_u32 %s, 0\ns_cbranch_scc1 %s' % (self.sw, lab))
        self.flag_store(srf, zero)
        a.nvm -= 1
        a(lab + ':')

        accA, accB, zf = v.alloc(64, 4), v.alloc(64, 4), v.alloc(32, 4)
        zrd = {}
        def zread(sg, rt):
            ks = sg % 28
            off = rt * 28672 + ks * 1024
            base = vz0
            if rt >= 2: base, off = vz1, off - 57344
            zrd[sg, rt] = a('ds_read_b128 %s, %s offset:%d' % (zf.sub(16 * (sg % 2) + 4 * rt, 4), base, off))
        for rt in range(4): zread(0, rt)

        fill = {}
        def at(sg, rt, fn): fill.setdefault((sg, rt), []).append(fn)
        vr = {}
        for c in range(1, NCH):
            b = 4 * (c - 1)
            at(b, 0, lambda c=c: vr.__setitem__(c, verify_read(c)))
            ops = verify_ops(c)
            at(b + 1, 0, lambda c=c: a.wait(lg=vr[c]))
            for k in range(CH): at(b + 1, k, ops[k])
            at(b + 2, 3, ops[CH])
        s_tr = lambda n: max(2 * n + 2, 14 + n)
        ddma, dtr = {}, {}
        def d_dma(n):
            tt, fs = n // 14, n % 14
            if n >= 6: a.wait(lg=dtr[n - 6])
            a('s_add_u32 m0, %s, %d\ns_add_u32 s3, %s, %d' % (sring, (n % 6) * 2048, sdn, (128 * fs + 16 * tt) * 896))
            a('buffer_load_dwordx4 %s, %s, s3 offen lds' % (vd0, self.WD))
            a('s_add_u32 m0, m0, 1024')
            ddma[n] = a('buffer_load_dwordx4 %s, %s, s3 offen lds' % (vd1, self.WD))
        def d_tr(n, ct):
            if ct == 0: a.wait(vm=ddma[n])
            for e in range(2):
                b = 8 * n + 4 * ct + 2 * e
                dtr[n] = a('ds_read_b64_tr_b16 a[%d:%d], %s offset:%d' % (b, b + 1, vdt[ct], (n % 6) * 2048 + e * 512))
        late = []
        for n in range(28):
            sd = n if n < 6 else s_tr(n - 6) + 1
            at(sd, 2, lambda n=n: d_dma(n))
            for ct in range(2):
                if s_tr(n) < 56: at(s_tr(n), ct, lambda n=n, ct=ct: d_tr(n, ct))
                else: late.append(lambda n=n, ct=ct: d_tr(n, ct))
        hst = {}
        def epi_ops(acc, rt, tt):
            x = acc.sub(16 * rt, 16); ops = []
            for h in range(2):
                for r in range(4):
                    ops.append(lambda h=h, r=r: a('v_mul_f32 %s, %s, %s' % (x[8 * h + r], x[8 * h + r], x[8 * h + 4 + r])))
            for k in range(4):
                b = 8 * (k // 2) + 2 * (k % 2)
                ops.append(lambda k=k, b=b: a('v_cvt_pk_bf16_f32 %s, %s, %s' % (x[4 + k], x[b], x[b + 1])))
            def st():
                a('s_add_u32 s3, %s, %d' % (sH, rt * 112 * 1024 + tt * 14336))
                hst[tt, rt] = a('buffer_store_dwordx4 %s, %s, %s, s3 offen sc1' % (x.sub(4, 4), self.l16, self.WS))
            ops.append(st)
            return ops
        for rt in range(4):
            ops = epi_ops(accA, rt, 0)
            for k, op in enumerate(ops): at(29 + rt, min(k // 3, 3), op)
        def hflag0():
            a.wait(vm=hst[0, 3])
            self.flag_store(sHf, zero)
        at(cfg.get('hf0', 41), 3, hflag0)
        sHl, sPf, sPr = s.alloc(), s.alloc(), s.alloc()
        def g2setup():
            a('s_mul_i32 %s, %s, 224\ns_mul_i32 s3, %s, 28\ns_add_u32 %s, %s, s3\ns_lshl_b32 %s, %s, 10\ns_add_u32 %s, %s, %d'
              % (sHl, self.srb64, self.sw, sHl, sHl, sHl, sHl, sHl, sHl, HH_OFF))
            a('s_lshr_b32 s3, %s, 1\ns_mul_i32 s3, s3, 114688\nv_add_u32 %s, s3, %s' % (self.sw, vh[0], self.l16))
            a('s_sub_u32 s3, 114688, s3\nv_add_u32 %s, s3, %s' % (vh[1], self.l16))
        def g2setup2():
            a('s_lshr_b32 %s, %s, 1\ns_lshl_b32 %s, %s, 2\ns_add_u32 %s, %s, %s\ns_lshl_b32 %s, %s, 9\ns_add_u32 %s, %s, %d'
              % (sPf, self.srb64, sPf, sPf, sPf, sPf, self.sw, sPf, sPf, sPf, sPf, FL_OFF + HFL))
            a('s_lshl_b32 %s, %s, 7\ns_add_u32 %s, %s, %d' % (sPr, self.srb64, sPr, sPr, FL_OFF + RFL))
            a('v_min_u32 %s, 13, %s\nv_lshlrev_b32 %s, 4, %s' % (vpf, self.l, vpf, vpf))
            a('v_and_b32 %s, 7, %s\nv_lshlrev_b32 %s, 4, %s' % (vpr, self.l, vpr, vpr))
        at(34, 1, g2setup); at(35, 1, g2setup2)
        pl = {}
        def poll_issue():
            a('buffer_load_dword %s, %s, %s, %s offen sc1' % (pr, vpr, self.WS, sPr))
            pl[0] = a('buffer_load_dword %s, %s, %s, %s offen sc1' % (pf, vpf, self.WS, sPf))
        def poll_check0():
            lf, lo = a.label('L_hfail'), a.label('L_hok')
            a.wait(vm=pl[0])
            a('v_max_u32 %s, %s, %s\nv_cmp_eq_u32 vcc, -1, %s\ns_cbranch_vccnz %s' % (pf, pf, pr, pf, lf))
            a(lo + ':')
            def fail():
                a(lf + ':')
                self.spin_out(lo)
                poll_issue()
                a.wait_vm0()
                a('v_max_u32 %s, %s, %s\nv_cmp_eq_u32 vcc, -1, %s\ns_cbranch_vccnz %s\ns_branch %s' % (pf, pf, pr, pf, lf, lo))
            self.tail.append(fail)
        p0 = cfg.get('hp0', 47)
        at(p0, 3, poll_issue); at(p0 + 4, 3, poll_check0)
        v.release(t, u)
        early = v.alloc(4 * cfg.get('early', 13), 4)
        slots = [early.sub(4 * k, 4) for k in range(early.n // 4)] + [vt.sub(4 * k, 4) for k in range(4)]
        nearly = len(slots)
        slots += [zf.sub(4 * k, 4) for k in range(8)]
        hld, hslot = {}, {}
        def h_load(n, rt, slot):
            if (n % 4 == 0 and rt == 0) or h_load.force:
                a('s_add_u32 %s, %s, %d' % (h_load.s, sHl, (n // 4) * 4096)); h_load.force = False
            hslot[n, rt] = slot
            hld[n, rt] = a('buffer_load_dwordx4 %s, %s, %s, %s offen offset:%d sc1' % (slot, vh[rt], self.WS, h_load.s, (n % 4) * 1024))
        h_load.s = s.alloc(); h_load.force = True
        order = [(n, rt) for n in range(28) for rt in range(2)]
        gaps = [(sg, rt) for sg in range(p0 + 5, 56) for rt in range(4)]
        per = -(-nearly // len(gaps))
        for k in range(nearly):
            sg, rt = gaps[k // per]
            at(sg, rt, lambda k=k: h_load(order[k][0], order[k][1], slots[k]))

        for sg in range(56):
            acc = accA if sg < 28 else accB
            for rt in range(4):
                a.wait(lg=zrd[sg, rt])
                d = acc.sub(16 * rt, 16)
                a('v_mfma_f32_32x32x16_bf16 %s, a[%d:%d], %s, %s' % (d, 4 * sg, 4 * sg + 3, zf.sub(16 * (sg % 2) + 4 * rt, 4), d if sg % 28 else 0))
                if sg < 55: zread(sg + 1, rt)
                if (sg, rt) == (28, 0): self.stamp('pass1')
                if (sg, rt) == (p0 + 4, 3): self.stamp('prepoll')
                for fn in fill.get((sg, rt), []): fn()
        self.stamp('g1end')
        v.release(vz0, vz1, vown, vd0, vd1, chk)
        nxt = nearly
        for k in range(nearly, min(28, len(slots))):
            h_load(order[k][0], order[k][1], slots[k]); nxt = k + 1
        for fn in late: fn()
        acc = accA
        def g2_mfma(n, rt):
            a.wait(vm=hld[n, rt])
            if n == 27 and rt == 0: a.wait(lg=dtr[27])
            for ct in range(2):
                d = acc.sub(16 * (ct + 2 * rt), 16)
                a('v_mfma_f32_32x32x16_bf16 %s, a[%d:%d], %s, %s' % (d, 8 * n + 4 * ct, 8 * n + 4 * ct + 3, hslot[n, rt], d if n else 0))
        a.wait(lg=dtr[26])
        done = 0
        for rt in range(4):
            for k, op in enumerate(epi_ops(accB, rt, 1)):
                op()
                if k == 7:
                    g2_mfma(*order[done]); done += 1
        free = [accB.sub(16 * rt + 8, 4) for rt in range(4)] + [accB.sub(16 * rt + 12, 4) for rt in range(4)] + [accB.sub(16 * rt, 4) for rt in range(4)]
        while nxt < 28:
            h_load(order[nxt][0], order[nxt][1], free.pop(0)); nxt += 1
        f1 = cfg.get('hf1', 20)
        while done < f1:
            g2_mfma(*order[done]); free.append(hslot[order[done]]); done += 1
        a.wait(vm=hst[1, 3])
        a('s_add_u32 s3, %s, 256' % sHf)
        self.flag_store('s3', zero)
        vo, vr_ = v.alloc(), v.alloc(); so, sr = s.alloc(), s.alloc()
        hres = [free.pop(0), free.pop(0)]
        a('v_lshrrev_b32 %s, 5, %s\nv_lshlrev_b32 %s, 5, %s' % (vr_, self.l, vr_, vr_))
        a('v_mul_u32_u24 %s, 896, %s\nv_add_u32 %s, %s, %s' % (pf, self.p, pf, pf, vr_))
        a('v_and_b32 %s, 7, %s\nv_lshlrev_b32 %s, 5, %s\nv_lshrrev_b32 %s, 3, %s\nv_add_u32 %s, %s, %s' % (vo, self.l, vo, vo, pr, self.p, vo, vo, pr))
        a('v_mul_u32_u24 %s, 896, %s\nv_add_u32 %s, %s, %s\nv_mov_b32 %s, %s' % (vo, vo, vo, vo, vr_, vr_, pf))
        a('s_lshl_b32 %s, %s, 1\ns_and_b32 s3, %s, 1\ns_add_u32 %s, %s, s3\ns_lshl_b32 %s, %s, 6' % (so, self.scb, self.sw, so, so, so, so))
        a('s_lshl_b32 %s, %s, 1\ns_lshr_b32 s3, %s, 1\ns_add_u32 %s, %s, s3' % (sr, self.srb64, self.sw, sr, sr))
        a('s_and_b32 s3, %s, 7\ns_lshl_b32 s3, s3, 2\ns_lshr_b32 %s, %s, 3\ns_lshl_b32 %s, %s, 8\ns_add_u32 s3, s3, %s' % (sr, sPr, sr, sPr, sPr, sPr))
        a('s_mul_i32 s3, s3, 896\ns_mul_i32 %s, %s, %d\ns_add_u32 %s, %s, %s\ns_add_u32 %s, %s, %d\ns_add_u32 %s, %s, s3'
          % (sr, sr, 32 * 896, sr, sr, so, sr, sr, HR_OFF, so, so))
        a('buffer_load_dwordx4 %s, %s, %s, %s offen sc1' % (hres[0], vr_, self.WS, sr))
        hrl = a('buffer_load_dwordx4 %s, %s, %s, %s offen offset:16 sc1' % (hres[1], vr_, self.WS, sr))
        while done < 28:
            g2_mfma(*order[done]); free.append(hslot[order[done]]); done += 1
        for k in range(4):
            o = order[k]
            free.append(hslot[o])
        lp, lo = a.label('L_h1poll'), a.label('L_h1ok')
        a('s_add_u32 %s, %s, 256' % (sPf, sPf))
        a(lp + ':')
        a('buffer_load_dword %s, %s, %s, %s offen sc1' % (pf, vpf, self.WS, sPf))
        a.wait_vm0()
        a('v_cmp_eq_u32 vcc, -1, %s\ns_cbranch_vccz %s' % (pf, lo))
        self.spin_out(lo)
        a('s_branch %s' % lp)
        a(lo + ':')
        self.stamp('h1')
        free += [accB.sub(16 * rt + 4, 4) for rt in range(4)]
        order2 = [(n, 1) for n in range(14, 28)] + [(n, 0) for n in range(14, 28)]
        assert len(free) >= 28, len(free)
        last = None
        for n, rt in order2:
            h_load.force = last is None or last // 4 != n // 4
            last = n
            h_load(n, rt, free.pop(0))
        vrw = v.alloc(); vrr = [v.alloc() for _ in range(3)]
        a('v_add_u32 %s, %s, %s' % (vrw, sring, self.l16))
        for j in range(1, 4):
            a('s_xor_b32 s3, %s, %d\ns_mul_i32 s3, s3, 12288\ns_add_u32 s3, s3, %d\nv_add_u32 %s, s3, %s' % (self.sw, j, FFT + (j - 1) * 4096, vrr[j - 1], self.l16))
        a.wait(lg=dtr[27])
        def red_write(j, i):
            a('ds_write_b128 %s, %s offset:%d' % (vrw, acc.sub(16 * j + 4 * i, 4), (j - 1) * 4096 + i * 1024))
        wr = [(j, i) for j in (2, 3) for i in range(4)]
        for k, (n, rt) in enumerate(order2):
            a.wait(vm=hld[n, rt])
            for ct in ((1, 0) if rt == 0 else (0, 1)):
                d = acc.sub(16 * (ct + 2 * rt), 16)
                a('v_mfma_f32_32x32x16_bf16 %s, a[%d:%d], %s, %s' % (d, 8 * n + 4 * ct, 8 * n + 4 * ct + 3, hslot[n, rt], d))
            if k >= 17 and wr: red_write(*wr.pop(0))
        res = v.alloc(16) if False else early.sub(0, 16)
        for k in range(8):
            a('v_lshlrev_b32 %s, 16, %s\nv_and_b32 %s, 0xffff0000, %s' % (res[2 * k], hres[k // 4][k % 4], res[2 * k + 1], hres[k // 4][k % 4]))
        for i in range(4): red_write(1, i)
        for k in range(8):
            self.pk('add', res.sub(2 * k, 2), res.sub(2 * k, 2), acc.sub(2 * k, 2))
        a.wait_lg0()
        a('s_barrier')
        rd = {}
        for i in range(4):
            for j in range(1, 4):
                rd[j, i] = a('ds_read_b128 %s, %s offset:%d' % (acc.sub(16 * j + 4 * i, 4), vrr[j - 1], i * 1024))
        for i in range(4):
            for j in range(1, 4):
                a.wait(lg=rd[j, i])
                for e in range(2):
                    self.pk('add', res.sub(4 * i + 2 * e, 2), res.sub(4 * i + 2 * e, 2), acc.sub(16 * j + 4 * i + 2 * e, 2))
            for e in range(2):
                a('v_cvt_pk_bf16_f32 %s, %s, %s' % (acc[2 * i + e], res[4 * i + 2 * e], res[4 * i + 2 * e + 1]))
            if i % 2:
                a('buffer_store_dwordx4 %s, %s, %s, %s offen offset:%d' % (acc.sub(2 * i - 2, 4), vo, self.OUT, so, 8 * i - 8))

    def burn(self, n):
        a = self.a
        lab = a.label('L_burn')
        a('s_mov_b32 s3, %d' % n)
        a(lab + ':')
        for k in range(32): a('v_add_u32 v255, 1, v255')
        a('s_sub_u32 s3, s3, 1\ns_cmp_lg_u32 s3, 0\ns_cbranch_scc1 %s' % lab)

    def finish(self):
        a = self.a
        a('L_fin:')
        if self.cfg.get('burnend'): self.burn(self.cfg['burnend'])
        if self.stamps:
            a('s_waitcnt vmcnt(0) lgkmcnt(0)')
            self.stamp('done')
            a('s_waitcnt lgkmcnt(0)')
            a('s_lshl_b32 s3, s2, 2\ns_add_u32 s3, s3, %s\ns_lshl_b32 s3, s3, 8\ns_add_u32 s3, s3, %d' % (self.sw, ST_OFF))
            a('v_mov_b32 v1, 0\ns_mov_b64 exec, 1')
            if self.cfg.get('dbgst'):
                lab = a.label('L_nodbg')
                a('s_cmp_ge_u32 %s, 28\ns_cbranch_scc1 %s\ns_cmp_lg_u32 %s, 0\ns_cbranch_scc1 %s' % (self.si, lab, self.sw, lab))
                d = self.X
                a('s_load_dwordx2 %s, s[0:1], 64\ns_mov_b32 %s, 256\ns_waitcnt lgkmcnt(0)' % (d[0:2], d[2]))
                for k, (nm, r) in enumerate(self.stamps[:16]):
                    a('v_mov_b32 v2, %s' % r[0])
                    if k == 0: a('v_not_b32 v2, v2')
                    a('buffer_atomic_umax v2, v1, %s, 0 offen offset:%d sc1' % (d, 4 * k))
                    a('s_nop 1')
                a(lab + ':')
            for k, (nm, r) in enumerate(self.stamps):
                a('v_mov_b32 v2, %s' % r[0])
                a('buffer_store_dword v2, v1, %s, s3 offen offset:%d' % (self.WS, 4 * k))
        a('L_end:')
        a('s_endpgm')
        for fn in self.tail: fn()

    def build(self):
        self.s.free.discard(3)
        self.prologue(); self.p1(); self.p2(); self.p3(); self.gemms(); self.finish()
        nops = self.a.fix_hazards()
        errs = self.a.check_waits()
        return nops, errs


HEAD = '''; Kernarg layout (80 bytes, pointers only, base s[0:1]):
; @launch grid=(256,1,1) block=(256,1,1) lds=%d
.amdgcn_target "amdgcn-amd-amdhsa--gfx950"
.text
.globl %s
.p2align 8
.type %s,@function
%s:
'''
TAIL = '''
.fill 8192, 4, 0xbf800000
.section .rodata,"a"
.p2align 6
.amdhsa_kernel %s
  .amdhsa_next_free_vgpr 512
  .amdhsa_next_free_sgpr 102
  .amdhsa_accum_offset 256
  .amdhsa_group_segment_fixed_size 0
  .amdhsa_kernarg_size 80
  .amdhsa_user_sgpr_count 2
  .amdhsa_user_sgpr_kernarg_segment_ptr 1
  .amdhsa_system_sgpr_workgroup_id_x 1
.end_amdhsa_kernel
'''


def generate(cfg, path):
    g = Gen(cfg)
    nops, errs = g.build()
    for e in errs: print('WAIT-CHECK:', e)
    src = HEAD % (LDS_BYTES, KNAME, KNAME, KNAME) + g.a.text() + TAIL % KNAME
    if cfg.get('stamps'): src += '; cfg ' + ' '.join('%s=%s' % kv for kv in cfg.items()) + '\n'
    open(path, 'w').write(src)
    import os
    if g.stamps: open(path[:-2] + '.stamps', 'w').write(' '.join(x[0] for x in g.stamps))
    elif os.path.exists(path[:-2] + '.stamps'): os.remove(path[:-2] + '.stamps')
    n = sum(1 for x in g.a.ins if x.kind not in ('label', 'dir'))
    print('%s: %d instructions, %d hazard states, vgpr hi %d, sgpr hi %d, stamps %s' % (path, n, nops, g.v.hi, g.s.hi, [x[0] for x in g.stamps]))
    return g


if __name__ == '__main__':
    cfg = {}
    path = 'k.s'
    for arg in sys.argv[1:]:
        if '=' in arg:
            k, val = arg.split('='); cfg[k] = int(val) if val.lstrip('-').isdigit() else val
        else: path = arg
    generate(cfg, path)
```

```python
import math, struct, sys
from asmdsl import *

KNAME = 'sequential_preLN__spectral_gfnet__glu_gated_bilinear__prompt_kernel'
S, D, F = 2048, 448, 1792

Y1_OFF, Y2_OFF, Z2_OFF, HR_OFF, HH_OFF, FL_OFF, ST_OFF, WT_OFF = 0, 2 << 20, 4 << 20, 6 << 20, 8 << 20, 15 << 20, 17 << 20, 18 << 20
WS_BYTES = 20 << 20
YS = 8192
FS = 7
HFL = 0
RFL = 1 << 18
CFL = 1 << 19
EPO = 3 << 17
OOB = 0x7f000000

FFT = 0
L_A = 0
L_GU = 65536
L_WD = 131072
L_V, L_Y1G, L_T = FFT, FFT + 8192, FFT + 16384
L_Y2G, L_U, L_ZB, L_HB = FFT, FFT + 8192, FFT + 26112, FFT + 33280
L_W = FFT + 24576
UROW = 272
LDS_BYTES = 163840
SPIN = 1 << 16


def f2u(x):
    return struct.unpack('<I', struct.pack('<f', x))[0]


def hexf(x):
    return '0x%08x' % f2u(x)


class Gen:
    def __init__(self, cfg):
        self.cfg = cfg
        global FS
        FS = cfg.get('fs', 7)
        self.a = Asm()
        self.v = Regs('v', 1, 256)
        self.s = Regs('s', 3, 102)
        self.stamps = []
        self.tail = []
        self.bgq = []
        self.H = [c in 'HSP' for c in cfg.get('hops', 'SSF')]
        self.early = [c in 'SP' for c in cfg.get('hops', 'SSF')]
        self.pure = [c == 'P' for c in cfg.get('hops', 'SSF')]

    def stamp(self, name):
        if not self.cfg.get('stamps') or name in self.cfg.get('skip', '').split(','):
            return
        r = self.s.alloc(2)
        self.stamps.append((name, r))
        self.a('%s %s' % ('s_memtime' if self.cfg.get('clk') else 's_memrealtime', r))

    def pk(self, op, d, x, y, z=None, neg=None, sel=None):
        srcs = [x, y] + ([z] if z is not None else [])
        n = len(srcs)
        sel = sel or [None] * n
        neg = neg or [0] * n
        lo = [1 if q == 'hi' else 0 for q in sel]
        hi = [0 if q == 'lo' else 1 for q in sel]
        m = ''
        if any(lo): m += ' op_sel:[%s]' % ','.join(map(str, lo))
        if not all(hi): m += ' op_sel_hi:[%s]' % ','.join(map(str, hi))
        if any(neg): m += ' neg_lo:[%s] neg_hi:[%s]' % (','.join(map(str, neg)), ','.join(map(str, neg)))
        return self.a('v_pk_%s_f32 %s, %s%s' % (op, d, ', '.join(map(str, srcs)), m))

    def cmul(self, re, im, c, sn, sign, t0, t1):
        self.pk('mul', t0, im, sn)
        self.pk('mul', t1, re, sn)
        self.pk('fma', re, re, c, t0, neg=[0, 0, 1 if sign > 0 else 0])
        self.pk('fma', im, im, c, t1, neg=[0, 0, 0 if sign > 0 else 1])

    def round_bf16(self, d, x):
        self.a('v_cvt_pk_bf16_f32 %s, 0, %s' % (d, x))

    def row_stats(self, s1, s2, t0, t1, mean, rs):
        a = self.a
        for n in (8, 4, 2, 1):
            a('v_add_f32_dpp %s, %s, %s row_ror:%d row_mask:0xf bank_mask:0xf' % (s1, s1, s1, n))
            a('v_add_f32_dpp %s, %s, %s row_ror:%d row_mask:0xf bank_mask:0xf' % (s2, s2, s2, n))
        a('v_mov_b32 %s, %s\nv_mov_b32 %s, %s' % (t0, s1, t1, s2))
        a('v_permlane16_swap_b32 %s, %s\nv_permlane16_swap_b32 %s, %s' % (s1, t0, s2, t1))
        a('v_add_f32 %s, %s, %s\nv_add_f32 %s, %s, %s' % (s1, s1, t0, s2, s2, t1))
        a('v_mul_f32 %s, %s, %s' % (s1, hexf(1.0 / D), s1))
        a('v_mul_f32 %s, %s, %s' % (s2, hexf(1.0 / D), s2))
        a('v_fma_f32 %s, -%s, %s, %s' % (s2, s1, s1, s2))
        a('v_max_f32 %s, 0, %s' % (s2, s2))
        self.round_bf16(s2, s2)
        a('v_add_f32 %s, %s, %s' % (s2, hexf(1e-5), s2))
        self.round_bf16(s2, s2)
        a('v_sqrt_f32 %s, %s' % (s2, s2))
        self.round_bf16(mean, s1)
        self.round_bf16(s2, s2)
        a('v_rcp_f32 %s, %s' % (rs, s2))

    def sentinel_max(self, acc, regs, first):
        regs = list(regs)
        if first:
            self.a('v_max3_u32 %s, %s, %s, %s' % (acc, regs[0], regs[1], regs[2])); regs = regs[3:]
        while len(regs) >= 2:
            self.a('v_max3_u32 %s, %s, %s, %s' % (acc, acc, regs[0], regs[1])); regs = regs[2:]
        if regs:
            self.a('v_max_u32 %s, %s, %s' % (acc, acc, regs[0]))

    def spin_out(self, lab):
        self.a('s_cmp_eq_u32 %s, 0\ns_cbranch_scc1 %s\ns_sub_u32 %s, %s, 1' % (self.spin, lab, self.spin, self.spin))

    def srd(self, slot, nbytes):
        r = self.s.alloc(4)
        self.a('s_load_dwordx2 %s, s[0:1], %d' % (r[0:2], slot * 8))
        self.a('s_mov_b32 %s, %d\ns_mov_b32 %s, 0x20000' % (r[2], nbytes, r[3]))
        return r

    def prologue(self):
        a, v, s = self.a, self.v, self.s
        cfg = self.cfg
        a('s_cmp_ge_u32 s2, 256\ns_cbranch_scc1 L_end')
        self.stamp('start')
        if cfg.get('burn0'): self.burn(cfg['burn0'])
        self.WS = self.srd(9, WS_BYTES)
        self.X = self.srd(0, S * D * 2)
        self.sx, self.si, self.sw, self.sreg = s.alloc(), s.alloc(), s.alloc(), s.alloc()
        self.l, self.n16, self.g, self.p = v.alloc(), v.alloc(), v.alloc(), v.alloc()
        self.l16, self.t16, self.ones = v.alloc(), v.alloc(), v.alloc(4)
        t = v.alloc(); self.junk = v.alloc()
        if cfg.get('scr'): a('s_lshr_b32 %s, s2, 5\ns_and_b32 %s, s2, 31' % (self.sx, self.si))
        else: a('s_and_b32 %s, s2, 7\ns_lshr_b32 %s, s2, 3' % (self.sx, self.si))
        if cfg.get('codepf', 1):
            pc = s.alloc(2)
            a('s_getpc_b64 %s' % pc)
            a('s_lshl_b32 s3, %s, 10' % self.si)
            a('v_and_b32 %s, 7, v0\nv_lshl_add_u32 %s, %s, 7, s3' % (t, t, t))
            a('global_load_dword %s, %s, %s' % (self.junk, t, pc), 'unused')
            s.release(pc)
        self.WR = self.srd(1, S * 225 * 2)
        self.WI = self.srd(2, S * 225 * 2)
        self.WG = self.srd(4, D * F * 2)
        self.WU = self.srd(5, D * F * 2)
        self.WD = self.srd(6, F * D * 2)
        self.OUT = self.srd(7, S * D * 2)
        a('v_lshrrev_b32 %s, 6, v0' % t)
        a('v_and_b32 %s, 63, v0' % self.l)
        a('v_readfirstlane_b32 %s, %s' % (self.sw, t))
        a('v_lshlrev_b32 %s, 4, v0' % self.t16)
        a('v_lshlrev_b32 %s, 4, %s' % (self.l16, self.l))
        a('s_lshl_b32 %s, %s, 5\ns_add_u32 %s, %s, %s' % (self.sreg, self.sx, self.sreg, self.sreg, self.si))
        for k in range(4):
            a('v_mov_b32 %s, -1' % self.ones[k])
        a('v_and_b32 %s, 31, %s' % (self.p, self.l))
        a('v_and_b32 %s, 15, %s' % (self.n16, self.l))
        a('v_lshrrev_b32 %s, 4, %s' % (self.g, self.l))
        vx = v.alloc(); sxo = s.alloc(); self.sY1, self.sY2, self.sWt = s.alloc(), s.alloc(), s.alloc()
        a('v_lshrrev_b32 %s, 5, %s' % (t, self.l))
        a('v_mul_u32_u24 %s, %d, %s' % (t, 32 * 896, t))
        a('v_lshl_add_u32 %s, %s, 2, %s' % (vx, self.p, t))
        a('s_lshl_b32 %s, %s, 2\ns_add_u32 %s, %s, %s\ns_lshl_b32 %s, %s, 6\ns_add_u32 %s, %s, %s\ns_mul_i32 %s, %s, 896'
          % (sxo, self.sx, sxo, sxo, self.sw, sxo, sxo, sxo, sxo, self.si, sxo, sxo))
        a('s_mul_i32 %s, %s, %d' % (self.sY1, self.sreg, YS))
        a('s_add_u32 %s, %s, %d\ns_add_u32 %s, %s, %d' % (self.sY2, self.sY1, Y2_OFF, self.sWt, self.sY1, WT_OFF))
        self.t16b = vt2 = v.alloc()
        a('v_add_u32 %s, 4096, %s' % (vt2, self.t16))
        self.n = v.alloc()
        a('s_lshl_b32 s3, %s, 4\nv_add_u32 %s, s3, %s' % (self.sw, self.n, self.n16))
        vwo = v.alloc(4); ssg, swb = s.alloc(), s.alloc()
        a('s_and_b32 %s, %s, 15\ns_lshr_b32 s3, %s, 6\ns_lshl_b32 s3, s3, 4\ns_add_u32 %s, %s, s3' % (swb, self.sreg, self.sreg, swb, swb))
        a('s_and_b32 s3, %s, 48\ns_lshl_b32 s3, s3, 4\ns_add_u32 %s, %s, s3' % (self.sreg, swb, swb))
        a('s_cmp_ge_u32 %s, 2\ns_cselect_b32 %s, -1, 1' % (self.sw, ssg))
        a('v_lshrrev_b32 %s, 5, %s\nv_lshl_add_u32 %s, %s, 6, %s\nv_mul_lo_u32 %s, %s, %s' % (t, self.l, t, t, swb, t, t, ssg))
        for n in range(4):
            o = vwo[n]
            a('s_mul_i32 s3, %s, %d' % (ssg, 128 * (n % 2) + 1024 * (n // 2)))
            a('v_add_u32 %s, s3, %s\nv_and_b32 %s, 2047, %s\nv_mul_u32_u24 %s, 450, %s' % (o, t, o, o, o, o))
            a('v_and_b32 %s, -4, %s\nv_lshl_add_u32 %s, %s, 4, %s' % (o, o, o, self.p, o))
        s.release(ssg, swb)
        self.consts_a()
        a('s_waitcnt lgkmcnt(0)')
        if cfg.get('wsoff'):
            a('s_add_u32 %s, %s, %d\ns_addc_u32 %s, %s, 0' % (self.WS[0], self.WS[0], cfg['wsoff'] << 20, self.WS[1], self.WS[1]))
        self.tagbase = s.alloc(2)
        a('s_add_u32 %s, %s, %d\ns_addc_u32 %s, %s, 0' % (self.tagbase[0], self.WS[0], FL_OFF, self.tagbase[1], self.WS[1]))
        self.stamp('karg')
        self.tag = s.alloc()
        a('s_load_dword %s, %s, %d' % (self.tag, self.tagbase, EPO))
        ops = {}
        def do_c():
            if cfg.get('noclr1'): a('s_mov_b32 %s, 0' % self.WS[2])
            for so in ([self.sY1, self.sWt] if self.H[0] else []) + ([self.sY2] if self.pure[1] else []):
                a('buffer_store_dwordx4 %s, %s, %s, %s offen sc1' % (self.ones, self.t16, self.WS, so))
                ops['c'] = a('buffer_store_dwordx4 %s, %s, %s, %s offen sc1' % (self.ones, vt2, self.WS, so))
            if cfg.get('noclr1'): a('s_mov_b32 %s, %d' % (self.WS[2], WS_BYTES))
        self.xr = v.alloc(7)
        def do_x():
            nt = ' nt' if cfg.get('xnt', 1) else ''
            for d2 in range(7):
                self.xload = a('buffer_load_dword %s, %s, %s, %s offen offset:%d%s' % (self.xr[d2], vx, self.X, sxo, 128 * d2, nt))
        def do_w():
            nt = ' nt' if cfg.get('wnt', 1) else ''
            if cfg.get('now'): a('s_mov_b32 %s, 0' % self.WR[2])
            a('s_and_b32 s3, %s, 1\ns_cmp_eq_u32 s3, 0' % self.sw)
            a('s_cselect_b32 %s, %s, %s\ns_cselect_b32 %s, %s, %s' % (self.WR[0], self.WR[0], self.WI[0], self.WR[1], self.WR[1], self.WI[1]))
            a('s_lshl_b32 s3, %s, 12' % self.sw)
            for n in range(4):
                a('s_add_u32 m0, s3, %d' % (L_W + 1024 * n))
                self.wload = a('buffer_load_dwordx4 %s, %s, 0 offen%s lds' % (vwo[n], self.WR, nt))
        self.first_ops = dict(c=do_c, x=do_x, w=do_w)
        order = cfg.get('order', 'xcw')
        if not (self.H[0] or self.pure[1]): order = order.replace('c', '')
        for ch in order.split('_')[0]: self.first_ops[ch]()
        self.late_ops = order.split('_')[1] if '_' in order else ''
        self.stamp('wiss')
        if cfg.get('tlb'):
            lab = a.label('L_notlb')
            a('s_cmp_lg_u32 %s, 3\ns_cbranch_scc1 %s' % (self.sw, lab))
            if cfg['tlb'] == 2: a('s_cmp_ge_u32 %s, 2\ns_cbranch_scc1 %s' % (self.si, lab))
            a('v_lshlrev_b32 %s, %d, %s' % (t, cfg.get('tlbsh', 19), self.l))
            n0 = a.nvm
            for r in (self.WS, self.OUT, self.WD, self.WG, self.WU):
                a('buffer_load_dword %s, %s, %s, 0 offen' % (self.junk, t, r), 'unused')
            a.nvm = n0
            a(lab + ':')
        u = v.alloc()
        self.srb, self.sfs, self.srb64, self.scb = s.alloc(), s.alloc(), s.alloc(), s.alloc()
        q7 = s.alloc()
        a('s_mul_i32 %s, %s, 37\ns_lshr_b32 %s, %s, 8' % (q7, self.si, q7, q7))
        a('s_mul_i32 %s, %s, 7\ns_sub_u32 %s, %s, %s' % (self.scb, q7, self.scb, self.si, self.scb))
        a('s_lshl_b32 %s, %s, 2\ns_add_u32 %s, %s, %s' % (self.srb64, self.sx, self.srb64, self.srb64, q7))
        a('s_lshr_b32 %s, %s, 1\ns_lshl_b32 %s, %s, 2\ns_add_u32 %s, %s, %s' % (self.srb, self.sx, self.srb, self.srb, self.srb, self.srb, q7))
        a('s_and_b32 %s, %s, 1\ns_mul_i32 %s, %s, 7\ns_add_u32 %s, %s, %s' % (self.sfs, self.sx, self.sfs, self.sfs, self.sfs, self.sfs, self.scb))
        s.release(q7)
        self.PF = s.alloc(4)
        a('s_bitcmp1_b32 %s, 0' % self.sw)
        a('s_cselect_b32 %s, %s, %s\ns_cselect_b32 %s, %s, %s' % (self.PF[0], self.WU[0], self.WG[0], self.PF[1], self.WU[1], self.WG[1]))
        a('s_mov_b32 %s, %d\ns_mov_b32 %s, 0x20000' % (self.PF[2], D * F * 2, self.PF[3]))
        self.vpf = v.alloc()
        a('v_lshlrev_b32 %s, 3, %s\nv_cmp_gt_u32 vcc, 13, %s\nv_mov_b32 %s, %d\nv_cndmask_b32 %s, %s, %s, vcc' % (t, self.l16, self.l, u, OOB, self.vpf, u, t))
        for ch in str(cfg.get('pf0', '')): self.mallpf(ch)
        a('s_cmp_lt_u32 %s, 28' % self.si)
        for r in (self.WG, self.WU): a('s_cselect_b32 %s, %s, 0' % (r[2], r[2]))
        self.stamp('issued')
        self.consts_b()
        for ch in self.late_ops: self.first_ops[ch]()
        v.release(vwo, vx)
        self.clr1 = ops.get('c')
        a.wait_lg0()
        s.release(self.tagbase)
        self.vtag = v.alloc()
        a('s_mul_i32 %s, %s, 0x9e3779b1\ns_add_u32 %s, %s, 0x7f4a7c15\nv_mov_b32 %s, %s' % (self.tag, self.tag, self.tag, self.tag, self.vtag, self.tag))
        self.spin = s.alloc()
        self.vz0, self.vz1, self.sZ = v.alloc(), v.alloc(), s.alloc()
        a('v_lshrrev_b32 %s, 3, v0\nv_lshlrev_b32 %s, 9, %s' % (t, t, t))
        a('v_and_b32 %s, 7, v0\nv_lshl_add_u32 %s, %s, 4, %s' % (self.vz0, self.vz0, self.vz0, t))
        a('v_add_u32 %s, 16384, %s' % (self.vz1, self.vz0))
        a('v_mov_b32 %s, %d' % (t, OOB))
        a('v_cmp_gt_u32 vcc, 192, v0')
        a('v_cndmask_b32 %s, %s, %s, vcc' % (self.vz1, t, self.vz1))
        a('s_lshr_b32 %s, %s, 2\ns_mul_i32 %s, %s, 28672' % (self.sZ, self.sreg, self.sZ, self.sZ))
        a('s_and_b32 %s, %s, 3\ns_lshl_b32 %s, %s, 7' % (sxo, self.si, sxo, sxo))
        a('s_add_u32 %s, %s, %s\ns_add_u32 %s, %s, %d' % (self.sZ, self.sZ, sxo, self.sZ, self.sZ, Z2_OFF))
        v.release(t, u)
        s.release(sxo)

    def mallpf(self, part):
        a = self.a
        if part == 'd':
            a('s_lshl_b32 s3, s2, 2\ns_add_u32 s3, s3, %s\ns_mul_i32 s3, s3, %d' % (self.sw, 13 * 128))
            a('buffer_load_dword %s, %s, %s, s3 offen' % (self.junk, self.vpf, self.WD), 'unused')
        else:
            a('s_lshr_b32 s3, %s, 1\ns_add_u32 s3, s3, s2\ns_add_u32 s3, s3, s2\ns_mul_i32 s3, s3, %d' % (self.sw, 13 * 128))
            if part == 'b': a('s_add_u32 s3, s3, %d' % (D * F))
            a('buffer_load_dword %s, %s, %s, s3 offen' % (self.junk, self.vpf, self.PF), 'unused')

    def weight_setup(self):
        a, v, s = self.a, self.v, self.s
        t, u = v.alloc(), v.alloc()
        self.vsg, self.vsu, self.sst, self.sgu, self.vtr = v.alloc(), v.alloc(), s.alloc(), s.alloc(), v.alloc(2)
        a('v_lshrrev_b32 %s, 2, %s\nv_mul_u32_u24 %s, 3584, %s' % (t, self.l, t, t))
        a('v_and_b32 %s, 3, %s\nv_lshl_add_u32 %s, %s, 4, %s' % (self.vsg, self.l, self.vsg, self.vsg, t))
        a('v_xor_b32 %s, 32, %s' % (self.vsu, self.vsg))
        a('s_lshl_b32 %s, %s, 2\ns_add_u32 %s, %s, %s\ns_lshl_b32 %s, %s, 6' % (self.sst, self.sfs, self.sst, self.sst, self.sw, self.sst, self.sst))
        a('s_lshl_b32 %s, %s, 14\ns_add_u32 %s, %s, %d' % (self.sgu, self.sw, self.sgu, self.sgu, L_GU))
        a('v_bfe_u32 %s, %s, 1, 1\nv_mul_u32_u24 %s, 1056, %s' % (t, self.l, t, t))
        a('v_bfe_u32 %s, %s, 2, 2\nv_lshl_add_u32 %s, %s, 6, %s' % (u, self.l, t, u, t))
        a('v_lshrrev_b32 %s, 5, %s\nv_lshl_add_u32 %s, %s, 9, %s' % (u, self.l, t, u, t))
        a('v_and_b32 %s, 1, %s\nv_lshl_add_u32 %s, %s, 4, %s' % (u, self.l, t, u, t))
        a('v_bfe_u32 %s, %s, 4, 1\nv_lshl_add_u32 %s, %s, 3, %s' % (u, self.l, t, u, t))
        a('v_add_u32 %s, %s, %s' % (self.vtr[0], self.sgu, t))
        a('v_xor_b32 %s, 32, %s' % (self.vtr[1], self.vtr[0]))
        v.release(t, u)
        self.gdma = {}
        for k in range(8):
            self.bgq += [lambda k=k: self.gu_dma(k, 0), lambda k=k: self.gu_dma(k, 1)]

    def gu_dma(self, k, m):
        a = self.a
        a('s_add_u32 m0, %s, %d' % (self.sgu, 2048 * (k % 8) + 1024 * m))
        if k and not m: a('s_add_u32 %s, %s, %d' % (self.sst, self.sst, 16 * 3584))
        self.gdma[k] = a('buffer_load_dwordx4 %s, %s, %s offen lds' % ((self.vsg, self.vsu)[m], (self.WG, self.WU)[m], self.sst))

    def consts_a(self):
        a, v, s = self.a, self.v, self.s
        self.F64r, self.F64i = v.alloc(16), v.alloc(16)
        self.C2, self.S2 = v.alloc(8), v.alloc(8)
        self.ct = fn, a0, ang, c, sn, msk, g4 = [v.alloc() for _ in range(7)]
        a('v_and_b32 %s, 1, %s\nv_mul_u32_u24 %s, 0x8000, %s\nv_lshl_or_b32 %s, %s, 16, %s' % (msk, self.l, msk, msk, msk, msk, msk))
        a('v_lshlrev_b32 %s, 2, %s\nv_cvt_f32_u32 %s, %s' % (g4, self.g, g4, g4))
        a('v_cvt_f32_u32 %s, %s\nv_mul_f32 %s, %s, %s\nv_mul_f32 %s, %s, %s' % (fn, self.n, fn, hexf(1 / 64.0), fn, a0, fn, g4))
        self.f64rows(range(self.cfg.get('ca', 4)))

    def f64rows(self, ks):
        a = self.a
        fn, a0, ang, c, sn, msk, g4 = self.ct
        for k in ks:
            q, r = k // 4, k % 4
            a('v_fmamk_f32 %s, %s, %s, %s' % (ang, fn, hexf(16 * q + r), a0))
            a('v_cos_f32 %s, %s\nv_sin_f32 %s, %s' % (c, ang, sn, ang))
            a('v_mul_f32 %s, %s, %s' % (ang, hexf(1 / 32.0), ang))
            a('v_cvt_pk_bf16_f32 %s, %s, %s' % (self.F64r[k], c, sn))
            a('v_cvt_pk_bf16_f32 %s, -%s, %s' % (self.F64i[k], sn, c))
            a('v_cos_f32 %s, %s\nv_sin_f32 %s, %s' % (self.C2[k], ang, self.S2[k], ang))
            a('v_xor_b32 %s, %s, %s\nv_xor_b32 %s, %s, %s' % (self.F64r[k + 8], msk, self.F64r[k], self.F64i[k + 8], msk, self.F64i[k]))

    def consts_b(self):
        a, v, s = self.a, self.v, self.s
        fn, a0, ang, c, sn, msk, g4 = self.ct
        self.f64rows(range(self.cfg.get('ca', 4), 8))
        self.F32r, self.F32i = v.alloc(16), v.alloc(16)
        self.C1, self.S1 = v.alloc(6), v.alloc(6)
        a('v_lshlrev_b32 %s, 1, %s\nv_cvt_f32_u32 %s, %s\nv_add_f32 %s, 1.0, %s' % (fn, self.p, fn, fn, a0, fn))
        for j in range(1, 4):
            for e, src in enumerate((fn, a0)):
                a('v_mul_f32 %s, %s, %s' % (ang, hexf(j / 448.0), src))
                a('v_cos_f32 %s, %s\nv_sin_f32 %s, %s' % (self.C1[2 * j - 2 + e], ang, self.S1[2 * j - 2 + e], ang))
        a('v_cvt_f32_u32 %s, %s\nv_mul_f32 %s, %s, %s\nv_mul_f32 %s, %s, %s' % (fn, self.n16, fn, hexf(1 / 32.0), fn, a0, fn, g4))
        for r in range(4):
            a('v_fmamk_f32 %s, %s, %s, %s' % (ang, fn, hexf(r), a0))
            a('v_cos_f32 %s, %s\nv_sin_f32 %s, %s' % (c, ang, sn, ang))
            a('v_cvt_pk_bf16_f32 %s, %s, %s' % (self.F32r[r], c, sn))
            a('v_cvt_pk_bf16_f32 %s, -%s, %s' % (self.F32i[r], sn, c))
            for M in (self.F32r, self.F32i):
                a('v_xor_b32 %s, %s, %s' % (M[4 + r], msk, M[r]))
                for q in range(2):
                    if r % 2: a('v_xor_b32 %s, 0x80008000, %s' % (M[8 + 4 * q + r], M[4 * q + r]))
                    else: a('v_mov_b32 %s, %s' % (M[8 + 4 * q + r], M[4 * q + r]))
        v.release(*self.ct)
        self.K7 = s.alloc(6, 2)
        for k in range(1, 4):
            a('s_mov_b32 %s, %s' % (self.K7[2 * k - 2], hexf(math.cos(2 * math.pi * k / 7))))
            a('s_mov_b32 %s, %s' % (self.K7[2 * k - 1], hexf(math.sin(2 * math.pi * k / 7))))

    def k7(self, m):
        m %= 7
        return (self.K7.sub(2 * m - 2, 2), 1) if m <= 3 else (self.K7.sub(2 * (7 - m) - 2, 2), -1)

    def p1(self):
        a, v, s = self.a, self.v, self.s
        vw0, vw1, vr0, vr1, t, u = [v.alloc() for _ in range(6)]
        a('v_lshrrev_b32 %s, 5, %s\ns_lshl_b32 s3, %s, 1\nv_add_u32 %s, s3, %s' % (t, self.l, self.sw, t, t))
        self.va = v.alloc()
        a('v_mov_b32 %s, %s' % (self.va, t))
        a('v_bfe_u32 %s, %s, 1, 2\nv_xor_b32 %s, %s, %s' % (u, self.p, t, t, u))
        a('v_bfe_u32 %s, %s, 3, 1\nv_mul_u32_u24 %s, 12, %s\nv_xor_b32 %s, %s, %s' % (u, self.p, u, u, t, t, u))
        a('v_lshlrev_b32 %s, 4, %s' % (t, t))
        a('v_lshrrev_b32 %s, 1, %s\nv_lshl_add_u32 %s, %s, 8, %s' % (u, self.p, t, u, t))
        a('v_and_b32 %s, 1, %s\nv_lshl_add_u32 %s, %s, 3, %s' % (u, self.p, t, u, t))
        a('v_add_u32 %s, %d, %s\nv_xor_b32 %s, 128, %s' % (vw0, L_V, t, vw1, vw0))
        a('v_xor_b32 %s, %s, %s\nv_lshlrev_b32 %s, 4, %s\nv_lshl_add_u32 %s, %s, 8, %s' % (t, self.n16, self.g, t, t, t, self.g, t))
        a('v_add_u32 %s, %d, %s\nv_xor_b32 %s, 192, %s' % (vr0, L_V, t, vr1, vr0))
        vst = v.alloc()
        a('v_lshlrev_b32 %s, 4, %s\nv_lshl_add_u32 %s, %s, 6, %s' % (t, self.g, t, self.n16, t))
        a('s_lshl_b32 s3, %s, 10\nv_add_u32 %s, s3, %s' % (self.sw, vst, t))
        a.wait(vm=self.xload)
        self.stamp('x')
        self.Xf = X = v.alloc(14)
        P = lambda R_, k: R_.sub(2 * k, 2)
        for d2 in range(7):
            a('v_lshlrev_b32 %s, 16, %s\nv_and_b32 %s, 0xffff0000, %s' % (X[2 * d2], self.xr[d2], X[2 * d2 + 1], self.xr[d2]))
        v.release(self.xr)
        T, U, RE, IM = v.alloc(6), v.alloc(6), v.alloc(8), v.alloc(6)
        sq, t0, t1 = v.alloc(2), v.alloc(2), v.alloc(2)
        for k in range(1, 4):
            self.pk('add', P(T, k - 1), P(X, k), P(X, 7 - k))
        self.pk('mul', sq, P(X, 0), P(X, 0))
        self.pk('add', P(RE, 0), P(X, 0), P(T, 0))
        for d2 in range(1, 4): self.pk('fma', sq, P(X, d2), P(X, d2), sq)
        self.pk('add', t0, P(T, 1), P(T, 2))
        for d2 in range(4, 7): self.pk('fma', sq, P(X, d2), P(X, d2), sq)
        self.pk('add', P(RE, 0), P(RE, 0), t0)
        s1, s2, mean, rs = [v.alloc() for _ in range(4)]
        a('v_add_f32 %s, %s, %s' % (s2, sq[0], sq[1]))
        a('v_add_f32 %s, %s, %s' % (s1, RE[0], RE[1]))
        for k in range(1, 4):
            self.pk('add', P(U, k - 1), P(X, k), P(X, 7 - k), neg=[0, 1])
        self.row_stats(s1, s2, t, u, mean, rs)
        for j in range(1, 4):
            for k in range(1, 4):
                c, sg = self.k7(j * k)
                self.pk('fma', P(RE, j), P(T, k - 1), c, P(X, 0) if k == 1 else P(RE, j), sel=[None, 'lo', None])
                if k == 1: self.pk('mul', P(IM, j - 1), P(U, 0), c, sel=[None, 'hi'], neg=[0, 1 if sg > 0 else 0])
                else: self.pk('fma', P(IM, j - 1), P(U, k - 1), c, P(IM, j - 1), sel=[None, 'hi', None], neg=[0, 1 if sg > 0 else 0, 0])
        for j in range(1, 4):
            self.cmul(P(RE, j), P(IM, j - 1), P(self.C1, j - 1), P(self.S1, j - 1), -1, t0, t1)
        a('v_mul_f32 %s, %s, %s' % (mean, hexf(-7.0), mean))
        a('v_mul_f32 %s, %s, %s\nv_mov_b32 %s, %s' % (t0[0], hexf(2.0 / (S * D)), rs, t0[1], mean))
        a('v_mul_f32 %s, %s, %s' % (t1[0], hexf(1.0 / (S * D)), rs))
        self.pk('add', P(RE, 0), P(RE, 0), t0, sel=[None, 'hi'])
        for j in range(4):
            self.pk('mul', P(RE, j), P(RE, j), t0 if j else t1, sel=[None, 'lo'])
            if j: self.pk('mul', P(IM, j - 1), P(IM, j - 1), t0, sel=[None, 'lo'])
        for j in range(4):
            o = P(T, j) if j < 3 else P(U, 0)
            for e in range(2):
                a('v_cvt_pk_bf16_f32 %s, %s, %s' % (o[e], RE[2 * j + e], IM[2 * j - 2 + e] if j else 0))
            a('ds_write_b64 %s, %s offset:%d' % (vw1 if j & 1 else vw0, o, (j >> 1) * 4096))
        if self.H[0]: a.wait(vm=self.clr1)
        a.wait_lg0()
        a('s_barrier')
        if self.early[0]: self.publish(0, None, False)
        v.release(T, U, RE, IM, sq, t0, t1, s1, s2, mean, rs, vw0, vw1)
        A = v.alloc(32, 4); acc = v.alloc(16, 4); o = v.alloc(8, 4)
        rd = {}
        for Pp in range(2):
            for q in range(4):
                rd[Pp, q] = a('ds_read_b128 %s, %s offset:%d' % (A.sub(16 * Pp + 4 * q, 4), vr1 if q & 1 else vr0, Pp * 4096 + q * 1024))
        for Pp in range(2):
            for q in range(4):
                a.wait(lg=rd[Pp, q])
                for c, M in enumerate((self.F64r, self.F64i)):
                    d = acc.sub(8 * Pp + 4 * c, 4)
                    a('v_mfma_f32_16x16x32_bf16 %s, %s, %s, %s' % (d, A.sub(16 * Pp + 4 * q, 4), M.sub(4 * q, 4), d if q else 0))
        a('v_add_u32 %s, 4096, %s' % (t, vst))
        for Pp in range(2):
            for r in range(4):
                a('v_cvt_pk_bf16_f32 %s, %s, %s' % (o[4 * Pp + r], acc[8 * Pp + r], acc[8 * Pp + 4 + r]))
            self.y1st = a('buffer_store_dwordx4 %s, %s, %s, %s offen sc1' % (o.sub(4 * Pp, 4), t if Pp else vst, self.WS, self.sY1))
        self.stamp('p1')
        v.release(A, acc, o, vr0, vr1, vst, t, u)

    def p2(self):
        a, v, s = self.a, self.v, self.s
        cnt, t, u = v.alloc(), v.alloc(), v.alloc()
        wq = v.alloc(8, 4); vj, vm_ = v.alloc(), v.alloc()
        a('v_lshrrev_b32 %s, 2, v0\nv_mul_u32_u24 %s, 7, %s\nv_and_b32 %s, 3, v0\nv_add_u32 %s, %s, %s' % (vj, vj, vj, t, vj, vj, t))
        a('v_sub_u32 %s, %d, %s\nv_cmp_lt_u32 vcc, 224, %s' % (t, 448 + 4096, vj, vj))
        a('v_mov_b32 %s, 0x80000000' % vm_)
        a('v_cndmask_b32 %s, %s, %s, vcc\nv_cndmask_b32 %s, 0, %s, vcc' % (vj, vj, t, vm_, vm_))
        a('s_and_b32 s3, %s, 1\ns_lshl_b32 s3, s3, 1\ns_add_u32 s3, s3, %d\nv_lshl_add_u32 %s, %s, 1, s3' % (self.sreg, L_W, vj, vj))
        a.wait(vm=self.wload)
        a('s_barrier')
        wh = v.alloc(8)
        for k in range(8):
            a('ds_read_u16 %s, %s offset:%d' % (wq[k], vj, 512 * k))
            a('ds_read_u16_d16_hi %s, %s offset:%d' % (wh[k], vj, 4096 + 512 * k))
        a.wait_lg0()
        for k in range(8): a('v_and_b32 %s, 0xffff0000, %s' % (wh[k], wh[k]))
        v.release(wh)
        for h in range(2):
            for k in range(4 * h, 4 * h + 4): a('v_bitop3_b32 %s, %s, %s, %s bitop3:0x56' % (wq[k], wq[k], wh[k], vm_))
            wst = a('buffer_store_dwordx4 %s, %s, %s, %s offen sc1' % (wq.sub(4 * h, 4), self.t16b if h else self.t16, self.WS, self.sWt))
        v.release(vm_)
        if self.H[0] and not self.early[0]: self.publish(0, None)
        self.bg(self.cfg.get('n1a', 4))
        swg = s.alloc()
        a('v_mul_u32_u24 %s, %d, v0' % (vj, YS))
        a('s_lshl_b32 %s, %s, 4\ns_add_u32 %s, %s, %d' % (swg, self.sreg, swg, swg, WT_OFF))
        vg0, vg1, sg = v.alloc(), v.alloc(), s.alloc()
        a('v_lshrrev_b32 %s, 1, %s\nv_lshl_add_u32 %s, %s, 5, %s\nv_mul_u32_u24 %s, %d, %s' % (t, self.g, t, t, self.n16, t, YS, t))
        a('v_and_b32 %s, 1, %s\nv_lshl_add_u32 %s, %s, 4, %s' % (vg0, self.g, vg0, vg0, t))
        a('v_add_u32 %s, %d, %s' % (vg1, 16 * YS, vg0))
        a('s_lshr_b32 %s, %s, 2\ns_lshl_b32 %s, %s, 6' % (sg, self.sreg, sg, sg))
        a('s_and_b32 s3, %s, 2\ns_lshl_b32 s3, s3, 11\ns_add_u32 %s, %s, s3' % (self.sreg, sg, sg))
        a('s_and_b32 s3, %s, 1\ns_lshl_b32 s3, s3, 5\ns_add_u32 %s, %s, s3' % (self.sreg, sg, sg))
        a('s_mul_i32 s3, %s, %d\ns_add_u32 %s, %s, s3' % (self.sw, 64 * YS, sg, sg))
        sm = s.alloc()
        a('s_lshl_b32 %s, %s, 10\ns_add_u32 %s, %s, %d' % (sm, self.sw, sm, sm, L_Y1G))
        vlr, vtw, vst = v.alloc(), v.alloc(), v.alloc()
        a('v_add_u32 %s, %d, %s' % (vlr, L_Y1G, self.l16))
        a('v_lshrrev_b32 %s, 2, %s\nv_lshlrev_b32 %s, 8, %s\nv_lshl_add_u32 %s, %s, 6, %s' % (t, self.n16, t, t, t, self.g, t))
        a('v_and_b32 %s, 3, %s\nv_lshl_add_u32 %s, %s, 2, %s' % (vtw, self.l, t, vtw, t))
        a('s_lshl_b32 s3, %s, 10\ns_add_u32 s3, s3, %d\nv_add_u32 %s, s3, %s' % (self.sw, L_T, vtw, t))
        a('v_lshrrev_b32 %s, 1, %s\nv_lshlrev_b32 %s, 10, %s\nv_lshl_add_u32 %s, %s, 5, %s' % (t, self.g, t, t, t, self.n16, t))
        a('v_and_b32 %s, 1, %s\nv_lshl_add_u32 %s, %s, 4, %s' % (vst, self.g, t, vst, t))
        a('s_lshl_b32 s3, %s, 11\nv_add_u32 %s, s3, %s' % (self.sw, vst, t))
        scf = s.alloc()
        a('s_lshl_b32 %s, %s, %d\ns_add_u32 %s, %s, %d' % (scf, self.sx, 8 + FS, scf, scf, FL_OFF + CFL))
        self.vfl = v.alloc()
        a('v_lshlrev_b32 %s, %d, v0' % (self.vfl, FS))
        if not self.H[0]: self.publish(0, wst)
        for ch in str(self.cfg.get('pf1f', '')): self.mallpf(ch)
        self.bg(self.cfg.get('n1f', 0))
        self.pace(0, wst if self.cfg.get('hdrain', 1) == 1 else self.y1st)
        self.await_flags(cnt, self.vfl, scf, 'flag1')

        def gather():
            a('s_mov_b32 m0, %s' % sm)
            a('buffer_load_dwordx4 %s, %s, %s offen sc1 lds' % (vg0, self.WS, sg))
            a('s_add_u32 m0, %s, 4096' % sm)
            return a('buffer_load_dwordx4 %s, %s, %s offen sc1 lds' % (vg1, self.WS, sg))
        gl = gather()
        a('s_mov_b32 %s, %d' % (self.spin, SPIN))

        def wgather():
            a('buffer_load_dwordx4 %s, %s, %s, %s offen sc1' % (wq.sub(0, 4), vj, self.WS, swg))
            a('s_add_u32 s3, %s, 4096' % swg)
            return a('buffer_load_dwordx4 %s, %s, %s, s3 offen sc1' % (wq.sub(4, 4), vj, self.WS))
        wl = wgather()
        clr2 = None
        if self.H[1] and not self.pure[1]:
            a('buffer_store_dwordx4 %s, %s, %s, %s offen sc1' % (self.ones, self.t16, self.WS, self.sY2))
            clr2 = a('buffer_store_dwordx4 %s, %s, %s, %s offen sc1' % (self.ones, self.t16b, self.WS, self.sY2))
        if self.H[2]:
            a('buffer_store_dwordx4 %s, %s, %s, %s offen sc1' % (self.ones, self.vz0, self.WS, self.sZ))
            clr2 = a('buffer_store_dwordx4 %s, %s, %s, %s offen sc1' % (self.ones, self.vz1, self.WS, self.sZ))
        v.release(self.t16b, self.ones)
        for ch in str(self.cfg.get('pf1', '')): self.mallpf(ch)
        self.bg(self.cfg.get('n1b', 8))
        a.wait(vm=gl)
        lr, lf, lo = a.label('L_p2'), a.label('L_p2fail'), a.label('L_p2ok')
        a(lr + ':')
        a('s_barrier')
        A = v.alloc(32, 4); D1 = v.alloc(16, 4); B = v.alloc(8, 4); t0, t1 = v.alloc(2), v.alloc(2)
        rd = {}
        for tt in range(2):
            for q in range(4):
                rd[tt, q] = a('ds_read_b128 %s, %s offset:%d' % (A.sub(16 * tt + 4 * q, 4), vlr, tt * 4096 + q * 1024))
        for tt in range(2):
            for q in range(4):
                a.wait(lg=rd[tt, q])
                f = A.sub(16 * tt + 4 * q, 4)
                for c, M in enumerate((self.F64r, self.F64i)):
                    d = D1.sub(8 * tt + 4 * c, 4)
                    a('v_mfma_f32_16x16x32_bf16 %s, %s, %s, %s' % (d, f, M.sub(4 * q, 4), d if q else 0))
                if self.H[0]: self.sentinel_max(cnt, [f[k] for k in range(4)], tt == 0 and q == 0)
        if self.H[0]: a('v_cmp_eq_u32 vcc, -1, %s\ns_cbranch_vccnz %s' % (cnt, lf))
        a(lo + ':')
        self.stamp('g1')

        def fail2():
            a(lf + ':')
            self.spin_out(lo)
            a('s_barrier')
            gather()
            a.wait_vm0()
            a('s_branch %s' % lr)
        if self.H[0]: self.tail.append(fail2)

        def twiddle(Dr, Di, C, Sn, sign, swap):
            for tt in range(2):
                for h in range(2):
                    k = 4 * tt + 2 * h
                    re, im = Dr(tt).sub(2 * h, 2), Di(tt).sub(2 * h, 2)
                    self.cmul(re, im, C.sub(k, 2), Sn.sub(k, 2), sign, t0, t1)
                    self.bg(self.cfg.get('n1c', 1))
                    for e in range(2):
                        x, y = (im[e], re[e]) if swap else (re[e], im[e])
                        a('v_cvt_pk_bf16_f32 %s, %s, %s' % (B[k + e], x, y))

        def f32stage(Dd):
            for tt in range(2):
                for c, M in enumerate((self.F32r, self.F32i)):
                    d = Dd.sub(8 * tt + 4 * c, 4)
                    for q in range(2):
                        a('v_mfma_f32_16x16x32_bf16 %s, %s, %s, %s' % (d, M.sub(8 * tt + 4 * q, 4), B.sub(4 * q, 4), d if q else 0))
                    self.bg(self.cfg.get('n1c', 1))
        R0 = lambda Dd: (lambda tt: Dd.sub(8 * tt, 4))
        R1 = lambda Dd: (lambda tt: Dd.sub(8 * tt + 4, 4))
        D2 = A.sub(0, 16)
        twiddle(R0(D1), R1(D1), self.C2, self.S2, -1, False)
        f32stage(D2)
        lwf, lwo = a.label('L_wfail'), a.label('L_wok')
        a.wait(vm=wl)
        if self.H[0]:
            self.sentinel_max(cnt, [wq[k] for k in range(8)], True)
            a('v_cmp_eq_u32 vcc, -1, %s\ns_cbranch_vccnz %s' % (cnt, lwf))
        a(lwo + ':')

        def failw():
            a(lwf + ':')
            self.spin_out(lwo)
            wgather()
            a.wait_vm0()
            self.sentinel_max(cnt, [wq[k] for k in range(8)], True)
            a('v_cmp_eq_u32 vcc, -1, %s\ns_cbranch_vccnz %s\ns_branch %s' % (cnt, lwf, lwo))
        if self.H[0]: self.tail.append(failw)
        Wr, Wi = A.sub(16, 8), A.sub(24, 8)
        for k in range(8):
            a('v_lshlrev_b32 %s, 16, %s\nv_and_b32 %s, 0xffff0000, %s' % (Wr[k], wq[k], Wi[k], wq[k]))
        twiddle(R0(D2), R1(D2), Wr, Wi, +1, True)
        f32stage(D1)
        twiddle(R1(D1), R0(D1), self.C2, self.S2, +1, True)
        for tt in range(2):
            for r in range(4):
                a('ds_write_b32 %s, %s offset:%d' % (vtw, B[4 * tt + r], tt * 4096 + r * 16))
        if clr2: a.wait(vm=clr2)
        a.wait_lg0()
        a('s_barrier')
        if self.early[1] and not self.pure[1]: self.publish(1, None, False)
        for tt in range(2):
            for q in range(4):
                rd[tt, q] = a('ds_read_b128 %s, %s offset:%d' % (A.sub(16 * tt + 4 * q, 4), vlr, L_T - L_Y1G + tt * 4096 + q * 1024))
        for tt in range(2):
            for q in range(4):
                a.wait(lg=rd[tt, q])
                for c, M in enumerate((self.F64r, self.F64i)):
                    d = D1.sub(8 * tt + 4 * c, 4)
                    a('v_mfma_f32_16x16x32_bf16 %s, %s, %s, %s' % (d, M.sub(4 * q, 4), A.sub(16 * tt + 4 * q, 4), d if q else 0))
        for tt in range(2):
            im, re = D1.sub(8 * tt, 4), D1.sub(8 * tt + 4, 4)
            o = B.sub(4 * tt, 4)
            a('v_cvt_pk_bf16_f32 %s, %s, %s\nv_cvt_pk_bf16_f32 %s, %s, %s' % (o[0], re[0], re[1], o[1], re[2], re[3]))
            a('v_cvt_pk_bf16_f32 %s, %s, %s\nv_cvt_pk_bf16_f32 %s, %s, %s' % (o[2], im[0], im[1], o[3], im[2], im[3]))
            self.y2st = a('buffer_store_dwordx4 %s, %s, %s, %s offen offset:%d sc1' % (o, vst, self.WS, self.sY2, 512 * tt))
        self.stamp('p2')
        v.release(A, D1, B, t0, t1, vlr, vtw, vst, t, u, wq, vj, self.F32r, self.F32i, self.C2, self.S2)
        v.release(vg0, vg1, cnt); s.release(sg, sm, swg); self.scf = scf

    def p3(self):
        a, v, s = self.a, self.v, self.s
        t, u, cnt = v.alloc(), v.alloc(), v.alloc()
        if self.H[1] and not self.early[1]: self.publish(1, None)
        self.weight_setup()
        vg0, vg1, sg, sm = v.alloc(), v.alloc(), s.alloc(), s.alloc()
        a('v_bfe_u32 %s, %s, 3, 2\nv_lshlrev_b32 %s, 4, %s' % (t, self.l, t, t))
        a('v_lshrrev_b32 %s, 5, %s\nv_lshl_add_u32 %s, %s, 3, %s' % (u, self.l, t, u, t))
        a('v_bfe_u32 %s, %s, 2, 1\nv_lshl_add_u32 %s, %s, 2, %s' % (u, self.l, t, u, t))
        a('v_bfe_u32 %s, %s, 1, 1\nv_add_u32 %s, %s, %s\nv_mul_u32_u24 %s, %d, %s' % (u, self.l, t, t, u, t, YS, t))
        a('v_and_b32 %s, 1, %s\nv_lshl_add_u32 %s, %s, 4, %s' % (u, self.l, vg0, u, t))
        a('v_add_u32 %s, %d, %s' % (vg1, 2 * YS, vg0))
        a('s_mul_i32 %s, %s, %d\ns_lshl_b32 s3, %s, 5\ns_add_u32 %s, %s, s3\ns_add_u32 %s, %s, %d'
          % (sg, self.sw, 64 * YS, self.sreg, sg, sg, sg, sg, Y2_OFF))
        a('s_lshl_b32 %s, %s, 10\ns_add_u32 %s, %s, %d' % (sm, self.sw, sm, sm, L_Y2G))
        vtr, vuw, vur, vzw, vhw, vzr, vhr, vhs = [v.alloc() for _ in range(8)]
        a('v_lshlrev_b32 %s, 7, %s\nv_bfe_u32 %s, %s, 3, 1\nv_lshl_add_u32 %s, %s, 6, %s' % (t, self.g, u, self.l, t, u, t))
        a('v_and_b32 %s, 3, %s\nv_lshl_add_u32 %s, %s, 4, %s' % (u, self.l, t, u, t))
        a('v_bfe_u32 %s, %s, 2, 1\nv_xor_b32 %s, 1, %s\nv_lshl_add_u32 %s, %s, 3, %s' % (u, self.l, u, u, t, u, t))
        a('v_add_u32 %s, %d, %s' % (vtr, L_Y2G, t))
        a('v_lshrrev_b32 %s, 3, %s\nv_lshlrev_b32 %s, 3, %s\nv_add_u32 %s, %s, %s\nv_mul_u32_u24 %s, %d, %s'
          % (t, self.n16, t, t, t, t, self.n16, t, UROW, t))
        a('v_lshl_add_u32 %s, %s, 4, %s\ns_lshl_b32 s3, %s, 6\ns_add_u32 s3, s3, %d\nv_add_u32 %s, s3, %s' % (t, self.g, t, self.sw, L_U, vuw, t))
        a('v_mul_u32_u24 %s, %d, %s\nv_lshl_add_u32 %s, %s, 3, %s\nv_add_u32 %s, %d, %s' % (t, UROW, self.va, t, self.p, t, vur, L_U, t))
        a('v_lshrrev_b32 %s, 2, %s\nv_xor_b32 %s, %s, %s\nv_lshlrev_b32 %s, 4, %s\nv_lshl_add_u32 %s, %s, 7, %s'
          % (t, self.p, u, t, self.va, u, u, t, t, u))
        a('v_and_b32 %s, 3, %s\nv_lshl_add_u32 %s, %s, 2, %s\nv_add_u32 %s, %d, %s' % (u, self.p, t, u, t, vzw, L_ZB, t))
        a('v_mul_u32_u24 %s, 896, %s\nv_lshl_add_u32 %s, %s, 2, %s\nv_add_u32 %s, %d, %s' % (t, self.va, t, self.p, t, vhw, L_HB, t))
        a('v_lshrrev_b32 %s, 3, v0\nv_xor_b32 %s, %s, v0\nv_and_b32 %s, 7, %s\nv_lshlrev_b32 %s, 4, %s\nv_lshl_add_u32 %s, %s, 7, %s'
          % (t, u, t, u, u, u, u, t, t, u))
        a('v_add_u32 %s, %d, %s' % (vzr, L_ZB, t))
        a('s_mul_i32 s3, %s, 1792\ns_add_u32 s3, s3, %d\nv_add_u32 %s, s3, %s' % (self.sw, L_HB, vhr, self.l16))
        a('v_mov_b32 %s, %d\nv_cmp_gt_u32 vcc, 56, %s\nv_cndmask_b32 %s, %s, %s, vcc' % (t, OOB, self.l, vhs, t, self.l16))
        sh = s.alloc()
        a('s_lshl_b32 %s, %s, 2\ns_add_u32 %s, %s, %s\ns_mul_i32 %s, %s, 1792\ns_add_u32 %s, %s, %d'
          % (sh, self.sreg, sh, sh, self.sw, sh, sh, sh, sh, HR_OFF))
        self.bg(self.cfg.get('n2a', 0))
        a('s_add_u32 %s, %s, %d' % (self.scf, self.scf, 1 << (11 + FS)))
        if not self.H[1]: self.publish(1, self.y2st)
        self.bg(self.cfg.get('n2f', 0))
        self.pace(1, self.y2st)
        if not self.pure[1]: self.await_flags(cnt, self.vfl, self.scf, 'flag2')
        elif self.cfg.get('pace2'): a('s_sleep %d' % self.cfg['pace2'])
        v.release(self.vfl)
        s.release(self.scf)

        def gather():
            a('s_mov_b32 m0, %s' % sm)
            a('buffer_load_dwordx4 %s, %s, %s offen sc1 lds' % (vg0, self.WS, sg))
            a('s_add_u32 m0, %s, 4096' % sm)
            return a('buffer_load_dwordx4 %s, %s, %s offen sc1 lds' % (vg1, self.WS, sg))
        gl = gather()
        a('s_mov_b32 %s, %d' % (self.spin, SPIN))
        self.bg(self.cfg.get('n2b', 0))
        for ch in str(self.cfg.get('pf2', '')): self.mallpf(ch)
        v.release(self.vpf); s.release(self.PF)
        a.wait(vm=gl)
        lr, lf, lo = a.label('L_p3'), a.label('L_p3fail'), a.label('L_p3ok')
        a(lr + ':')
        a('s_barrier')
        A = v.alloc(32, 4); acc = v.alloc(16, 4)
        rd = {}
        for Pp in range(2):
            for q in range(4):
                for e in range(2):
                    rd[Pp, q] = a('ds_read_b64_tr_b16 %s, %s offset:%d' % (A.sub(16 * Pp + 4 * q + 2 * e, 2), vtr, (Pp * 4 + q) * 1024 + e * 512))
        for Pp in range(2):
            for q in range(4):
                a.wait(lg=rd[Pp, q])
                f = A.sub(16 * Pp + 4 * q, 4)
                for c, M in enumerate((self.F64r, self.F64i)):
                    d = acc.sub(8 * Pp + 4 * c, 4)
                    a('v_mfma_f32_16x16x32_bf16 %s, %s, %s, %s' % (d, M.sub(4 * q, 4), f, d if q else 0))
                if self.H[1]: self.sentinel_max(cnt, [f[k] for k in range(4)], Pp == 0 and q == 0)
        if self.H[1]: a('v_cmp_eq_u32 vcc, -1, %s\ns_cbranch_vccnz %s' % (cnt, lf))
        a(lo + ':')
        self.stamp('g2')

        def fail3():
            a(lf + ':')
            self.spin_out(lo)
            a('s_barrier')
            gather()
            a.wait_vm0()
            a('s_branch %s' % lr)
        if self.H[1]: self.tail.append(fail3)
        lab = a.label('L_noepo')
        a('s_or_b32 s3, s2, %s\ns_cmp_lg_u32 s3, 0\ns_cbranch_scc1 %s' % (self.sw, lab))
        a('v_mov_b32 %s, %d' % (u, FL_OFF + EPO))
        a('s_mov_b64 exec, 1')
        a('buffer_store_dword %s, %s, %s, 0 offen sc1' % (self.vtag, u, self.WS))
        a('s_mov_b64 exec, -1')
        a.nvm -= 1
        a(lab + ':')
        for Pp in range(2):
            for c in range(2):
                a('ds_write_b128 %s, %s offset:%d' % (vuw, acc.sub(8 * Pp + 4 * (1 - c), 4), (Pp * 32 + c * 8) * UROW))
                self.bg(self.cfg.get('n2c', 0))
        a.wait_lg0()
        a('s_barrier')
        v.release(A, acc, self.F64r, self.F64i)
        P = lambda R_, k: R_.sub(2 * k, 2)
        RE, IM, Aa, Bb, Y = v.alloc(8), v.alloc(6), v.alloc(6), v.alloc(6), v.alloc(14)
        t0, t1 = v.alloc(2), v.alloc(2)
        rd = {}
        for j in (1, 2, 3, 0):
            rd[j] = a('ds_read_b64 %s, %s offset:%d' % (P(RE, j), vur, j * 16 * UROW))
            if j: rd[j] = a('ds_read_b64 %s, %s offset:%d' % (P(IM, j - 1), vur, (j * 16 + 8) * UROW))
        for j in range(1, 4):
            a.wait(lg=rd[j])
            self.cmul(P(RE, j), P(IM, j - 1), P(self.C1, j - 1), P(self.S1, j - 1), +1, t0, t1)
            self.bg(self.cfg.get('n2c', 0))
        a.wait(lg=rd[0])
        X = self.Xf
        for d in range(1, 4):
            for j in range(1, 4):
                c, sg_ = self.k7(j * d)
                self.pk('fma', P(Aa, d - 1), P(RE, j), c, P(RE, 0) if j == 1 else P(Aa, d - 1), sel=[None, 'lo', None])
                if j == 1: self.pk('mul', P(Bb, d - 1), P(IM, 0), c, sel=[None, 'hi'], neg=[0, 0 if sg_ > 0 else 1])
                else: self.pk('fma', P(Bb, d - 1), P(IM, j - 1), c, P(Bb, d - 1), sel=[None, 'hi', None], neg=[0, 0 if sg_ > 0 else 1, 0])
                if j != 2: self.bg(self.cfg.get('n2c', 0))
        self.pk('add', t0, P(RE, 0), P(RE, 1))
        self.pk('add', t1, P(RE, 2), P(RE, 3))
        self.pk('add', t0, t0, P(X, 0))
        self.pk('add', P(Y, 0), t0, t1)
        for d in range(1, 4):
            self.pk('add', t0, P(Aa, d - 1), P(X, d))
            self.pk('add', t1, P(Aa, d - 1), P(X, 7 - d))
            self.pk('add', P(Y, d), t0, P(Bb, d - 1), neg=[0, 1])
            self.pk('add', P(Y, 7 - d), t1, P(Bb, d - 1))
            self.bg(self.cfg.get('n2c', 0))
        sq, sm_ = P(Aa, 0), P(Aa, 1)
        self.pk('mul', sq, P(Y, 0), P(Y, 0))
        self.pk('add', sm_, P(Y, 0), P(Y, 1))
        for d in range(1, 7):
            self.pk('fma', sq, P(Y, d), P(Y, d), sq)
            if d > 1: self.pk('add', sm_, sm_, P(Y, d))
        s1, s2, mean = Bb[0], Bb[1], Bb[2]
        a('v_add_f32 %s, %s, %s\nv_add_f32 %s, %s, %s' % (s1, sm_[0], sm_[1], s2, sq[0], sq[1]))
        for d in range(7):
            a('v_cvt_pk_bf16_f32 %s, %s, %s' % (X[d], Y[2 * d], Y[2 * d + 1]))
            a('ds_write_b32 %s, %s offset:%d' % (vhw, X[d], d * 128))
        self.row_stats(s1, s2, t, u, mean, t0[0])
        a('v_mul_f32 %s, -%s, %s' % (t0[1], mean, t0[0]))
        for d in range(7):
            self.pk('fma', P(Y, d), P(Y, d), t0, t0, sel=[None, 'lo', 'hi'])
            a('v_cvt_pk_bf16_f32 %s, %s, %s' % (X[7 + d], Y[2 * d], Y[2 * d + 1]))
            a('ds_write_b32 %s, %s offset:%d' % (vzw, X[7 + d], d * 1024))
        a.wait_lg0()
        a('s_barrier')
        o = v.alloc(16, 4)
        r0 = a('ds_read_b128 %s, %s' % (o.sub(0, 4), vzr))
        r1 = a('ds_read_b128 %s, %s offset:4096' % (o.sub(4, 4), vzr))
        r2 = a('ds_read_b128 %s, %s' % (o.sub(8, 4), vhr))
        r3 = a('ds_read_b128 %s, %s offset:896' % (o.sub(12, 4), vhr))
        a.wait(lg=r0)
        a('buffer_store_dwordx4 %s, %s, %s, %s offen sc1' % (o.sub(0, 4), self.vz0, self.WS, self.sZ))
        a.wait(lg=r1)
        a('buffer_store_dwordx4 %s, %s, %s, %s offen sc1' % (o.sub(4, 4), self.vz1, self.WS, self.sZ))
        a.wait(lg=r2)
        a('buffer_store_dwordx4 %s, %s, %s, %s offen sc1' % (o.sub(8, 4), vhs, self.WS, sh))
        a.wait(lg=r3)
        self.z2st = a('buffer_store_dwordx4 %s, %s, %s, %s offen offset:896 sc1' % (o.sub(12, 4), vhs, self.WS, sh))
        self.stamp('p3')
        v.release(RE, IM, Aa, Bb, Y, t0, t1, X, self.C1, self.S1, o, t, u, vtr, vuw, vur, vzw, vhw, vzr, vhr, vhs,
                  self.vz0, self.vz1, self.va, self.n, self.t16)
        s.release(sh, self.K7)
        v.release(vg0, vg1, cnt, self.n16, self.g); s.release(sg, sm)

    def flag_store(self, soff, zero):
        a = self.a
        a('s_mov_b64 exec, 1')
        i = a('buffer_store_dword %s, %s, %s, %s offen sc1' % (self.vtag, zero, self.WS, soff))
        a('s_mov_b64 exec, -1')
        return i

    def publish(self, k, last, barrier=True):
        a, v = self.a, self.v
        if last is not None: a.wait(vm=last)
        if barrier:
            self.stamp('drain%d' % (k + 1))
            a('s_barrier')
        lab = a.label('L_noarr'); u = v.alloc()
        a('s_cmp_lg_u32 %s, 0\ns_cbranch_scc1 %s' % (self.sw, lab))
        if k < 2:
            a('s_lshl_b32 s3, %s, %d\ns_add_u32 s3, s3, %d' % (self.sreg, FS, FL_OFF + CFL + (k << (11 + FS))))
            a('v_lshlrev_b32 %s, %d, v0' % (u, 8 + FS))
            a('s_mov_b64 exec, 0xff')
        else:
            a('s_lshl_b32 s3, %s, %d\ns_add_u32 s3, s3, %d' % (self.sreg, FS, FL_OFF + RFL))
            a('v_mov_b32 %s, 0' % u)
            a('s_mov_b64 exec, 1')
        a('buffer_store_dword %s, %s, %s, s3 offen sc1' % (self.vtag, u, self.WS))
        a('s_mov_b64 exec, -1')
        a.nvm -= 1
        a(lab + ':')
        v.release(u)

    def await_flags(self, cnt, voff, soff, name):
        a = self.a
        cl = a('buffer_load_dword %s, %s, %s, %s offen sc1' % (cnt, voff, self.WS, soff))
        a('s_mov_b32 %s, %d' % (self.spin, SPIN))
        a.wait(vm=cl)
        lf, lo = a.label('L_poll'), a.label('L_pollok')
        a('v_cmp_ne_u32 vcc, %s, %s\ns_cbranch_vccnz %s' % (self.tag, cnt, lf))
        a(lo + ':')
        def fail():
            a(lf + ':')
            self.spin_out(lo)
            if self.cfg.get('psleep', 0): a('s_sleep %d' % self.cfg['psleep'])
            a('buffer_load_dword %s, %s, %s, %s offen sc1' % (cnt, voff, self.WS, soff))
            a.wait_vm0()
            a('v_cmp_ne_u32 vcc, %s, %s\ns_cbranch_vccnz %s\ns_branch %s' % (self.tag, cnt, lf, lo))
        self.tail.append(fail)
        self.stamp(name)

    def pace(self, k, last):
        a = self.a
        if self.H[k]:
            if self.cfg.get('hdrain', 1): a.wait(vm=last)
            if self.early[k]: self.stamp('drain%d' % (k + 1))
        elif self.cfg.get('pace', 0): a('s_sleep %d' % self.cfg['pace'])

    def bg(self, n=1):
        for _ in range(n):
            if self.bgq: self.bgq.pop(0)()

    def gemms(self):
        a, v, s = self.a, self.v, self.s
        cfg = self.cfg
        assert not self.H[2]
        self.bg(cfg.get('n3a', 0))
        zero = v.alloc(); t, u = v.alloc(), v.alloc()
        a('v_mov_b32 %s, 0' % zero)
        sA, sAf = s.alloc(), s.alloc()
        a('s_lshl_b32 %s, %s, 2\ns_add_u32 %s, %s, %s\ns_lshl_b32 %s, %s, %d\ns_add_u32 %s, %s, %d\ns_mul_i32 %s, %s, 28672\ns_add_u32 %s, %s, %d'
          % (sA, self.srb, sA, sA, self.sw, sAf, sA, 2 + FS, sAf, sAf, FL_OFF + RFL, sA, sA, sA, sA, Z2_OFF))
        vpf, vpr, pf, pr = [v.alloc() for _ in range(4)]
        a('v_and_b32 %s, 3, %s\nv_lshlrev_b32 %s, %d, %s' % (vpr, self.l, vpr, FS, vpr))
        vd0, vd1, sring, sdn, sd = v.alloc(), v.alloc(), s.alloc(), s.alloc(), s.alloc()
        a('v_lshrrev_b32 %s, 3, %s\nv_mul_u32_u24 %s, 896, %s' % (t, self.l, t, t))
        a('v_bfe_u32 %s, %s, 4, 1\nv_lshlrev_b32 %s, 2, %s\nv_xor_b32 %s, %s, %s\nv_and_b32 %s, 7, %s' % (u, self.l, u, u, u, u, self.l, u, u))
        a('v_lshl_add_u32 %s, %s, 4, %s\nv_add_u32 %s, 7168, %s' % (vd0, u, t, vd1, vd0))
        a('s_lshl_b32 %s, %s, 13\ns_add_u32 %s, %s, %d' % (sring, self.sw, sring, sring, L_WD))
        a('s_mul_i32 %s, %s, %d\ns_lshl_b32 s3, %s, 7\ns_add_u32 %s, %s, s3' % (sdn, self.sw, 32 * 896, self.scb, sdn, sdn))
        vdt = v.alloc(2)
        a('v_lshrrev_b32 %s, 5, %s\nv_lshlrev_b32 %s, 10, %s' % (t, self.l, t, t))
        a('v_bfe_u32 %s, %s, 2, 2\nv_lshl_add_u32 %s, %s, 7, %s' % (u, self.l, t, u, t))
        a('v_bfe_u32 %s, %s, 3, 1\ns_and_b32 s3, %s, 1\nv_xor_b32 %s, s3, %s\nv_lshl_add_u32 %s, %s, 6, %s' % (u, self.l, self.sw, u, u, t, u, t))
        a('v_and_b32 %s, 1, %s\nv_lshl_add_u32 %s, %s, 5, %s' % (u, self.l, t, u, t))
        a('v_bfe_u32 %s, %s, 4, 1\nv_lshl_add_u32 %s, %s, 4, %s' % (u, self.l, t, u, t))
        a('v_bfe_u32 %s, %s, 1, 1\nv_lshl_add_u32 %s, %s, 3, %s' % (u, self.l, t, u, t))
        a('v_add_u32 %s, %s, %s\nv_xor_b32 %s, 64, %s' % (vdt[0], sring, t, vdt[1], vdt[0]))
        sH, sHf, sHl, sPf, sPr = [s.alloc() for _ in range(5)]
        vh = v.alloc(2)
        a('s_mul_i32 %s, %s, 448\ns_mul_i32 s3, %s, 28\ns_add_u32 %s, %s, s3\ns_add_u32 %s, %s, %s\ns_lshl_b32 %s, %s, 10\ns_add_u32 %s, %s, %d'
          % (sH, self.srb, self.sw, sH, sH, sH, sH, self.sfs, sH, sH, sH, sH, HH_OFF))
        a('s_lshl_b32 %s, %s, 2\ns_add_u32 %s, %s, %s\ns_lshl_b32 %s, %s, %d\ns_lshl_b32 s3, %s, %d\ns_add_u32 %s, %s, s3\ns_add_u32 %s, %s, %d'
          % (sHf, self.srb, sHf, sHf, self.sw, sHf, sHf, 4 + FS, self.sfs, FS, sHf, sHf, sHf, sHf, FL_OFF + HFL))
        self.publish(2, self.z2st)
        a('s_cmp_ge_u32 %s, 28\ns_cbranch_scc1 L_fin' % self.si)
        a('s_mul_i32 %s, %s, 224\ns_mul_i32 s3, %s, 28\ns_add_u32 %s, %s, s3\ns_lshl_b32 %s, %s, 10\ns_add_u32 %s, %s, %d'
          % (sHl, self.srb64, self.sw, sHl, sHl, sHl, sHl, sHl, sHl, HH_OFF))
        a('s_lshr_b32 s3, %s, 1\ns_mul_i32 s3, s3, 114688\nv_add_u32 %s, s3, %s' % (self.sw, vh[0], self.l16))
        a('s_sub_u32 s3, 114688, s3\nv_add_u32 %s, s3, %s' % (vh[1], self.l16))
        a('s_lshr_b32 %s, %s, 1\ns_lshl_b32 %s, %s, 2\ns_add_u32 %s, %s, %s\ns_lshl_b32 %s, %s, %d\ns_add_u32 %s, %s, %d'
          % (sPf, self.srb64, sPf, sPf, sPf, sPf, self.sw, sPf, sPf, 4 + FS, sPf, sPf, FL_OFF + HFL))
        a('s_lshl_b32 %s, %s, %d\ns_add_u32 %s, %s, %d' % (sPr, self.srb64, 3 + FS, sPr, sPr, FL_OFF + RFL))
        a('v_min_u32 %s, 13, %s\nv_lshlrev_b32 %s, %d, %s' % (vpf, self.l, vpf, FS, vpf))
        vo, vr_ = v.alloc(), v.alloc(); so, sr = s.alloc(), s.alloc()
        a('v_lshrrev_b32 %s, 5, %s\nv_lshlrev_b32 %s, 5, %s' % (t, self.l, t, t))
        a('v_mul_u32_u24 %s, 896, %s\nv_add_u32 %s, %s, %s' % (vr_, self.p, vr_, vr_, t))
        a('v_and_b32 %s, 7, %s\nv_lshlrev_b32 %s, 5, %s\nv_lshrrev_b32 %s, 3, %s\nv_add_u32 %s, %s, %s' % (vo, self.l, vo, vo, u, self.p, vo, vo, u))
        a('v_mul_u32_u24 %s, 896, %s\nv_add_u32 %s, %s, %s' % (vo, vo, vo, vo, t))
        a('s_lshl_b32 %s, %s, 1\ns_and_b32 s3, %s, 1\ns_add_u32 %s, %s, s3\ns_lshl_b32 %s, %s, 6' % (so, self.scb, self.sw, so, so, so, so))
        a('s_lshl_b32 %s, %s, 1\ns_lshr_b32 s3, %s, 1\ns_add_u32 %s, %s, s3' % (sr, self.srb64, self.sw, sr, sr))
        a('s_and_b32 s3, %s, 7\ns_lshl_b32 s3, s3, 2\ns_lshr_b32 %s, %s, 3\ns_lshl_b32 %s, %s, 8\ns_add_u32 s3, s3, %s' % (sr, sd, sr, sd, sd, sd))
        a('s_mul_i32 s3, s3, 896\ns_mul_i32 %s, %s, %d\ns_add_u32 %s, %s, %s\ns_add_u32 %s, %s, %d\ns_add_u32 %s, %s, s3'
          % (sr, sr, 32 * 896, sr, sr, so, sr, sr, HR_OFF, so, so))
        vrw = v.alloc(); vrr = [v.alloc() for _ in range(3)]
        a('v_add_u32 %s, %s, %s' % (vrw, self.sgu, self.l16))
        for j in range(1, 4):
            a('s_xor_b32 s3, %s, %d\ns_lshl_b32 s3, s3, 14\ns_add_u32 s3, s3, %d\nv_add_u32 %s, s3, %s' % (self.sw, j, L_GU + (j - 1) * 4096, vrr[j - 1], self.l16))
        v.release(t, u, self.junk, self.p)
        ddma, dtr, dslot = {}, {}, {}
        vdg = v.alloc(2)
        a('s_sub_u32 s3, %s, %s\nv_add_u32 %s, s3, %s\nv_add_u32 %s, s3, %s' % (self.sgu, sring, vdg[0], vdt[0], vdg[1], vdt[1]))
        def d_dma(n, h, slot=None):
            tt, fs = n // 14, n % 14
            if h == 0:
                dslot[n] = slot if slot is not None else (0, n % 4)
                prev = [m for m in dtr if dslot[m] == dslot[n]]
                if prev: a.wait(lg=dtr[max(prev)])
                a('s_add_u32 %s, %s, %d' % (sd, sdn, (128 * fs + 16 * tt) * 896))
            a('s_add_u32 m0, %s, %d' % ((sring, self.sgu)[dslot[n][0]], dslot[n][1] * 2048 + 1024 * h))
            ddma[n] = a('buffer_load_dwordx4 %s, %s, %s offen lds' % ((vd0, vd1)[h], self.WD, sd))
        def d_tr(n, ct):
            if ct == 0: a.wait(vm=ddma[n])
            for e in range(2):
                b = 8 * n + 4 * ct + 2 * e
                dtr[n] = a('ds_read_b64_tr_b16 a[%d:%d], %s offset:%d' % (b, b + 1, (vdt, vdg)[dslot[n][0]][ct], dslot[n][1] * 2048 + e * 512))
        self.bg(99)
        npre = cfg.get('wdpre', 0)
        for n in range(npre):
            d_dma(n, 0); d_dma(n, 1)
        self.pace(2, None)
        self.await_flags(pf, vpr, sAf, 'flag3')
        a('v_and_b32 %s, 7, %s\nv_lshlrev_b32 %s, %d, %s' % (vpr, self.l, vpr, FS, vpr))
        adma = {}
        sa, sal = s.alloc(), s.alloc()
        a('s_lshl_b32 %s, %s, 14\ns_add_u32 %s, %s, %d' % (sal, self.sw, sal, sal, L_A))
        def a_dma(ks):
            if ks % 4 == 0: a('s_add_u32 %s, %s, %d' % (sa, sA, ks * 1024))
            if ks % 4 == 0 or ks >= 16: a('s_add_u32 m0, %s, %d' % (sal, (ks % 16) // 4 * 4096))
            adma[ks] = a('buffer_load_dwordx4 %s, %s, %s offen offset:%d sc1 lds' % (self.l16, self.WS, sa, (ks % 4) * 1024))
        for ks in range(16): a_dma(ks)
        acc = v.alloc(128, 4); zf = v.alloc(32, 4); wf = v.alloc(24, 4)
        gtr, zrd = {}, {}
        def g_tr(k, t):
            if t == 0: a.wait(vm=self.gdma[k])
            for e in range(2):
                gtr[k] = a('ds_read_b64_tr_b16 %s, %s offset:%d' % (wf.sub(8 * (k % 3) + 4 * t + 2 * e, 2), self.vtr[t], (k % 8) * 2048 + e * 256))
        def zread(ks, rt):
            zrd[ks, rt] = a('ds_read_b128 %s, %s offset:%d' % (zf.sub(16 * (ks % 2) + 4 * rt, 4), self.l16, L_A + rt * 16384 + (ks % 16) * 1024))
        for k in range(2):
            g_tr(k, 0); g_tr(k, 1)
        ends = [2, 4, 8, 12, 16, 20, 24, 28]
        a.wait(vm=adma[ends[0] - 1])
        a('s_barrier')
        self.stamp('a0')
        for rt in range(4): zread(0, rt)

        fixed, streams = {}, {}
        def at(gap, fn): fixed.setdefault(gap, []).append(fn)
        def put(name, gap, w, fn): streams.setdefault(name, []).append((gap, w, fn))
        for c in range(1, len(ends)):
            def sync(c=c):
                a.wait(vm=adma[ends[c] - 1])
                a('s_barrier')
            g0 = 8 * (ends[c - 1] - 1) - 1
            at(g0, sync)
            if 8 <= ends[c - 1] <= 16:
                for ks in range(ends[c - 1] + 8, ends[c - 1] + 12): put('a', g0 + 1, 2, lambda ks=ks: a_dma(ks))
        for k in range(2, 28):
            for t in range(2): at(8 * (k - 2) + 4 + t, lambda k=k, t=t: g_tr(k, t))
        for k in range(8, 28):
            def first(k=k):
                a.wait(lg=gtr[k - 8])
                self.gu_dma(k, 0)
            g0 = 8 * max(k - 9, 0) + 2
            put('gu', g0, 3, first); put('gu', g0 + 1, 2, lambda k=k: self.gu_dma(k, 1))
        nin = cfg.get('wdin', 16); w0 = cfg.get('wd0', 3); rate = cfg.get('wdrate', 12)
        ev = []
        for n in range(nin):
            tr = 8 * w0 + rate * n + (0 if n < npre else 4 * rate - 4)
            if n >= npre:
                g0 = 8 * w0 + rate * n
                ev += [(g0, 3, lambda n=n: d_dma(n, 0)), (g0 + 1, 2, lambda n=n: d_dma(n, 1))]
            tr = 8 * w0 + rate * (n + 4) - 4
            ev += [(tr, 3, lambda n=n: d_tr(n, 0)), (tr + 1, 2, lambda n=n: d_tr(n, 1))]
        for e in sorted(ev, key=lambda e: e[0]): put('wd', *e)
        pl = {}
        def poll_res():
            pl[0] = a('buffer_load_dword %s, %s, %s, %s offen sc1' % (pr, vpr, self.WS, sPr))
        at(8 * 24 + 7, poll_res)

        cap = cfg.get('cap', 5)
        for ks in range(28):
            for gi in range(8):
                rt, t = gi // 2, gi % 2
                gap = 8 * ks + gi; room = cap
                if gi == 0: a.wait(lg=max(zrd[ks, 1].seq, gtr[ks].seq)); room -= 1
                if gi == 4: a.wait(lg=zrd[ks, 3]); room -= 1
                d = acc.sub(64 * t + 16 * rt, 16)
                a('v_mfma_f32_32x32x16_bf16 %s, %s, %s, %s' % (d, wf.sub(8 * (ks % 3) + 4 * t, 4), zf.sub(16 * (ks % 2) + 4 * rt, 4), d if ks else 0))
                if ks < 27 and gi < 4:
                    zread(ks + 1, gi); room -= 1
                if gap == 112: self.stamp('half')
                for fn in fixed.get(gap, []): fn(); room -= 2
                more = True
                while more:
                    more = False
                    for q in streams.values():
                        if q and q[0][0] <= gap and q[0][1] <= room:
                            room -= q[0][1]; q.pop(0)[2](); more = True
        self.stamp('g1end')
        assert not streams['a'] and not streams['gu']
        hst = None
        for rt in range(4):
            for t in range(2):
                x = acc.sub(64 * t + 16 * rt, 16)
                for h in range(2):
                    for r in range(0, 4, 2):
                        self.pk('mul', x.sub(8 * h + r, 2), x.sub(8 * h + r, 2), x.sub(8 * h + 4 + r, 2))
                for k in range(4):
                    b = 8 * (k // 2) + 2 * (k % 2)
                    a('v_cvt_pk_bf16_f32 %s, %s, %s' % (x[4 + k], x[b], x[b + 1]))
                a('s_add_u32 s3, %s, %d' % (sH, rt * 112 * 1024 + t * 14336))
                hst = a('buffer_store_dwordx4 %s, %s, %s, s3 offen sc1' % (x.sub(4, 4), self.l16, self.WS))
        for e in streams['wd']: e[2]()
        late = list(range(nin, 28))
        slots = [(1, k) for k in range(8)] + [(0, k) for k in range(4)]
        assert len(late) <= len(slots)
        n4a = cfg.get('n4a', 3)
        for n in late[:n4a]:
            d_dma(n, 0, slots.pop(0)); d_dma(n, 1)
        a.wait(vm=hst)
        self.flag_store(sHf, zero)
        self.stamp('hfl')
        for n in late[n4a:]:
            d_dma(n, 0, slots.pop(0)); d_dma(n, 1)
        lf, lo = a.label('L_rfail'), a.label('L_rok')
        a('v_cmp_ne_u32 vcc, %s, %s\ns_cbranch_vccnz %s' % (self.tag, pr, lf))
        a(lo + ':')
        def fail():
            a(lf + ':')
            self.spin_out(lo)
            poll_res()
            a.wait_vm0()
            a('v_cmp_ne_u32 vcc, %s, %s\ns_cbranch_vccnz %s\ns_branch %s' % (self.tag, pr, lf, lo))
        self.tail.append(fail)
        v.release(vd0, vd1, zf, wf, self.vsg, self.vsu, self.vtr)
        free = [acc.sub(64 + 4 * k, 4) for k in range(16)]
        while True:
            try: free.append(v.alloc(4, 4))
            except RuntimeError: break
        hres = [free.pop(), free.pop()]
        res = [free.pop() for _ in range(4)]
        a('buffer_load_dwordx4 %s, %s, %s, %s offen sc1' % (hres[0], vr_, self.WS, sr))
        a('buffer_load_dwordx4 %s, %s, %s, %s offen offset:16 sc1' % (hres[1], vr_, self.WS, sr))
        if cfg.get('pace4'): a('s_sleep %d' % cfg['pace4'])
        self.await_flags(pf, vpf, sPf, 'h1')
        hld, hslot = {}, {}
        sl = s.alloc(); cur = [None]
        def h_load(n, rt):
            if cur[0] != n // 4:
                cur[0] = n // 4
                a('s_add_u32 %s, %s, %d' % (sl, sHl, (n // 4) * 4096))
            hslot[n, rt] = slot = free.pop(0)
            hld[n, rt] = a('buffer_load_dwordx4 %s, %s, %s, %s offen offset:%d sc1' % (slot, vh[rt], self.WS, sl, (n % 4) * 1024))
        def g2_mfma(n, rt):
            a.wait(vm=hld[n, rt])
            for ct in ((1, 0) if rt == 0 else (0, 1)):
                d = acc.sub(16 * (ct + 2 * rt), 16)
                a('v_mfma_f32_32x32x16_bf16 %s, a[%d:%d], %s, %s' % (d, 8 * n + 4 * ct, 8 * n + 4 * ct + 3, hslot[n, rt], d if n else 0))
            free.append(hslot[n, rt])
        order = [(n, rt) for n in range(20) for rt in range(2)] + [(n, 1) for n in range(20, 28)] + [(n, 0) for n in range(20, 28)]
        L = cfg.get('l2', 10)
        for k in range(L): h_load(*order[k])
        for n in late:
            d_tr(n, 0); d_tr(n, 1)
        for k in range(8):
            a('v_lshlrev_b32 %s, 16, %s\nv_and_b32 %s, 0xffff0000, %s' % (res[k // 2][2 * (k % 2)], hres[k // 4][k % 4], res[k // 2][2 * (k % 2) + 1], hres[k // 4][k % 4]))
        free += hres
        a.wait_lg0()
        def red_write(j, i):
            a('ds_write_b128 %s, %s offset:%d' % (vrw, acc.sub(16 * j + 4 * i, 4), (j - 1) * 4096 + i * 1024))
        wr = [(j, i) for j in (2, 3) for i in range(4)]
        for k in range(56):
            if k + L < 56: h_load(*order[k + L])
            g2_mfma(*order[k])
            if k >= 50:
                for _ in range(2):
                    if wr: red_write(*wr.pop(0))
        self.stamp('g2end')
        for i in range(4): red_write(1, i)
        for i in range(4):
            for e in range(2):
                self.pk('add', res[i].sub(2 * e, 2), res[i].sub(2 * e, 2), acc.sub(4 * i + 2 * e, 2))
        a.wait_lg0()
        a('s_barrier')
        rd = {}
        for i in range(4):
            for j in range(1, 4):
                rd[j, i] = a('ds_read_b128 %s, %s offset:%d' % (acc.sub(16 * j + 4 * i, 4), vrr[j - 1], i * 1024))
        for i in range(4):
            for j in range(1, 4):
                a.wait(lg=rd[j, i])
                for e in range(2):
                    self.pk('add', res[i].sub(2 * e, 2), res[i].sub(2 * e, 2), acc.sub(16 * j + 4 * i + 2 * e, 2))
            for e in range(2):
                a('v_cvt_pk_bf16_f32 %s, %s, %s' % (acc[2 * i + e], res[i][2 * e], res[i][2 * e + 1]))
            if i % 2:
                a('buffer_store_dwordx4 %s, %s, %s, %s offen offset:%d' % (acc.sub(2 * i - 2, 4), vo, self.OUT, so, 8 * i - 8))

    def burn(self, n):
        a = self.a
        lab = a.label('L_burn')
        a('s_mov_b32 s3, %d' % n)
        a(lab + ':')
        for k in range(32): a('v_add_u32 v255, 1, v255')
        a('s_sub_u32 s3, s3, 1\ns_cmp_lg_u32 s3, 0\ns_cbranch_scc1 %s' % lab)

    def finish(self):
        a = self.a
        a('L_fin:')
        if self.cfg.get('burnend'): self.burn(self.cfg['burnend'])
        if self.stamps:
            a('s_waitcnt vmcnt(0) lgkmcnt(0)')
            self.stamp('done')
            a('s_waitcnt lgkmcnt(0)')
            a('s_lshl_b32 s3, s2, 2\ns_add_u32 s3, s3, %s\ns_lshl_b32 s3, s3, 8\ns_add_u32 s3, s3, %d' % (self.sw, ST_OFF))
            a('v_mov_b32 v1, 0\ns_mov_b64 exec, 1')
            if self.cfg.get('dbgst'):
                lab = a.label('L_nodbg')
                a('s_cmp_ge_u32 %s, 28\ns_cbranch_scc1 %s\ns_cmp_lg_u32 %s, 0\ns_cbranch_scc1 %s' % (self.si, lab, self.sw, lab))
                d = self.X
                a('s_load_dwordx2 %s, s[0:1], 64\ns_mov_b32 %s, 256\ns_waitcnt lgkmcnt(0)' % (d[0:2], d[2]))
                for k, (nm, r) in enumerate(self.stamps[:16]):
                    a('v_mov_b32 v2, %s' % r[0])
                    if k == 0: a('v_not_b32 v2, v2')
                    a('buffer_atomic_umax v2, v1, %s, 0 offen offset:%d sc1' % (d, 4 * k))
                    a('s_nop 1')
                a(lab + ':')
            for k, (nm, r) in enumerate(self.stamps):
                a('v_mov_b32 v2, %s' % r[0])
                a('buffer_store_dword v2, v1, %s, s3 offen offset:%d' % (self.WS, 4 * k))
        a('L_end:')
        a('s_endpgm')
        for fn in self.tail: fn()

    def build(self):
        self.s.free.discard(3)
        self.prologue(); self.p1(); self.p2(); self.p3(); self.gemms(); self.finish()
        nops = self.a.fix_hazards()
        errs = self.a.check_waits()
        return nops, errs


HEAD = '''; Kernarg layout (80 bytes, pointers only, base s[0:1]):
; @launch grid=(256,1,1) block=(256,1,1) lds=%d
.amdgcn_target "amdgcn-amd-amdhsa--gfx950"
.text
.globl %s
.p2align 8
.type %s,@function
%s:
'''
TAIL = '''
.fill 8192, 4, 0xbf800000
.section .rodata,"a"
.p2align 6
.amdhsa_kernel %s
  .amdhsa_next_free_vgpr 512
  .amdhsa_next_free_sgpr 102
  .amdhsa_accum_offset 256
  .amdhsa_group_segment_fixed_size 0
  .amdhsa_kernarg_size 80
  .amdhsa_user_sgpr_count 2
  .amdhsa_user_sgpr_kernarg_segment_ptr 1
  .amdhsa_system_sgpr_workgroup_id_x 1
.end_amdhsa_kernel
'''


def generate(cfg, path):
    g = Gen(cfg)
    nops, errs = g.build()
    for e in errs: print('WAIT-CHECK:', e)
    src = HEAD % (LDS_BYTES, KNAME, KNAME, KNAME) + g.a.text() + TAIL % KNAME
    if cfg.get('stamps'): src += '; cfg ' + ' '.join('%s=%s' % kv for kv in cfg.items()) + '\n'
    open(path, 'w').write(src)
    import os
    if g.stamps: open(path[:-2] + '.stamps', 'w').write(' '.join(x[0] for x in g.stamps))
    elif os.path.exists(path[:-2] + '.stamps'): os.remove(path[:-2] + '.stamps')
    n = sum(1 for x in g.a.ins if x.kind not in ('label', 'dir'))
    print('%s: %d instructions, %d hazard states, vgpr hi %d, sgpr hi %d, stamps %s' % (path, n, nops, g.v.hi, g.s.hi, [x[0] for x in g.stamps]))
    return g


if __name__ == '__main__':
    cfg = {}
    path = 'k.s'
    for arg in sys.argv[1:]:
        if '=' in arg:
            k, val = arg.split('='); cfg[k] = int(val) if val.lstrip('-').isdigit() else val
        else: path = arg
    generate(cfg, path)
```
